```python
import torch

def _softmax(x, axis=-1):
    return torch.softmax(x, dim=axis)

def _gelu(x):
    return torch.nn.functional.gelu(x, approximate='tanh')

def _silu(x):
    return torch.nn.functional.silu(x)

def _sigmoid(x):
    return torch.sigmoid(x)

def _layernorm(x, axis=-1, eps=1e-05):
    m = x.mean(dim=axis, keepdim=True)
    v = x.var(dim=axis, keepdim=True, unbiased=False)
    return (x - m) / torch.sqrt(v + eps)

def _scatter_add(tgt, idx, src, axis=0):
    return tgt.clone().index_add_(axis, idx, src)

def _segment_sum(src, seg, n):
    out = torch.zeros((n,) + src.shape[1:], dtype=src.dtype)
    return out.index_add_(0, seg, src)

def _pad(x, pw):
    flat = tuple((v for pair in reversed(pw) for v in pair))
    return torch.nn.functional.pad(x, flat)
kernel_name = 'concat_heads__sliding_local_dilated__memory_aug_recurrent_mem_tr__prompt'

def setup_inputs():

    _w = lambda a: (lambda t: t.to(torch.bfloat16) if t.is_floating_point() else t)(torch.as_tensor(a))

    def _A_setup():
        B, S, D = (1, 2048, 512)
        return {'x': _w((lambda *s: torch.randn(*s, dtype=torch.bfloat16) * 0.2)(B, S, D)), 'wqkv': _w((lambda *s: torch.randn(*s, dtype=torch.bfloat16) * 0.2)(D, 3 * D)), 'wo': _w((lambda *s: torch.randn(*s, dtype=torch.bfloat16) * 0.05)(D, D))}
    _A_in = _A_setup()

    def _B_setup():
        B, S, Dm = (1, 2048, 512)
        H, Dh = (32, 128)
        M, seg = (8, 32)
        seg = min(seg, S)
        S = S // seg * seg
        return {'x': _w((lambda *s: torch.randn(*s, dtype=torch.bfloat16) * 0.05)(B, S, Dm)), 'mem0': _w((lambda *s: torch.randn(*s, dtype=torch.bfloat16) * 1.6)(B, M, Dm)), 'Wq': _w((lambda *s: torch.randn(*s, dtype=torch.bfloat16) * 0.8)(Dm, H, Dh) * Dm ** (-0.5)), 'Wk': _w((lambda *s: torch.randn(*s, dtype=torch.bfloat16) * 0.8)(Dm, H, Dh) * Dm ** (-0.5)), 'Wv': _w((lambda *s: torch.randn(*s, dtype=torch.bfloat16) * 1.6)(Dm, H, Dh) * Dm ** (-0.5)), 'Wo': _w((lambda *s: torch.randn(*s, dtype=torch.bfloat16) * 1.6)(H, Dh, Dm) * (H * Dh) ** (-0.5)), 'seg_len': seg}
    _B_in = _B_setup()
    return {'A_x': _A_in['x'], 'A_wqkv': _A_in['wqkv'], 'A_wo': _A_in['wo'], 'B_x': _B_in['x'], 'B_mem0': _B_in['mem0'], 'B_Wq': _B_in['Wq'], 'B_Wk': _B_in['Wk'], 'B_Wv': _B_in['Wv'], 'B_Wo': _B_in['Wo'], 'B_seg_len': _B_in['seg_len']}

def reference(A_x, A_wqkv, A_wo, B_x, B_mem0, B_Wq, B_Wk, B_Wv, B_Wo, B_seg_len):

    def _A_ref(x, wqkv, wo):
        B, S, D = x.shape
        H = 32
        Dh = D // H
        W, dil = (8, 2)
        qkv = (lambda x, *d: x.permute(*d))((x @ wqkv).reshape(B, S, 3, H, Dh), 2, 0, 3, 1, 4)
        q, k, v = (qkv[0], qkv[1], qkv[2])
        scale = Dh ** (-0.5)
        pos = torch.arange(S)
        off = torch.arange(W) * dil
        idx = pos[:, None] - off[None, :]
        mask = idx >= 0
        idx_c = torch.where(mask, idx, 0).reshape(-1)
        kg = k[:, :, idx_c, :].reshape(B, H, S, W, Dh)
        vg = v[:, :, idx_c, :].reshape(B, H, S, W, Dh)
        logits = torch.einsum('bhsd,bhswd->bhsw', q, kg) * scale
        logits = torch.where(mask[None, None, :, :], logits, -1000000000.0)
        attn = _softmax(logits, axis=-1)
        o = torch.einsum('bhsw,bhswd->bhsd', attn, vg)
        return (lambda x, *d: x.permute(*d))(o, 0, 2, 1, 3).reshape(B, S, D) @ wo

    def _B_ref(x, mem0, Wq, Wk, Wv, Wo, seg_len):
        B, S, Dm = x.shape
        H, Dh = (Wq.shape[1], Wq.shape[2])
        M = mem0.shape[1]
        scale = Dh ** (-0.5)
        n_seg = S // seg_len
        L = M + seg_len
        idx = torch.arange(L)
        mask = (idx[:, None] < M) | (idx[:, None] >= idx[None, :])
        mem = mem0
        outs = []
        for s in range(n_seg):
            xs = x[:, s * seg_len:(s + 1) * seg_len, :].clone()
            h = torch.concatenate([mem, xs], axis=1)
            q = torch.einsum('btd,dhe->bhte', h, Wq)
            k = torch.einsum('btd,dhe->bhte', h, Wk)
            v = torch.einsum('btd,dhe->bhte', h, Wv)
            scores = torch.einsum('bhqe,bhke->bhqk', q, k) * scale
            scores = torch.where(mask[None, None], scores, -1000000000.0)
            p = _softmax(scores, axis=-1)
            o = torch.einsum('bhqk,bhke->bhqe', p, v)
            o = torch.einsum('bhte,hed->btd', o, Wo)
            mem = o[:, :M, :].clone()
            outs.append(o[:, M:, :])
        return torch.concatenate(outs, axis=1)
    a = _A_ref(A_x, A_wqkv, A_wo)
    b = _B_ref(B_x, B_mem0, B_Wq, B_Wk, B_Wv, B_Wo, B_seg_len)
    return torch.concatenate([a, b], axis=-1)
```

```python
import re

_REG = re.compile(r'\b([vas])\[(\d+):(\d+)\]|\b([vas])(\d+)\b|\b(vcc|exec|m0|scc)\b')

def regs_of(s):
    out = []
    for m in _REG.finditer(s):
        if m.group(1):
            out += [(m.group(1), i) for i in range(int(m.group(2)), int(m.group(3)) + 1)]
        elif m.group(4):
            out.append((m.group(4), int(m.group(5))))
        else:
            out.append((m.group(6), 0))
    return out

TRANS = ('v_exp_f32', 'v_log_f32', 'v_rcp_f32', 'v_rsq_f32', 'v_sqrt_f32', 'v_sin_f32', 'v_cos_f32')

def split_ops(rest):
    ops, depth, cur = [], 0, ''
    for ch in rest:
        if ch in '[(': depth += 1
        if ch in '])': depth -= 1
        if ch == ',' and depth == 0:
            ops.append(cur.strip()); cur = ''
        else:
            cur += ch
    if cur.strip(): ops.append(cur.strip())
    return ops

class Ins:
    __slots__ = ('text', 'mn', 'kind', 'w', 'r', 'rc', 'rab', 'passes', 'dpp', 'perm', 'trans', 'wide', 'lds', 'pos', 'sdata', 'rl')

def parse(text):
    t = text.split(';')[0].strip()
    mn, _, rest = t.partition(' ')
    ops = split_ops(rest)
    I = Ins(); I.text = text; I.mn = mn
    I.w = []; I.r = []; I.rc = []; I.rab = []; I.passes = 0; I.dpp = False; I.perm = False
    I.trans = False; I.wide = False; I.lds = False; I.sdata = []; I.rl = False
    def first(o): return o.split(' ')[0]
    if mn.startswith('v_mfma') or mn.startswith('v_smfmac'):
        I.kind = 'mfma'
        I.passes = 8 if '32x32' in mn else 4
        I.w = regs_of(ops[0])
        if mn.startswith('v_smfmac'):
            I.rab = regs_of(ops[1]) + regs_of(ops[2]) + regs_of(first(ops[3])); I.rc = regs_of(ops[0])
        else:
            I.rab = regs_of(ops[1]) + regs_of(ops[2]); I.rc = regs_of(first(ops[3]))
        I.r = I.rab + I.rc
    elif mn.startswith('v_'):
        I.kind = 'valu'
        I.dpp = '_dpp' in mn or 'row_' in rest or 'quad_perm' in rest
        I.trans = mn.replace('_e32', '').replace('_e64', '') in TRANS
        if mn.startswith('v_permlane'):
            I.perm = True
            I.w = regs_of(ops[0]) + regs_of(first(ops[1])); I.r = list(I.w)
        else:
            I.w = regs_of(ops[0])
            srcs = ops[1:]
            if '_co_' in mn:
                I.w += regs_of(ops[1]); srcs = ops[2:]
            for o in srcs: I.r += regs_of(first(o) if not o.startswith('abs') and not o.startswith('-') else o.split(' ')[0])
            if mn.startswith('v_fmac') or mn.startswith('v_dot2c') or I.dpp or mn.startswith('v_writelane'):
                I.r += regs_of(ops[0])
            if mn.startswith('v_cndmask') and len(ops) == 3: I.r.append(('vcc', 0))
            if mn.startswith('v_readfirstlane') or mn.startswith('v_readlane'): I.rl = True
    elif mn.startswith('ds_'):
        I.kind = 'ds'
        if mn.startswith('ds_read') or mn.startswith('ds_bpermute') or mn.startswith('ds_swizzle'):
            I.w = regs_of(ops[0])
            for o in ops[1:]: I.r += regs_of(first(o))
        else:
            for o in ops: I.r += regs_of(first(o))
    elif mn.startswith('buffer_') or mn.startswith('global_'):
        I.kind = 'vmem'
        islds = re.search(r'\blds\b', rest) is not None
        I.lds = islds
        if mn in ('buffer_wbl2', 'buffer_inv'):
            pass
        elif 'load' in mn and not islds:
            I.w = regs_of(ops[0])
            for o in ops[1:]: I.r += regs_of(first(o))
        else:
            for o in ops: I.r += regs_of(first(o))
            if islds: I.r.append(('m0', 0))
            if 'store' in mn and (mn.endswith('x4') or mn.endswith('x3')):
                I.wide = True; I.sdata = regs_of(ops[0])
            if 'atomic' in mn and 'sc0' in rest: I.w = regs_of(ops[0])
    elif mn.startswith('s_'):
        I.kind = 'salu'
        if mn in ('s_nop', 's_waitcnt', 's_barrier', 's_sleep', 's_endpgm', 's_setprio') or mn.startswith('s_cbranch') or mn == 's_branch':
            pass
        elif mn.startswith('s_cmp') or mn.startswith('s_bitcmp'):
            for o in ops: I.r += regs_of(o)
        else:
            I.w = regs_of(ops[0])
            for o in ops[1:]: I.r += regs_of(o)
    else:
        raise ValueError('unknown instr: ' + text)
    return I

def need(p, c):
    n = 0
    pw = set(p.w)
    if p.kind == 'valu':
        vw = {x for x in pw if x[0] in 'va'}
        sw = {x for x in pw if x[0] in ('s', 'vcc')}
        if c.kind == 'mfma' and vw & set(c.r): n = max(n, 2)
        if c.kind == 'valu':
            if (c.perm or c.dpp) and vw & set(c.r): n = max(n, 2)
            if p.trans and not c.trans and vw & set(c.r): n = max(n, 1)
            if c.rl and vw & set(c.r): n = max(n, 1)
            if sw & set(c.r): n = max(n, 4 if c.mn.startswith(('v_readlane', 'v_writelane')) else 2)
        if c.kind == 'vmem' and sw & set(c.r): n = max(n, 5)
    elif p.kind == 'mfma':
        big = p.passes == 8
        if c.kind == 'mfma':
            if pw & set(c.rab): n = max(n, 12 if big else 8)
            if pw & set(c.rc):
                if not (c.rc == p.w and c.passes == p.passes): n = max(n, 10 if big else 6)
            elif pw & set(c.w): n = max(n, 10 if big else 6)
        elif c.kind in ('valu', 'ds', 'vmem'):
            if pw & (set(c.r) | set(c.w)): n = max(n, 12 if big else 8)
            if c.kind == 'valu' and set(p.rc) & set(c.w): n = max(n, 7 if big else 3)
    elif p.kind == 'salu':
        if ('m0', 0) in pw and c.kind == 'vmem' and c.lds: n = max(n, 1)
    elif p.kind == 'vmem':
        if p.wide and set(p.sdata) & set(c.w): n = max(n, 2 if c.kind == 'valu' else 1)
    return n

class Asm:
    def __init__(self):
        self.out = []
        self.hist = []
        self.pos = 0
        self.nops = 0
        self.uid = 0
    def raw(self, s): self.out.append(s)
    def label(self, name):
        self.out.append(name + ':')
    def newlabel(self, p='L'):
        self.uid += 1
        return f'{p}_{self.uid}'
    def comment(self, s): self.out.append('; ' + s)
    def __call__(self, text):
        for line in text.split('\n'):
            line = line.strip()
            if not line: continue
            if line.startswith(';'): self.out.append(line); continue
            if line.endswith(':'): self.label(line[:-1]); continue
            self.ins(line)
    def ins(self, text):
        I = parse(text)
        gap = 0
        for (p, ppos) in self.hist:
            n = need(p, I)
            if n:
                have = self.pos - ppos - 1
                gap = max(gap, n - have)
        while gap > 0:
            k = min(gap, 16)
            self.out.append(f'  s_nop {k-1}')
            self.pos += k; gap -= k; self.nops += k
        self.out.append('  ' + text)
        if I.mn == 's_nop':
            self.pos += int(text.split()[1], 0) + 1
        else:
            self.hist.append((I, self.pos))
            self.pos += 1
        self.hist = [(p, q) for (p, q) in self.hist if self.pos - q <= 14]
    def flush(self):
        mx = 0
        for (p, ppos) in self.hist:
            n = 0
            if p.kind == 'mfma': n = 12 if p.passes == 8 else 8
            elif p.kind == 'valu': n = 5 if any(x[0] in ('s', 'vcc') for x in p.w) else 2
            elif p.kind == 'vmem' and p.wide: n = 2
            elif p.kind == 'salu' and ('m0', 0) in p.w: n = 1
            mx = max(mx, n - (self.pos - ppos - 1))
        if mx > 0: self.ins(f's_nop {mx-1}')
    def text(self): return '\n'.join(self.out) + '\n'

def vr(b, n=1, k='v'):
    return f'{k}{b}' if n == 1 else f'{k}[{b}:{b+n-1}]'
```

```python
from gen import *
import struct, math
def f2u(x): return struct.unpack('<I', struct.pack('<f', x))[0]

def role_apart(a, cfg):
    a.comment('---- sliding-window dilated attention block (64 rows)')
    stamp(a, cfg, 0)
    vL16, vS1, vS2, vTRb, vTR, vNEG, vOut, vT = 1, 2, 3, 4, 5, 6, 7, 8
    RB = 12
    XF = 16
    WF = 56
    AQ, AK, AV = 72, 104, 144
    SC, PK, OC, TT = 16, 24, 28, 32
    OFR = 184
    sT, sT2, sNX, sSL, sRS, sKB, sRB, sC, sNC, sB0 = range(52, 62)
    MK = 62
    sX, sWq, sWo, sOut = 12, 16, 20, 24
    RING = 81920
    srd(a, sX, P(0), 2048*1024)
    a('s_mov_b32 s78, s18\ns_mov_b32 s79, s19\ns_mov_b32 s80, s20\ns_mov_b32 s81, s21')
    srd(a, sWq, 78, 512*3072); srd(a, sWo, 80, 512*1024); srd(a, sOut, P(10), 2048*2048)
    a(f'v_lshlrev_b32 v{vL16}, 4, v0')
    a(f's_lshl_b32 s{sB0}, s{sIDX}, 16')
    for q in range(4):
        a(f's_add_u32 s{sT}, s{sW}, {4*q}\nv_xor_b32 v{XF+q}, s{sT}, v0\nv_lshlrev_b32 v{XF+q}, 4, v{XF+q}')
    for tile in range(5):
        if tile == 0: a(f's_sub_u32 s{sT2}, s{sB0}, 16384\ns_max_i32 s{sT2}, s{sT2}, 0')
        else: a(f's_add_u32 s{sT2}, s{sB0}, {(tile-1)*16384}')
        a(f's_lshl_b32 s{sT}, s{sW}, 10\ns_add_u32 s{sT2}, s{sT2}, s{sT}\ns_add_u32 m0, s{sT}, {tile*16384}')
        for q in range(4):
            a(f'buffer_load_dwordx4 v{XF+q}, {S(sX)}, s{sT2} offen lds')
            if q < 3: a(f's_add_u32 s{sT2}, s{sT2}, 4096\ns_add_u32 m0, m0, 4096')
    g, r, pc, n = vT, vT+1, vT+2, vT+3
    a(f'v_lshrrev_b32 v{g}, 4, v0\nv_bfe_u32 v{r}, v0, 2, 2\nv_and_b32 v{pc}, 3, v0\nv_and_b32 v{n}, 15, v0')
    a(f'v_lshl_add_u32 v{vS1}, v{g}, 3, v{r}\nv_mul_u32_u24 v{vS1}, 3072, v{vS1}\nv_lshl_add_u32 v{vS1}, v{pc}, 4, v{vS1}')
    a(f'v_lshl_add_u32 v{vS2}, v{g}, 2, v{r}\nv_lshlrev_b32 v{vS2}, 10, v{vS2}\nv_lshl_add_u32 v{vS2}, v{pc}, 4, v{vS2}')
    a(f'v_lshrrev_b32 v{vTRb}, 2, v0\nv_lshlrev_b32 v{vTRb}, 6, v{vTRb}\nv_lshl_add_u32 v{vTRb}, v{pc}, 3, v{vTRb}')
    a(f's_mul_i32 s{sRB}, s{sW}, 20480\ns_add_u32 s{sRB}, s{sRB}, {RING}\nv_add_u32 v{vTRb}, s{sRB}, v{vTRb}')
    for uu in range(4):
        a(f'v_or_b32 v{RB+uu}, {4*uu}, v{g}\nv_xor_b32 v{RB+uu}, v{RB+uu}, v{n}\nv_lshlrev_b32 v{RB+uu}, 4, v{RB+uu}\nv_lshl_add_u32 v{RB+uu}, v{n}, 10, v{RB+uu}')
    a(f'v_mov_b32 v{vNEG}, 0xff800000')
    a(f'v_lshlrev_b32 v{vOut}, 11, v{n}\nv_lshl_add_u32 v{vOut}, v{g}, 3, v{vOut}')
    a(f'v_lshlrev_b32 v{r}, 2, v{g}\nv_sub_u32 v{r}, v{n}, v{r}')
    for t in range(2):
        for i in range(4):
            m = MK + 2*(4*t+i)
            a(f'v_add_u32 v{pc}, {16*(1-t)-i}, v{r}\nv_and_b32 v{pc}, -15, v{pc}\nv_cmp_eq_u32 s[{m}:{m+1}], 0, v{pc}')
    a(f's_cmp_eq_u32 s{sIDX}, 0')
    for i in range(4): a(f's_cselect_b64 s[{44+2*i}:{45+2*i}], 0, s[{MK+2*i}:{MK+2*i+1}]')
    c = 0.25 * math.log2(math.e)
    a(f's_mov_b32 s{sC}, {f2u(c):#x}\ns_mov_b32 s{sNC}, {f2u(-c):#x}')
    def issue(srcv, sr, off, rows, rs):
        a(f's_add_u32 m0, s{sRB}, s{sSL}\ns_add_u32 s{sT}, s{sNX}, {off}')
        for cidx in range(4):
            if cidx: a(f's_add_u32 s{sT}, s{sT}, {(rows[cidx]-rows[cidx-1])*rs}\ns_add_u32 m0, m0, 1024')
            a(f'buffer_load_dwordx4 v{srcv}, {S(sr)}, s{sT} offen lds')
        a(f's_add_u32 s{sSL}, s{sSL}, 4096\ns_cmp_eq_u32 s{sSL}, 20480\ns_cselect_b32 s{sSL}, 0, s{sSL}')
    ROWS1, ROWS2 = [0, 4, 32, 36], [0, 16, 32, 48]
    def wread():
        a(f'v_add_u32 v{vTR}, s{sRS}, v{vTRb}')
        a(f's_add_u32 s{sRS}, s{sRS}, 4096\ns_cmp_eq_u32 s{sRS}, 20480\ns_cselect_b32 s{sRS}, 0, s{sRS}')
        for cidx in range(4):
            for t in range(2):
                rr = WF + 4*(2*(cidx >> 1) + t) + 2*(cidx & 1)
                a(f'ds_read_b64_tr_b16 v[{rr}:{rr+1}], v{vTR} offset:{cidx*1024 + t*32}')
    a(f's_lshl_b32 s{sNX}, s{sW}, 8\ns_mov_b32 s{sSL}, 0\ns_mov_b32 s{sRS}, 0')
    for m in range(3): issue(vS1, sWq, m*1024, ROWS1, 3072)
    a('s_waitcnt vmcnt(12)\ns_barrier')
    for hp in range(4):
        for i in range(0, 112, 2): a(f'v_mov_b64 v[{AQ+i}:{AQ+i+1}], 0')
        a(f's_mov_b32 s{sKB}, 0')
        lab = f'L_x_kb{hp}'
        a.label(lab)
        for half in range(2):
            a(f's_add_u32 s{sNX}, s{sNX}, {64*3072}')
            if half == 1:
                nxt = min(hp + 1, 3) * 64
                a(f's_lshl_b32 s{sT}, s{sW}, 8\ns_add_u32 s{sT}, s{sT}, {nxt}\ns_cmp_eq_u32 s{sKB}, 768\ns_cselect_b32 s{sNX}, s{sT}, s{sNX}')
            for ks in range(2):
                a(f'v_add_u32 v{vT}, s{sKB}, v{RB+2*half+ks}')
                for tile in range(4):
                    x = XF + 4*(5*ks + tile)
                    a(f'ds_read_b128 v[{x}:{x+3}], v{vT} offset:{tile*16384}')
                x = XF + 4*(5*ks + 4)
                a(f'v_add_u32 v{vT}, 0x10000, v{vT}\nds_read_b128 v[{x}:{x+3}], v{vT}')
            for m in range(3):
                a('s_waitcnt vmcnt(8)')
                wread()
                issue(vS1, sWq, m*1024, ROWS1, 3072)
                a('s_waitcnt lgkmcnt(0)')
                for ks in range(2):
                    for t in range(2):
                        w = WF + 4*(2*ks + t)
                        for tile in range(5):
                            if m == 0 and tile == 0: continue
                            x = XF + 4*(5*ks + tile)
                            d = (AQ + 4*(4*t + tile - 1)) if m == 0 else ((AK if m == 1 else AV) + 4*(5*t + tile))
                            if m < 2: a(f'v_mfma_f32_16x16x32_bf16 v[{d}:{d+3}], v[{w}:{w+3}], v[{x}:{x+3}], v[{d}:{d+3}]')
                            else:     a(f'v_mfma_f32_16x16x32_bf16 v[{d}:{d+3}], v[{x}:{x+3}], v[{w}:{w+3}], v[{d}:{d+3}]')
        a(f's_add_u32 s{sKB}, s{sKB}, 256\ns_cmp_lt_u32 s{sKB}, 1024\ns_cbranch_scc1 {lab}')
        a.flush(); a('s_nop 7')
        for base, nt in ((AQ, 8), (AK, 10), (AV, 10)):
            for tl in range(nt):
                a(f'v_cvt_pk_bf16_f32 v{base+2*tl}, v{base+4*tl}, v{base+4*tl+1}\nv_cvt_pk_bf16_f32 v{base+2*tl+1}, v{base+4*tl+2}, v{base+4*tl+3}')
        for t in range(2):
            for R in range(1, 5):
                q = AQ + 2*(4*t + R - 1)
                for tt in range(2):
                    k = AK + 2*(5*t + R - 1 + tt)
                    a(f'v_mfma_f32_16x16x16_bf16 v[{SC+4*tt}:{SC+4*tt+3}], v[{k}:{k+1}], v[{q}:{q+1}], 0')
                for x in range(8):
                    m = (44 + 2*x) if (R == 1 and x < 4) else MK + 2*x
                    a(f'v_cndmask_b32 v{SC+x}, v{vNEG}, v{SC+x}, s[{m}:{m+1}]')
                MX, t0 = TT, TT + 2
                def allg(op, src):
                    a(f'v_mov_b32 v{t0}, v{src}\nv_mov_b32 v{t0+1}, v{src}\nv_permlane32_swap_b32 v{t0}, v{t0+1}')
                    a(f'{op} v{t0+2}, v{t0}, v{t0+1}\n{op} v{t0+3}, v{t0}, v{t0+1}\nv_permlane16_swap_b32 v{t0+2}, v{t0+3}\n{op} v{t0}, v{t0+2}, v{t0+3}')
                a(f'v_max3_f32 v{MX}, v{SC}, v{SC+1}, v{SC+2}\nv_max3_f32 v{MX}, v{MX}, v{SC+3}, v{SC+4}\nv_max3_f32 v{MX}, v{MX}, v{SC+5}, v{SC+6}\nv_max_f32 v{MX}, v{MX}, v{SC+7}')
                allg('v_max_f32', MX)
                a(f'v_mul_f32 v{MX}, s{sNC}, v{t0}')
                for x in range(8): a(f'v_fma_f32 v{SC+x}, v{SC+x}, s{sC}, v{MX}')
                for x in range(8): a(f'v_exp_f32 v{SC+x}, v{SC+x}')
                for x in range(4): a(f'v_cvt_pk_bf16_f32 v{PK+x}, v{SC+2*x}, v{SC+2*x+1}')
                vv = AV + 2*(5*t + R - 1)
                a(f'v_add_f32 v{MX}, v{SC}, v{SC+1}\nv_add_f32 v{MX}, v{MX}, v{SC+2}')
                a(f'v_mfma_f32_16x16x32_bf16 v[{OC}:{OC+3}], v[{vv}:{vv+3}], v[{PK}:{PK+3}], 0')
                for x in range(3, 8): a(f'v_add_f32 v{MX}, v{MX}, v{SC+x}')
                allg('v_add_f32', MX)
                a(f'v_rcp_f32 v{t0}, v{t0}')
                for x in range(4): a(f'v_mul_f32 v{OC+x}, v{OC+x}, v{t0}')
                o = OFR + 4*(4*hp + R - 1) + 2*t
                a(f'v_cvt_pk_bf16_f32 v{o}, v{OC}, v{OC+1}\nv_cvt_pk_bf16_f32 v{o+1}, v{OC+2}, v{OC+3}')
    stamp(a, cfg, 1)
    a('s_waitcnt vmcnt(0)\ns_barrier')
    a(f's_lshl_b32 s{sNX}, s{sW}, 8\ns_mov_b32 s{sSL}, 0\ns_mov_b32 s{sRS}, 0')
    for cp in range(4): issue(vS2, sWo, cp*64, ROWS2, 1024)
    a(f's_lshl_b32 s{sT}, s{sW}, 14\nv_add_u32 v{vT}, s{sT}, v{vL16}')
    for f in range(16): a(f'ds_write_b128 v{vT}, v[{OFR+4*f}:{OFR+4*f+3}] offset:{f*1024}')
    OA = 72
    for i in range(0, 128, 2): a(f'v_mov_b64 v[{OA+i}:{OA+i+1}], 0') if OA + i < OFR else None
    a('s_waitcnt lgkmcnt(0)\ns_barrier')
    for i in range(OFR - OA, 128, 2): a(f'v_mov_b64 v[{OA+i}:{OA+i+1}], 0')
    a(f's_mov_b32 s{sKB}, 0')
    a('L_x_o:')
    a(f's_add_u32 s{sNX}, s{sNX}, 0x10000\ns_and_b32 s{sNX}, s{sNX}, 0x7ffff')
    a(f'v_add_u32 v{vT}, s{sKB}, v{vL16}')
    for f in range(8): a(f'ds_read_b128 v[{XF+4*f}:{XF+4*f+3}], v{vT} offset:{f*1024}')
    for cp in range(4):
        a('s_waitcnt vmcnt(12)')
        wread()
        issue(vS2, sWo, cp*64, ROWS2, 1024)
        a('s_waitcnt lgkmcnt(0)')
        for ks in range(2):
            for t in range(2):
                w = WF + 4*(2*ks + t)
                for R in range(4):
                    x = XF + 4*(4*ks + R); d = OA + 4*(4*(2*cp + t) + R)
                    a(f'v_mfma_f32_16x16x32_bf16 v[{d}:{d+3}], v[{w}:{w+3}], v[{x}:{x+3}], v[{d}:{d+3}]')
    a(f's_add_u32 s{sKB}, s{sKB}, 8192\ns_cmp_lt_u32 s{sKB}, 0x10000\ns_cbranch_scc1 L_x_o')
    a.flush(); a('s_nop 7')
    a(f's_lshl_b32 s{sT}, s{sIDX}, 17\ns_lshl_b32 s{sT2}, s{sW}, 8\ns_add_u32 s{sT}, s{sT}, s{sT2}')
    for R in range(4):
        for ct in range(8):
            d = OA + 4*(4*ct + R)
            a(f'v_cvt_pk_bf16_f32 v{d}, v{d}, v{d+1}\nv_cvt_pk_bf16_f32 v{d+1}, v{d+2}, v{d+3}')
            a(f'buffer_store_dwordx2 v[{d}:{d+1}], v{vOut}, {S(sOut)}, s{sT} offen offset:{ct*32}')
        a(f's_add_u32 s{sT}, s{sT}, 0x8000')
    a('s_waitcnt vmcnt(0)')
    stamp(a, cfg, 3)
```

```python
from gen import *
import struct, math
def f2u(x): return struct.unpack('<I', struct.pack('<f', x))[0]

def spin(a, name, srd, soff, target, vtmp, vzero, stmp, scnt, sleep=1):
    a(f's_mov_b32 s{scnt}, 0')
    a.label(name)
    a(f'buffer_load_dword v{vtmp}, v{vzero}, {S(srd)}, {soff} offen sc1\ns_waitcnt vmcnt(0)')
    a(f'v_readfirstlane_b32 s{stmp}, v{vtmp}')
    a(f's_cmp_ge_u32 s{stmp}, {target}\ns_cbranch_scc1 {name}_ok')
    a(f's_sleep {sleep}\ns_add_u32 s{scnt}, s{scnt}, 1\ns_cmp_lt_u32 s{scnt}, 0x400000\ns_cbranch_scc1 {name}')
    a('s_branch L_end')
    a.label(name + '_ok')

def role_att(a, cfg):
    a.comment('---- attention of the segment rows + output projection')
    vL16, vZ, vONE = 1, 6, 7
    vL8, vKa, vKb, vKr, vOut, vNEG, vRW, vRR, vT = 2, 3, 4, 5, 8, 9, 10, 11, 12
    QF, KF, VF, PB, KM = 16, 32, 64, 80, 96
    S0, S1, SMm = 112, 116, 120
    PP, PD, AC, OPK, TT = 124, 130, 136, 152, 160
    OB = 128
    OA = 112
    sJ = 52
    sT, sT2, sS, sB, sTq, sEH, sGD, sNEED, sCNT, sFC, sFA, sC, sNC, sO = range(53, 67)
    MK = 68
    DPP = 'row_mask:0xf bank_mask:0xf'
    srd(a, sR1, P(8), 4096*1024)
    srd(a, sR2, P(10), 2048*2048)
    a(f'v_lshrrev_b32 v{vT}, 1, v0\nv_lshlrev_b32 v{vT}, 10, v{vT}\nv_and_b32 v{vT+1}, 1, v0\nv_lshl_add_u32 v{vT}, v{vT+1}, 4, v{vT}')
    a(f's_lshl_b32 s{sT}, s{sW}, 20\ns_lshl_b32 s{sT2}, s{sIDX}, 5\ns_add_u32 s{sT}, s{sT}, s{sT2}\ns_lshl_b32 m0, s{sW}, 15')
    for i in range(32):
        a(f'buffer_load_dwordx4 v{vT}, {S(sR1)}, s{sT} offen lds')
        a(f's_add_u32 s{sT}, s{sT}, 0x8000\ns_add_u32 m0, m0, 1024')
    a(f's_lshl_b32 s{sT}, s{sW}, 15\nv_lshlrev_b32 v{vL8}, 3, v0\nv_add_u32 v{vL8}, s{sT}, v{vL8}')
    a(f's_and_b32 s{sTq}, s{sW}, 1\ns_lshr_b32 s{sEH}, s{sW}, 1')
    n, g, b4, b5 = vT+1, vT+2, vT+3, 112
    a(f'v_and_b32 v{n}, 15, v0\nv_lshrrev_b32 v{g}, 4, v0\nv_bfe_u32 v{b4}, v0, 4, 1\nv_bfe_u32 v{b5}, v0, 5, 1')
    PRIV = 131072
    a(f'v_lshlrev_b32 v{vKa}, 4, v{n}\nv_lshl_add_u32 v{vKa}, v{b5}, 8, v{vKa}\nv_lshl_add_u32 v{vKa}, v{b4}, 3, v{vKa}')
    a(f's_lshl_b32 s{sT}, s{sW}, 11\ns_add_u32 s{sT}, s{sT}, {PRIV}\ns_lshl_b32 s{sT2}, s{sEH}, 10\ns_add_u32 s{sT2}, s{sT2}, s{sT}')
    a(f'v_add_u32 v{vKa}, s{sT2}, v{vKa}\nv_xor_b32 v{vKb}, 1024, v{vKa}')
    a(f'v_lshrrev_b32 v113, 2, v0\nv_lshlrev_b32 v113, 4, v113\nv_and_b32 v114, 1, v0\nv_lshl_add_u32 v113, v114, 3, v113\nv_add_u32 v{vKr}, s{sT}, v113')
    a(f'v_lshlrev_b32 v{vOut}, 11, v{n}\nv_lshl_add_u32 v{vOut}, v{g}, 3, v{vOut}')
    a(f's_lshl_b32 s{sT}, s{sW}, 10\ns_add_u32 s{sT}, s{sT}, {PRIV+8192}\nv_add_u32 v{vRW}, s{sT}, v{vL16}')
    a(f's_lshl_b32 s{sT}, s{sTq}, 12\ns_add_u32 s{sT}, s{sT}, {PRIV+8192}\nv_add_u32 v{vRR}, s{sT}, v{vL16}')
    sc = 128 ** -0.5
    a(f'v_mov_b32 v{vNEG}, {f2u(-1e9/sc):#x}')
    a(f's_lshl_b32 s{sT}, s{sTq}, 4\nv_lshlrev_b32 v113, 2, v{g}\nv_sub_u32 v113, v{n}, v113\nv_add_u32 v113, s{sT}, v113')
    for Tk in range(2):
        for i in range(4):
            m = MK + 2*(4*Tk+i)
            a(f'v_cmp_gt_i32 s[{m}:{m+1}], {16*Tk+i}, v113')
    c = sc * math.log2(math.e)
    a(f's_mov_b32 s{sC}, {f2u(c):#x}\ns_mov_b32 s{sNC}, {f2u(-c):#x}')
    a(f's_lshl_b32 s{sT}, s{sIDX}, 7\ns_add_u32 s{sFC}, s{sT}, {FLG:#x}\ns_lshl_b32 s{sT}, s{sJ}, 7\ns_add_u32 s{sFA}, s{sT}, {FLG+4096:#x}')
    a(f's_mov_b32 s{sS}, s{sJ}\ns_mov_b32 s{sGD}, -1\ns_mov_b32 s{sNEED}, 32')
    for i in range(32):
        if i % 8 == 0: a(f's_waitcnt vmcnt({24 - i})')
        for t in range(2):
            a(f'ds_read_b64_tr_b16 a[{4*i+2*t}:{4*i+2*t+1}], v{vL8} offset:{i*1024 + t*512}')
    stamp(a, cfg, 4)
    a('L_a_loop:')
    a(f's_lshr_b32 s{sT}, s{sS}, 3\ns_cmp_eq_u32 s{sT}, s{sGD}\ns_cbranch_scc1 L_a_g')
    a(f's_mov_b32 s{sGD}, s{sT}\ns_lshl_b32 s{sB}, s{sT}, 2')
    spin(a, 'L_a_gw', sDBG, f's{sB}', 192, vT, vZ, sT2, sCNT, 4)
    a('L_a_g:')
    a(f's_lshl_b32 s{sB}, s{sS}, 5\ns_add_u32 s{sB}, s{sB}, s{sIDX}\ns_lshl_b32 s{sB}, s{sB}, 13')
    a(f's_lshl_b32 s{sT}, s{sTq}, 12\ns_add_u32 s{sT}, s{sT}, s{sB}')
    for u in range(4): a(f'buffer_load_dwordx4 v[{QF+4*u}:{QF+4*u+3}], v{vL16}, {S(sWS)}, s{sT} offen offset:{u*1024} sc1')
    for Tk in range(2):
        a(f's_add_u32 s{sT}, s{sB}, {KX + Tk*4096:#x}')
        for u in range(4): a(f'buffer_load_dwordx4 v[{KF+16*Tk+4*u}:{KF+16*Tk+4*u+3}], v{vL16}, {S(sWS)}, s{sT} offen offset:{u*1024} sc1')
    a(f's_lshl_b32 s{sT}, s{sEH}, 12\ns_add_u32 s{sT}, s{sT}, s{sB}\ns_add_u32 s{sT}, s{sT}, {VX:#x}')
    for u in range(4): a(f'buffer_load_dwordx4 v[{VF+4*u}:{VF+4*u+3}], v{vL16}, {S(sWS)}, s{sT} offen offset:{u*1024} sc1')
    a('s_waitcnt vmcnt(4)')
    for u in range(4):
        for Tk, d in ((0, S0), (1, S1)):
            cc = '0' if u == 0 else f'v[{d}:{d+3}]'
            a(f'v_mfma_f32_16x16x32_bf16 v[{d}:{d+3}], v[{KF+16*Tk+4*u}:{KF+16*Tk+4*u+3}], v[{QF+4*u}:{QF+4*u+3}], {cc}')
    for x in range(8):
        a(f'v_cndmask_b32 v{S0+x}, v{S0+x}, v{vNEG}, s[{MK+2*x}:{MK+2*x+1}]')
    MX = TT
    a(f'v_max3_f32 v{MX}, v{S0}, v{S0+1}, v{S0+2}\nv_max3_f32 v{MX}, v{MX}, v{S0+3}, v{S0+4}\nv_max3_f32 v{MX}, v{MX}, v{S0+5}, v{S0+6}\nv_max_f32 v{MX}, v{MX}, v{S0+7}')
    a(f'v_mov_b32 v{PD+1}, 0\nv_mov_b32 v{PD+2}, 0')
    a(f's_add_u32 s{sO}, s{sS}, 1')
    spin(a, 'L_a_cw', sWS, f's{sFC}', f's{sO}', vT, vZ, sT2, sCNT, 2)
    a(f's_lshl_b32 s{sT}, s{sEH}, 11\ns_add_u32 s{sT2}, s{sB}, {KVM:#x}\ns_add_u32 s{sO}, s{sT}, s{sT2}\ns_xor_b32 s{sT}, s{sT}, 2048\ns_add_u32 s{sT}, s{sT}, s{sT2}')
    for p in range(4):
        a(f'buffer_load_dwordx4 v[{PB+4*p}:{PB+4*p+3}], v{vL16}, {S(sWS)}, s{sO if p < 2 else sT} offen offset:{(p%2)*1024} sc1')
    for p in range(4):
        a(f's_waitcnt vmcnt({3-p})\nds_write_b64 v{vKa if p < 2 else vKb}, v[{PB+4*p}:{PB+4*p+1}] offset:{(p%2)*512}')
    for u in range(4):
        for t in range(2):
            a(f'ds_read_b64_tr_b16 v[{KM+4*u+2*t}:{KM+4*u+2*t+1}], v{vKr} offset:{u*512 + t*256}')
    for u in range(4):
        a(f's_waitcnt lgkmcnt({6-2*u})')
        cc = '0' if u == 0 else f'v[{SMm}:{SMm+3}]'
        a(f'v_mfma_f32_16x16x32_bf16 v[{SMm}:{SMm+3}], v[{KM+4*u}:{KM+4*u+3}], v[{QF+4*u}:{QF+4*u+3}], {cc}')
    for i in range(2): a(f'v_mov_b32_dpp v{SMm+i}, v{SMm+2+i} quad_perm:[0,1,2,3] row_mask:0xc bank_mask:0xf')
    t0 = TT + 2
    def allg(op, src):
        a(f'v_mov_b32 v{t0}, v{src}\nv_mov_b32 v{t0+1}, v{src}\nv_permlane32_swap_b32 v{t0}, v{t0+1}')
        a(f'{op} v{t0+2}, v{t0}, v{t0+1}\n{op} v{t0+3}, v{t0}, v{t0+1}\nv_permlane16_swap_b32 v{t0+2}, v{t0+3}\n{op} v{t0}, v{t0+2}, v{t0+3}')
    a(f'v_max3_f32 v{MX}, v{MX}, v{SMm}, v{SMm+1}')
    allg('v_max_f32', MX)
    a(f'v_mul_f32 v{MX}, s{sNC}, v{t0}')
    for x in range(10): a(f'v_fma_f32 v{S0+x}, v{S0+x}, s{sC}, v{MX}')
    for x in range(10): a(f'v_exp_f32 v{S0+x}, v{S0+x}')
    for i, x in enumerate((0, 2, 4, 6, 0, 2)): a(f'v_cvt_pk_bf16_f32 v{PP+i}, v{S0+x}, v{S0+x+1}')
    a(f'v_cvt_pk_bf16_f32 v{PD}, v{SMm}, v{SMm+1}\nv_cvt_pk_bf16_f32 v{PD+3}, v{SMm+1}, v{SMm}')
    for tau in range(4):
        pb = PP + 2*(tau & 1)
        a(f'v_mfma_f32_16x16x32_bf16 v[{AC+4*tau}:{AC+4*tau+3}], v[{VF+4*tau}:{VF+4*tau+3}], v[{pb}:{pb+3}], 0')
    for tau in range(4):
        vb = PB + 4*(tau >> 1) + 2; pd = PD + 2*(tau & 1)
        a(f'v_mfma_f32_16x16x16_bf16 v[{AC+4*tau}:{AC+4*tau+3}], v[{vb}:{vb+1}], v[{pd}:{pd+1}], v[{AC+4*tau}:{AC+4*tau+3}]')
    a(f'v_add_f32 v{MX}, v{S0}, v{S0+1}')
    for x in range(2, 10): a(f'v_add_f32 v{MX}, v{MX}, v{S0+x}')
    allg('v_add_f32', MX)
    a(f'v_rcp_f32 v{t0}, v{t0}')
    for x in range(16): a(f'v_mul_f32 v{AC+x}, v{AC+x}, v{t0}')
    for x in range(8): a(f'v_cvt_pk_bf16_f32 v{OPK+x}, v{AC+2*x}, v{AC+2*x+1}')
    a(f's_lshl_b32 s{sT}, s{sTq}, 12\ns_lshl_b32 s{sT2}, s{sEH}, 11\ns_add_u32 s{sT}, s{sT}, s{sT2}\ns_add_u32 s{sT}, s{sT}, s{sB}\ns_add_u32 s{sT}, s{sT}, {OX:#x}')
    for uu in range(2): a(f'buffer_store_dwordx4 v[{OPK+4*uu}:{OPK+4*uu+3}], v{vL16}, {S(sWS)}, s{sT} offen offset:{uu*1024} sc1')
    a('s_waitcnt vmcnt(0)\ns_barrier')
    a(f's_cmp_lg_u32 s{sW}, 0\ns_cbranch_scc1 L_a_nf')
    a(f's_mov_b64 exec, 1\nbuffer_atomic_add v{vONE}, v{vZ}, {S(sWS)}, s{sFA} offen sc1\ns_mov_b64 exec, -1')
    a('L_a_nf:')
    spin(a, 'L_a_ow', sWS, f's{sFA}', f's{sNEED}', vT, vZ, sT2, sCNT, 1)
    a(f's_lshl_b32 s{sO}, s{sS}, 18\ns_lshl_b32 s{sT}, s{sW}, 16\ns_add_u32 s{sO}, s{sO}, s{sT}\ns_add_u32 s{sO}, s{sO}, {OX:#x}')
    def ld(f):
        r = OB + 4*(f % 32)
        a(f'buffer_load_dwordx4 v[{r}:{r+3}], v{vL16}, {S(sWS)}, s{sO} offen offset:{(f%4)*1024} sc1')
        if f % 4 == 3: a(f's_add_u32 s{sO}, s{sO}, 4096')
    for f in range(32): ld(f)
    for grp in range(16):
        hh, T = grp // 2, grp % 2
        a(f's_waitcnt vmcnt({min(28, 60 - 4*grp)})')
        for u in range(4):
            f = 4*grp + u; r = OB + 4*(f % 32); wv = 4*(4*hh + u); d = OA + 8*T + 4*(u & 1)
            cc = '0' if hh == 0 and u < 2 else f'v[{d}:{d+3}]'
            a(f'v_mfma_f32_16x16x32_bf16 v[{d}:{d+3}], a[{wv}:{wv+3}], v[{r}:{r+3}], {cc}')
        if grp < 8:
            for u in range(4): ld(32 + 4*grp + u)
    for T in range(2):
        for i in range(4): a(f'v_add_f32 v{OA+8*T+i}, v{OA+8*T+i}, v{OA+8*T+4+i}')
        a(f'ds_write_b128 v{vRW}, v[{OA+8*T}:{OA+8*T+3}] offset:{T*4096}')
    a('s_waitcnt lgkmcnt(0)\ns_barrier')
    a(f's_cmp_ge_u32 s{sW}, 2\ns_cbranch_scc1 L_a_ns')
    for w in range(4): a(f'ds_read_b128 v[{OB+4*w}:{OB+4*w+3}], v{vRR} offset:{w*1024}')
    a(f's_lshl_b32 s{sT}, s{sS}, 16\ns_lshl_b32 s{sT2}, s{sTq}, 15\ns_add_u32 s{sT}, s{sT}, s{sT2}\ns_lshl_b32 s{sT2}, s{sIDX}, 5\ns_add_u32 s{sT}, s{sT}, s{sT2}')
    a('s_waitcnt lgkmcnt(0)')
    for i in range(4): a(f'v_add_f32 v{OB+i}, v{OB+i}, v{OB+4+i}\nv_add_f32 v{OB+8+i}, v{OB+8+i}, v{OB+12+i}')
    for i in range(4): a(f'v_add_f32 v{OB+i}, v{OB+i}, v{OB+8+i}')
    a(f'v_cvt_pk_bf16_f32 v{OB}, v{OB}, v{OB+1}\nv_cvt_pk_bf16_f32 v{OB+1}, v{OB+2}, v{OB+3}')
    a(f'buffer_store_dwordx2 v[{OB}:{OB+1}], v{vOut}, {S(sR2)}, s{sT} offen offset:1024')
    a('L_a_ns:')
    a(f's_add_u32 s{sNEED}, s{sNEED}, 32\ns_add_u32 s{sS}, s{sS}, 6\ns_cmp_lt_u32 s{sS}, 64')
    a.flush()
    a('s_cbranch_scc1 L_a_loop')
    stamp(a, cfg, 5)
```

```python
from gen import *
import struct, math

def f2u(x): return struct.unpack('<I', struct.pack('<f', x))[0]

L_MEM, L_KX, L_Q, L_CNT, L_O, L_LS, L_ES = 0, 8192, 16384, 20480, 21504, 24576, 81920
vL16, vTX, vMem, vMH1, vMH2, vKw, vPF, vOw, vPst, vMst, vIdx, SEL, VXF = 1, 2, 3, 4, 5, 6, 7, 8, 9, 10, 11, 12, 16
ES0 = 24
F0, F0R = 104, 112
AV, AK, AQ, PUB = 120, 124, 128, 132
FO = 24
KXF, QKF = 72, 104
SX, SX1, SM = 24, 28, 32
ACC0, ACC1, PF, PM = 96, 100, 124, 128
OUT, OF, LS0 = 104, 24, 40
RL, RDA = 112, 104
MA01 = F0
L_DUM = 23552
sT, sT2, sS, sMEM, sPART, sPART2, sRED, sMST, sKX, sVX, sPUB, sFL, sC, sNC, sSPIN, sG = range(52, 68)
sTAG, sXX, sPF, sM0K, sM0D, sRARE = 82, 83, 12, 13, 14, 15
sHW, sHR = 48, 49
HINT = MEMS + 0x8000

OORD = [('o',x,0) for x in range(4)] + [('o',2*z+p,sg) for z in range(2) for sg in range(1,4) for p in range(2)]
OTH = [(2*pr + h, rho) for pr in range(1, 4) for rho in range(2) for h in range(2)]
PORD = [(m,0,sl) for sl in range(2) for m in 'qkv'] + [(m,1,sl) for sl in range(2) for m in 'qkv']
PORD += [(m,rho,sl) for (sl,rho) in OTH for m in 'qk']
HELD = [('v',rho,sl) for (sl,rho) in OTH]
def blocks():
    loc = {}
    for i, b in enumerate(PORD[:10]): loc[b] = ('es', i)
    for i, b in enumerate(OORD[-7:]): loc[b] = ('ls', i)
    n = 0
    for b in PORD + HELD + OORD:
        if b in loc: continue
        loc[b] = ('a', 8*n) if n < 32 else ('v', 136 + 8*(n-32)); n += 1
    assert n == 47
    return loc
LOC = blocks()
def breg(b):
    k, i = LOC[b]
    if k == 'es': return 'v', ES0 + 8*i
    if k == 'ls': return 'v', LS0 + 8*i
    return k, i
def B8(b):
    k, i = breg(b); return f'{k}[{i}:{i+7}]'
def ldsaddr(off):
    if off < 65536 - 8192: return vMem, off
    if off < 65536: return vMem, off
    if off < 131072: return vMH1, off - 65536
    return vMH2, off - 131072
def ma(rho, slot):
    b = (F0R if rho else F0) + 4*slot if slot < 2 else FO + 4*OTH.index((slot, rho))
    return b
def smf(b):
    m, rho, slot = b
    acc = {'q': AQ, 'k': AK, 'v': AV}[m]
    f = ma(rho, slot)
    return f'v_smfmac_f32_16x16x64_bf16 v[{acc}:{acc+3}], v[{f}:{f+3}], {B8(b)}, v{vIdx}'
def stage_reads(kind, idxs):
    out = []
    for i in idxs:
        base, r0 = (L_ES, ES0) if kind == 'es' else (L_LS, LS0)
        for h in range(2):
            va, off = ldsaddr(base + i*8192 + h*1024)
            out.append(f'ds_read_b128 v[{r0+8*i+4*h}:{r0+8*i+4*h+3}], v{va} offset:{off}')
    return out
def weave(a, M, F, per=2, lead=0):
    F = list(F)
    for _ in range(lead):
        if F: a(F.pop(0))
    for m in M:
        a(m)
        for _ in range(per):
            if F: a(F.pop(0))
    for f in F: a(f)

def poll(a, name, issue, check, cnt=0):
    a(f's_mov_b32 s{sSPIN}, 0')
    a.label(name)
    for l in issue: a(l)
    a(f's_waitcnt vmcnt({cnt})')
    for l in check: a(l)
    a(f's_cbranch_vccz {name}_ok')
    a(f's_add_u32 s{sSPIN}, s{sSPIN}, 1\ns_cmp_lt_u32 s{sSPIN}, 0x200000\ns_cbranch_scc1 {name}')
    a('s_branch L_end')
    a.label(name + '_ok')

def wait_word(a, name, srd, soff, target, v=0, sleep=2):
    a(f's_mov_b32 s{sSPIN}, 0\nv_mov_b32 v{v+1}, 0')
    a.label(name)
    a(f'buffer_load_dword v{v}, v{v+1}, {S(srd)}, {soff} offen sc1\ns_waitcnt vmcnt(0)')
    a(f'v_readfirstlane_b32 s{sT2}, v{v}')
    a(f's_cmp_ge_u32 s{sT2}, {target}\ns_cbranch_scc1 {name}_ok')
    a(f's_sleep {sleep}\ns_add_u32 s{sSPIN}, s{sSPIN}, 1\ns_cmp_lt_u32 s{sSPIN}, 0x400000\ns_cbranch_scc1 {name}')
    a('s_branch L_end')
    a.label(name + '_ok')

VT = 36
KPK = [f'v_cvt_pk_bf16_f32 v{PUB}, v{AK}, v{AK+1}', f'v_cvt_pk_bf16_f32 v{PUB+1}, v{AK+2}, v{AK+3}']
VPK = [f'v_cvt_pk_bf16_f32 v{PUB+2}, v{AV}, v{AV+1}', f'v_cvt_pk_bf16_f32 v{VT}, v{AV+2}, v{AV+3}',
       f'v_cvt_pk_bf16_f32 v{VT+1}, v{AV+1}, v{AV}', f'v_cvt_pk_bf16_f32 v{PUB+3}, v{AV+3}, v{AV+2}',
       f'v_permlane32_swap_b32 v{PUB+2}, v{VT}', f'v_permlane32_swap_b32 v{VT+1}, v{PUB+3}']
RARE_AT = 32

def role_chain(a, cfg):
    a.comment('---- chain head')
    stamp(a, cfg, 0)
    vS1, vS2, vTR, vTR0, vTR1 = 104, 105, 106, 107, 108
    T = 110
    a(f'v_lshlrev_b32 v{vL16}, 4, v0\nv_lshlrev_b32 v{vPF}, 6, v0')
    a(f's_lshl_b32 s{sT}, s{sW}, 11\nv_add_u32 v{vMem}, s{sT}, v{vL16}')
    a(f'v_add_u32 v{vMH1}, 0x10000, v{vMem}\nv_add_u32 v{vMH2}, 0x20000, v{vMem}')
    a(f'v_and_b32 v{T}, 3, v0\nv_lshlrev_b32 v{T}, 4, v{T}')
    a(f'v_bfe_u32 v{T+1}, v0, 5, 1\nv_bfe_u32 v{T+2}, v0, 4, 1\nv_bfe_u32 v{T+3}, v0, 2, 1\nv_bfe_u32 v{T+4}, v0, 3, 1')
    a(f'v_lshl_add_u32 v{vS1}, v{T+1}, 16, v{T}\nv_lshl_add_u32 v{vS1}, v{T+2}, 14, v{vS1}')
    a(f'v_lshl_add_u32 v{vS1}, v{T+3}, 17, v{vS1}\nv_lshl_add_u32 v{vS1}, v{T+4}, 15, v{vS1}')
    a(f'v_lshl_add_u32 v{vS2}, v{T+2}, 14, v{T}\nv_lshl_add_u32 v{vS2}, v{T+1}, 12, v{vS2}')
    a(f'v_lshl_add_u32 v{vS2}, v{T+4}, 6, v{vS2}\nv_lshl_add_u32 v{vS2}, v{T+3}, 10, v{vS2}')
    a(f'v_lshrrev_b32 v{T+5}, 2, v0\nv_lshlrev_b32 v{T+5}, 6, v{T+5}\nv_lshrrev_b32 v{T+6}, 1, v{T}\nv_add_u32 v{T+5}, v{T+5}, v{T+6}')
    a(f's_mul_i32 s{sG}, s{sW}, 20480\nv_add_u32 v{vTR}, s{sG}, v{T+5}')
    a(f'v_lshl_add_u32 v{vTR0}, v{T+4}, 5, v{vTR}\nv_xor_b32 v{vTR1}, 128, v{vTR0}')
    sQ, sK, sV, sO = 68, 72, 76, sR1
    srd(a, sQ, P(5), 512*8192); srd(a, sK, P(6), 512*8192); srd(a, sV, P(7), 512*8192); srd(a, sO, P(8), 4096*1024)
    chunks = [(m, s) for s in range(8) for m in 'qk'] + [('v', s) for s in range(8)] + [('o', (sg, z)) for z in range(2) for sg in range(4)]
    sB1, sB2 = sKX, sVX
    a(f's_lshl_b32 s{sB1}, s{sIDX}, 8\ns_lshl_b32 s{sT}, s{sW}, 6\ns_add_u32 s{sB1}, s{sB1}, s{sT}')
    a(f's_lshl_b32 s{sB2}, s{sIDX}, 17\ns_lshl_b32 s{sT}, s{sW}, 8\ns_add_u32 s{sB2}, s{sB2}, s{sT}')
    a(f's_lshl_b32 s{sPUB}, s{sW}, 1')
    def issue(ci):
        m, x = chunks[ci]
        a(f's_add_u32 m0, s{sG}, {(ci % 5) * 4096}')
        if m != 'o':
            a(f's_xor_b32 s{sT}, s{sPUB}, {x}\ns_lshl_b32 s{sT}, s{sT}, 19\ns_add_u32 s{sT}, s{sT}, s{sB1}')
            rows = [32*(c>>1) + (c&1) for c in range(4)]; rs = 8192; vs = vS1; sr = {'q': sQ, 'k': sK, 'v': sV}[m]
        else:
            sg, z = x
            a(f's_xor_b32 s{sT}, s{sW}, {sg}\ns_lshl_b32 s{sT}, s{sT}, 15\ns_add_u32 s{sT}, s{sT}, s{sB2}')
            if z: a(f's_add_u32 s{sT}, s{sT}, 128')
            rows = [8*(c>>1) + 2*(c&1) for c in range(4)]; rs = 1024; vs = vS2; sr = sO
        for c in range(4):
            if c: a(f's_add_u32 s{sT}, s{sT}, {(rows[c]-rows[c-1])*rs}\ns_add_u32 m0, m0, 1024')
            a(f'buffer_load_dwordx4 v{vs}, {S(sr)}, s{sT} offen lds')
    for ci in range(4): issue(ci)
    a(f'v_and_b32 v{T}, 15, v0\nv_lshrrev_b32 v{T+1}, 4, v0')
    a(f's_lshl_b32 s{sT}, s{sW}, 10')
    a(f'v_bfe_u32 v{T+3}, v0, 4, 1\nv_bfe_u32 v{T+4}, v0, 5, 1')
    a(f'v_bfe_u32 v{T+2}, v0, 2, 1\nv_xor_b32 v{T+2}, v{T+2}, v{T+3}\nv_lshlrev_b32 v{T+2}, 4, v{T+2}')
    a(f'v_lshl_add_u32 v{vKw}, v{T}, 5, v{T+2}\nv_lshl_add_u32 v{vKw}, v{T+4}, 9, v{vKw}\nv_add_u32 v{vKw}, s{sT}, v{vKw}')
    a(f'v_and_b32 v{T+2}, 1, v0\nv_xor_b32 v{T+2}, v{T+2}, v{T+3}\nv_lshlrev_b32 v{T+2}, 4, v{T+2}\nv_bfe_u32 v{T+5}, v0, 1, 1\nv_lshl_add_u32 v{T+2}, v{T+5}, 3, v{T+2}')
    a(f'v_lshrrev_b32 v{T+5}, 2, v0\nv_lshl_add_u32 v{vTX}, v{T+5}, 5, v{T+2}')
    a(f'v_and_b32 v{T+5}, 7, v0\nv_bfe_u32 v{T+6}, v0, 3, 1\nv_lshlrev_b32 v{vOw}, 7, v{T+1}\nv_lshl_add_u32 v{vOw}, v{T+5}, 4, v{vOw}\nv_lshl_add_u32 v{vOw}, v{T+6}, 3, v{vOw}')
    a(f's_lshl_b32 s{sT}, s{sW}, 9\nv_add_u32 v{vOw}, s{sT}, v{vOw}')
    a(f'v_bfe_u32 v{T+5}, v0, 2, 2\nv_and_b32 v{T+6}, 3, v0')
    a(f'v_lshlrev_b32 v{vPst}, 4, v{T+6}\nv_lshl_add_u32 v{vPst}, v{T+3}, 11, v{vPst}\nv_lshl_add_u32 v{vPst}, v{T+5}, 12, v{vPst}\nv_lshl_add_u32 v{vPst}, v{T+4}, 14, v{vPst}')
    a(f's_lshl_b32 s{sT}, s{sW}, 16\ns_lshl_b32 s{sT2}, s{sIDX}, 6\ns_add_u32 s{sT}, s{sT}, s{sT2}\nv_add_u32 v{vPst}, s{sT}, v{vPst}')
    a(f'v_lshlrev_b32 v{vMst}, 2, v{T+6}\nv_lshl_add_u32 v{vMst}, v{T+3}, 5, v{vMst}\nv_lshl_add_u32 v{vMst}, v{T+4}, 4, v{vMst}')
    a(f'v_mov_b32 v{vIdx}, 0x4444\nv_mov_b32 v{T+7}, 0xeeee\nv_cmp_lt_u32 vcc, 7, v{T}\nv_cndmask_b32 v{vIdx}, v{vIdx}, v{T+7}, vcc')
    a(f'v_and_b32 v{T+7}, 1, v0\nv_lshlrev_b32 v{T+7}, 4, v{T+7}\nv_mov_b32 v{T+8}, 0x3f80\nv_lshlrev_b32 v{T+7}, v{T+7}, v{T+8}')
    a(f'v_and_b32 v{T+8}, 6, v0')
    a(f'v_cmp_eq_u32 vcc, 0, v{T+8}\nv_cndmask_b32 v{SEL}, 0, v{T+7}, vcc\nv_cndmask_b32 v{SEL+2}, 0, v{T+7}, vcc')
    a(f'v_cmp_eq_u32 vcc, 4, v{T+8}\nv_cndmask_b32 v{SEL+1}, 0, v{T+7}, vcc\nv_cndmask_b32 v{SEL+3}, 0, v{T+7}, vcc')
    a(f's_lshl_b32 s{sT}, s{sIDX}, 2\ns_add_u32 s{sT}, s{sT}, s{sW}')
    a(f's_lshl_b32 s{sRED}, s{sT}, 11\ns_add_u32 s{sRED}, s{sRED}, {PART:#x}\ns_lshl_b32 s{sMST}, s{sT}, 6\ns_add_u32 s{sMST}, s{sMST}, {MEMS:#x}')
    a(f's_mov_b32 s{sMEM}, {MEMS:#x}\ns_mov_b32 s{sPART}, {PART:#x}\ns_mov_b32 s{sPART2}, {PART+0x8000:#x}')
    srd(a, sR2, P(4), 8192)
    a(f's_lshr_b32 s{sT2}, s{sT}, 3\ns_lshl_b32 s{sT2}, s{sT2}, 6')
    a(f's_bfe_u32 s{sS}, s{sT}, 0x20001\ns_lshl_b32 s{sS}, s{sS}, 3\ns_add_u32 s{sT2}, s{sT2}, s{sS}')
    a(f's_and_b32 s{sS}, s{sT}, 1\ns_lshl_b32 s{sS}, s{sS}, 12\ns_add_u32 s{sT2}, s{sT2}, s{sS}')
    a(f'v_lshlrev_b32 v{T+7}, 1, v{T+6}\nv_lshl_add_u32 v{T+7}, v{T+3}, 11, v{T+7}\nv_lshl_add_u32 v{T+7}, v{T+4}, 10, v{T+7}')
    a(f'buffer_load_ushort v{T+8}, v{T+7}, {S(sR2)}, s{sT2} offen\nbuffer_load_ushort v{T+9}, v{T+7}, {S(sR2)}, s{sT2} offen offset:32')
    for i in range(4): a(f'v_mov_b32 v{T+10+i}, -1')
    for z in range(2):
        a(f'buffer_store_dwordx4 v[{T+10}:{T+13}], v{vPst}, {S(sWS)}, s{sPART2 if z else sPART} offen sc1')
    a('s_waitcnt vmcnt(2)')
    a(f'v_lshl_or_b32 v{T+8}, v{T+9}, 16, v{T+8}\nv_min_u32 v{T+8}, -2, v{T+8}')
    a(f's_mov_b32 exec_lo, 0x000f000f\ns_mov_b32 exec_hi, 0x000f000f')
    a(f'buffer_store_dword v{T+8}, v{vMst}, {S(sWS)}, s{sMST} offen sc1')
    a(f's_add_u32 s{sS}, s{sMST}, 0x2000\nbuffer_store_dword v{T+10}, v{vMst}, {S(sWS)}, s{sS} offen sc1')
    a(f's_lshl_b32 s{sHR}, s{sW}, 8\ns_add_u32 s{sHR}, s{sHR}, {HINT:#x}\ns_lshl_b32 s{sHW}, s{sIDX}, 2\ns_add_u32 s{sHW}, s{sHW}, s{sHR}')
    a(f's_mov_b64 exec, 1\nbuffer_store_dword v{T+10}, off, {S(sWS)}, s{sHW} sc1')
    a('s_mov_b64 exec, -1')
    a('s_waitcnt vmcnt(0)\ns_barrier')
    a(f's_getreg_b32 s{sT}, hwreg(HW_REG_XCC_ID)\ns_and_b32 s{sT}, s{sT}, 0xf\ns_add_u32 s{sT}, s{sT}, 1')
    a(f's_lshl_b32 s{sT2}, s{sIDX}, 2\nv_mov_b32 v{T}, s{sT}\nv_mov_b32 v{T+1}, 0')
    a(f's_cmp_lg_u32 s{sW}, 0\ns_cbranch_scc1 L_c_noid')
    a(f's_mov_b64 exec, 1\nbuffer_store_dword v{T}, v{T+1}, {S(sDBG)}, s{sT2} offen offset:128 sc1\ns_mov_b64 exec, -1')
    a('L_c_noid:')
    TMP = 112
    n = len(chunks)
    for ci in range(n):
        if ci + 4 < n: issue(ci + 4)
        a(f's_waitcnt vmcnt({4*min(4, n-1-ci)})')
        m, x = chunks[ci]
        bl = [(m, t, x) for t in range(2)] if m != 'o' else [('o', 2*x[1]+t, x[0]) for t in range(2)]
        post = []
        for t, b in enumerate(bl):
            k, i = LOC[b]
            if k == 'es': k, r0 = 'v', TMP + 8*t; post.append((i, r0))
            elif k == 'ls': k, r0 = 'v', 24 + 8*i
            else: r0 = i
            for c in range(4):
                if m == 'o': a(f'ds_read_b64_tr_b16 {k}[{r0+2*c}:{r0+2*c+1}], v{vTR} offset:{(ci%5)*4096 + c*1024 + t*32}')
                else: a(f'ds_read_b64_tr_b16 {k}[{r0+2*c}:{r0+2*c+1}], v{vTR1 if t else vTR0} offset:{(ci%5)*4096 + c*1024}')
        a('s_waitcnt lgkmcnt(0)')
        for i, r0 in post:
            for h in range(2):
                va, off = ldsaddr(L_ES + i*8192 + h*1024)
                a(f'ds_write_b128 v{va}, v[{r0+4*h}:{r0+4*h+3}] offset:{off}')
        if post: a('s_waitcnt lgkmcnt(0)')
    a('s_barrier')
    stamp(a, cfg, 1)
    for i in range(7):
        for h in range(2):
            va, off = ldsaddr(L_LS + i*8192 + h*1024)
            a(f'ds_write_b128 v{va}, v[{24+8*i+4*h}:{24+8*i+4*h+3}] offset:{off}')
    a('s_waitcnt lgkmcnt(0)')
    for l in stage_reads('es', range(10)): a(l)
    c = (128 ** -0.5) * math.log2(math.e)
    a(f's_mov_b32 s{sC}, {f2u(c):#x}\ns_mov_b32 s{sNC}, {f2u(-c):#x}')
    a(f's_lshl_b32 s{sT}, s{sIDX}, 13')
    a(f's_add_u32 s{sKX}, s{sT}, {KX:#x}\ns_add_u32 s{sVX}, s{sT}, {VX:#x}\ns_add_u32 s{sPUB}, s{sT}, {KVM-0x40000:#x}')
    a(f's_lshl_b32 s{sT}, s{sW}, 10\ns_add_u32 s{sPUB}, s{sPUB}, s{sT}')
    a(f's_lshl_b32 s{sT}, s{sIDX}, 7\ns_add_u32 s{sFL}, s{sT}, {FLG:#x}')
    a(f's_mov_b32 s{sS}, 0\ns_mov_b32 s{sTAG}, 0')
    a(f's_mov_b32 s{sSPIN}, 0\nv_and_b32 v{RL+1}, 31, v0\nv_lshlrev_b32 v{RL+1}, 2, v{RL+1}')
    a('L_c_ids:')
    a(f'buffer_load_dword v{RL}, v{RL+1}, {S(sDBG)}, 0 offen offset:128 sc1\ns_waitcnt vmcnt(0)')
    a(f'v_cmp_eq_u32 vcc, 0, v{RL}\ns_cbranch_vccz L_c_ids_ok')
    a(f's_sleep 2\ns_add_u32 s{sSPIN}, s{sSPIN}, 1\ns_cmp_lt_u32 s{sSPIN}, 0x400000\ns_cbranch_scc1 L_c_ids\ns_branch L_end')
    a('L_c_ids_ok:')
    a(f'v_readfirstlane_b32 s{sG}, v{RL}')
    a(f'v_cmp_ne_u32 s[80:81], s{sG}, v{RL}')
    wait_word(a, 'L_c_g0', sDBG, 0, 192, v=RL+2)
    a(f's_lshl_b32 s{sT}, s{sW}, 11\ns_add_u32 s{sM0K}, s{sT}, {L_KX}\ns_lshl_b32 s{sT}, s{sW}, 8\ns_add_u32 s{sM0D}, s{sT}, {L_DUM}')
    a(f's_bitcmp1_b32 s{sW}, 0\ns_cselect_b32 s{sPF}, s{sVX}, s{sKX}\ns_lshr_b32 s{sT2}, s{sW}, 1\ns_lshl_b32 s{sT2}, s{sT2}, 12\ns_add_u32 s{sPF}, s{sPF}, s{sT2}\ns_add_u32 s{sPF}, s{sPF}, 0x40000')
    kxdma = [f's_mov_b32 m0, s{sM0K}',
             f'buffer_load_dwordx4 v{vMem}, {S(sWS)}, s{sKX} offen sc1 lds',
             f'buffer_load_dwordx4 v{vMem}, {S(sWS)}, s{sKX} offen offset:1024 sc1 lds',
             f's_add_u32 s{sKX}, s{sKX}, 0x40000']
    vxld = [f'buffer_load_dwordx4 v[{VXF}:{VXF+3}], v{vMem}, {S(sWS)}, s{sVX} offen sc1',
            f'buffer_load_dwordx4 v[{VXF+4}:{VXF+7}], v{vMem}, {S(sWS)}, s{sVX} offen offset:1024 sc1',
            f's_add_u32 s{sVX}, s{sVX}, 0x40000']
    for l in kxdma + vxld: a(l)
    a(f's_mov_b32 m0, s{sM0D}\ns_mov_b32 s{sRARE}, 0')
    for i in range(16): a(f'v_mov_b32 v{AV+i}, 0')
    stamp(a, cfg, 2)
    if cfg.stamps: a('s_memtime s[92:93]')
    if cfg.prof:
        for i in range(12): a(f's_mov_b32 s{68+i}, 0')
    a('s_waitcnt lgkmcnt(0)')
    a('s_cmp_lg_u64 s[80:81], 0\ns_cbranch_scc1 L_cs_step')
    a('s_branch L_cs_step' if cfg.force_slow else 's_branch L_cf_step')
    for pre, sc in (('L_cf', ''), ('L_cs', ' sc1')):
        step_loop(a, cfg, pre, sc, kxdma, vxld)
    a('L_c_last:')
    a(f's_add_u32 s{sPUB}, s{sPUB}, 0x40000\ns_waitcnt lgkmcnt(0)')
    for b in PORD[RARE_AT:] + HELD:
        if b[0] != 'q': a(smf(b))
    for l in KPK + VPK: a(l)
    a(f'buffer_store_dwordx4 v[{PUB}:{PUB+3}], v{vL16}, {S(sWS)}, s{sPUB} offen sc1')
    a('s_waitcnt vmcnt(0)\ns_barrier')
    a(f's_cmp_lg_u32 s{sW}, 0\ns_cbranch_scc1 L_c_done')
    a(f'v_mov_b32 v24, 64\nv_mov_b32 v25, 0\ns_mov_b64 exec, 1\nbuffer_store_dword v24, v25, {S(sWS)}, s{sFL} offen sc1\ns_mov_b64 exec, -1')
    a('L_c_done:')
    stamp(a, cfg, 3)
    if cfg.stamps: a('s_memtime s[94:95]')
    if cfg.prof:
        a(f's_lshl_b32 s{sT}, s{sIDX}, 2\ns_add_u32 s{sT}, s{sT}, s{sW}\ns_lshl_b32 s{sT}, s{sT}, 6\ns_add_u32 s{sT}, s{sT}, {TS+0x8000:#x}\nv_mov_b32 v25, 0')
        for i in range(12):
            a(f'v_mov_b32 v24, s{68+i}\nbuffer_store_dword v24, v25, {S(sWS)}, s{sT} offen offset:{4*i}')

def step_loop(a, cfg, pre, sc, kxdma, vxld):
    cnt = [0]
    PAIRS = list(range(16, 42, 2)) + list(range(68, 80, 2))
    def ts(trace_only=False):
        if (cfg.prof and not trace_only) or cfg.trace:
            p = PAIRS[cnt[0]]
            a(f'{"s_memrealtime" if cfg.trace else "s_memtime"} s[{p}:{p+1}]'); cnt[0] += 1
    DPP = 'row_mask:0xf bank_mask:0xf'
    LO, HI = 'row_mask:0xf bank_mask:0x3', 'row_mask:0xf bank_mask:0xc'
    idn = 'quad_perm:[0,1,2,3]'
    def warm(n):
        for i in range(n): a('v_mov_b32 v0, v0\ns_nop 1')
    def retry(name, back, extra=''):
        a.label(name)
        if extra: a(extra)
        if cfg.prof: a(f's_add_u32 s{79 if "pp" in name else 78}, s{79 if "pp" in name else 78}, 63')
        a(f's_add_u32 s{sSPIN}, s{sSPIN}, 1\ns_cmp_lt_u32 s{sSPIN}, 0x400000\ns_cbranch_scc1 {back}\ns_branch L_end')
    retry(pre + '_pm_retry', pre + '_pm')
    pp = [f'buffer_load_dwordx4 v[{RL}:{RL+3}], v{vL16}, {S(sWS)}, s{sRED} offen sc1',
          f'buffer_load_dwordx4 v[{RL+4}:{RL+7}], v{vL16}, {S(sWS)}, s{sRED} offen offset:1024 sc1']
    retry(pre + '_pp_retry', pre + '_pp', f'{pp[0]}\n{pp[1]}\ns_nop 7\nv_mov_b64 v[{RDA}:{RDA+1}], 0\nv_mov_b64 v[{RDA+2}:{RDA+3}], 0')
    a.label(pre + '_rare')
    a(f's_cmp_lg_u32 s{sW}, 0\ns_cbranch_scc1 {pre}_nofl')
    a(f's_sub_u32 s{sT}, s{sS}, 1')
    a(f'v_mov_b32 v{F0}, s{sT}\nv_mov_b32 v0, 0\ns_mov_b64 exec, 1\nbuffer_store_dword v{F0}, v0, {S(sWS)}, s{sFL} offen sc1\ns_mov_b64 exec, -1')
    if cfg.clk:
        a(f's_memrealtime s[16:17]\ns_memtime s[18:19]\ns_waitcnt lgkmcnt(0)\nv_mov_b32 v{F0}, s16\nv_mov_b32 v{F0+1}, s18')
        a(f's_lshl_b32 s{sT}, s{sIDX}, 7\ns_lshl_b32 s{sT2}, s{sS}, 1\ns_and_b32 s{sT2}, s{sT2}, 0x78\ns_add_u32 s{sT}, s{sT}, s{sT2}\ns_add_u32 s{sT}, s{sT}, {TS+0x8000:#x}')
        a(f's_mov_b64 exec, 1\nbuffer_store_dwordx2 v[{F0}:{F0+1}], v0, {S(sWS)}, s{sT} offen\ns_mov_b64 exec, -1')
    a.label(pre + '_nofl')
    a(f's_cmp_eq_u32 s{sS}, 63\ns_cbranch_scc1 L_c_last')
    a(f's_add_u32 s{sT}, s{sS}, 5\ns_lshr_b32 s{sT}, s{sT}, 3\ns_lshl_b32 s{sG}, s{sT}, 2\ns_add_u32 m0, s{sM0D}, {L_CNT - L_DUM}\nv_mov_b32 v0, 0')
    a(f'buffer_load_dword v0, {S(sDBG)}, s{sG} offen sc1 lds')
    a(f's_branch {pre}_rare_done')

    a.label(pre + '_step')
    ts()
    pm = [f'buffer_load_dwordx4 v[{MA01}:{MA01+3}], v{vMem}, {S(sWS)}, s{sMEM} offen sc1',
          f'buffer_load_dwordx4 v[{MA01+4}:{MA01+7}], v{vMem}, {S(sWS)}, s{sMEM} offen offset:1024 sc1']
    for _ in range(cfg.np2 - 1):
        a(pm[0]); a(pm[1])
        for _ in range(cfg.sp2): a('s_nop 3')
    a.label(pre + '_pm')
    a(pm[0]); a(pm[1])
    warm(cfg.wm2)
    a(f'v_xor_b32 v0, 128, v{vMem}')
    a(f's_waitcnt vmcnt(1)\nds_write_b128 v{vMem}, v[{F0}:{F0+3}] offset:{L_MEM}')
    a(f's_waitcnt vmcnt(0)\nds_write_b128 v{vMem}, v[{F0+4}:{F0+7}] offset:{L_MEM+1024}')
    a(f'ds_read_b128 v[{F0R}:{F0R+3}], v0 offset:{L_MEM}\nds_read_b128 v[{F0R+4}:{F0R+7}], v0 offset:{L_MEM+1024}')
    a(f'v_max_u32 v0, v{F0}, v{F0+4}\nv_cmp_eq_u32 vcc, -1, v0\ns_cbranch_vccnz {pre}_pm_retry')
    ts()
    PM_ = [smf(b) for b in PORD]
    for m in PM_[:5]: a(m)
    a(f'v_xor_b32 v0, 2048, v{vMem}')
    a(PM_[5])
    a('s_waitcnt lgkmcnt(2)\ns_barrier')
    ts()
    R = []
    for f, (sl, rho) in enumerate(OTH):
        if f and f % 2 == 0: R.append(f'v_xor_b32 v0, {(sl//2)*2048 + rho*128}, v{vMem}')
        R.append(f'ds_read_b128 v[{FO+4*f}:{FO+4*f+3}], v0 offset:{L_MEM + (sl%2)*1024}')
    kxr = [f'ds_read_b128 v[{KXF+4*(2*u+T)}:{KXF+4*(2*u+T)+3}], v{vL16} offset:{L_KX + (T*4+u)*1024}' for u in range(4) for T in range(2)]
    side = []
    if not cfg.x_nopf: side.append(f'buffer_load_dword v{vPF}, {S(sWS)}, s{sPF} offen sc1 lds')
    if not cfg.x_nopub: side.append(f'buffer_store_dwordx4 v[{PUB}:{PUB+3}], v{vL16}, {S(sWS)}, s{sPUB} offen sc1')
    fill = R + kxr + side
    a(fill.pop(0)); a(fill.pop(0)); a('s_waitcnt lgkmcnt(2)')
    issued = 2
    for i in range(6, len(PORD)):
        m, rho, sl = PORD[i]
        waited = False
        if sl >= 2:
            f = OTH.index((sl, rho))
            if m == 'q' and f % 2 == 0:
                assert f + 1 < issued
                a(f's_waitcnt lgkmcnt({min(15, issued - f - 2)})')
        if i == RARE_AT:
            assert not fill
            a(f's_cmp_eq_u32 s{sRARE}, 3\ns_cbranch_scc1 {pre}_rare')
            a.label(pre + '_rare_done')
        a(PM_[i])
        if i == 11 or i == 23: ts()
        if fill:
            l = fill.pop(0); a(l)
            if l.startswith('ds_read'): issued += 1
    ts()
    HM = [smf(b) for b in HELD]
    h1, h2 = cfg.h1, cfg.h2
    for m in HM[:h1]: a(m); a('s_nop 0')
    a(f'v_cvt_pk_bf16_f32 v{AQ+3}, v{AQ+2}, v{AQ+3}\nv_cvt_pk_bf16_f32 v{AQ+2}, v{AQ}, v{AQ+1}')
    a(KPK[0]); a(KPK[1])
    a(f'ds_write_b128 v{vKw}, v[{AQ+2}:{AQ+5}] offset:{L_Q}')
    for m in HM[h1:h2]: a(m)
    a(kxdma[0])
    a('s_waitcnt lgkmcnt(0)\ns_barrier')
    ts()
    qr = [f'ds_read_b64_tr_b16 v[{QKF+4*u+2*t}:{QKF+4*u+2*t+1}], v{vTX} offset:{L_Q + u*1024 + t*512}' for u in range(4) for t in range(2)]
    weave(a, HM[h2:], qr, 2, lead=2)
    SXM = []
    for u in range(4):
        for T in range(2):
            d = SX1 if T else SX
            cc = '0' if u == 0 else f'v[{d}:{d+3}]'
            kb = KXF + 4*(2*u+T)
            SXM.append(f'v_mfma_f32_16x16x32_bf16 v[{d}:{d+3}], v[{kb}:{kb+3}], v[{QKF+4*u}:{QKF+4*u+3}], {cc}')
    SMM = []
    for u in range(4):
        cc = '0' if u == 0 else f'v[{SM}:{SM+3}]'
        SMM.append(f'v_mfma_f32_16x16x32_bf16 v[{SM}:{SM+3}], v[{QKF+4*u}:{QKF+4*u+3}], v[{QKF+4*u}:{QKF+4*u+3}], {cc}')
    LSR = stage_reads('ls', range(7))
    kd = [] if cfg.x_nokv or cfg.kdpos != 0 else [kxdma[1], kxdma[2]]
    a('s_waitcnt lgkmcnt(4)'); a(SXM[0]); a(f'v_mov_b32 v{PM+1}, 0'); a(f'v_mov_b32 v{PM+2}, 0'); a(SXM[1])
    if kd: a(kd[0])
    a(SXM[2])
    if kd: a(kd[1])
    a(SXM[3]); a('s_waitcnt lgkmcnt(0)')
    a(SXM[4]); a(LSR[0]); a(VPK[0]); a(SXM[5]); a(LSR[1]); a(VPK[1]); a(SXM[6]); a(LSR[2]); a(VPK[2]); a(SXM[7]); a(LSR[3]); a(VPK[3])
    X = SX
    C = [f'v_mov_b32_dpp v{X+i}, v{SX1+i} row_ror:8 {HI}' for i in range(4)]
    a(SMM[0]); a(VPK[4]); a(SMM[1]); a(VPK[5]); a(SMM[2]); a(LSR[4]); a(C[0]); a(SMM[3])
    ts()
    t0 = SX1
    MX, NM, LX, Y = 38, 39, 36, SM + 2
    ZO = [f'v_mov_b64 v[{OUT+i}:{OUT+i+1}], 0' for i in range(0, 16, 2)]
    a(C[1]); a(C[2]); a(C[3]); a(LSR[5])
    a(f'v_max3_f32 v{MX}, v{X}, v{X+1}, v{X+2}')
    a(ZO[0]); a(ZO[1]); a(ZO[2])
    a(f'v_mov_b32_dpp v{SM}, v{SM+1} row_ror:8 {HI}\nv_mov_b32_dpp v{SM+2}, v{SM+3} row_ror:8 {HI}')
    a(ZO[3]); a(ZO[4])
    a(f'v_permlane32_swap_b32 v{SM}, v{SM+2}')
    a(f'v_max3_f32 v{MX}, v{MX}, v{X+3}, v{Y}')
    a(ZO[5]); a(ZO[6])
    a(f'v_max_f32_dpp v{t0}, v{MX}, v{MX} row_ror:8 {DPP}\nv_max_f32_dpp v{t0+1}, v{MX}, v{MX} row_ror:8 {DPP}')
    a(ZO[7]); a(f'v_and_b32 v0, -9, v{vOw}')
    a(f'v_permlane32_swap_b32 v{t0}, v{t0+1}')
    a(f'v_max_f32 v{t0+2}, v{t0}, v{t0+1}\nv_max_f32 v{t0+3}, v{t0}, v{t0+1}')
    OA = 120
    a(f'v_xor_b32 v{OA+1}, 512, v0\nv_xor_b32 v{OA+2}, 1024, v0')
    a(f'v_permlane16_swap_b32 v{t0+2}, v{t0+3}')
    a(f'v_max_f32 v{t0}, v{t0+2}, v{t0+3}\nv_mul_f32 v{NM}, s{sNC}, v{t0}')
    E = (X, X+1, X+2, X+3, Y)
    for r in E: a(f'v_fma_f32 v{r}, v{r}, s{sC}, v{NM}')
    for r in E: a(f'v_exp_f32 v{r}, v{r}')
    a(f'v_cvt_pk_bf16_f32 v{PF}, v{X}, v{X+1}\nv_cvt_pk_bf16_f32 v{PF+1}, v{X+2}, v{X+3}')
    a(f'v_mov_b32_dpp v{t0}, v{Y} row_ror:8 {DPP}')
    a(f'v_mov_b32_dpp v{PF+2}, v{PF} row_ror:8 {DPP}\nv_mov_b32_dpp v{PF+3}, v{PF+1} row_ror:8 {DPP}')
    a(f'v_cvt_pk_bf16_f32 v{PM}, v{Y}, v{t0}\nv_cvt_pk_bf16_f32 v{PM+3}, v{Y}, v{t0}')
    a(f'v_mfma_f32_16x16x32_bf16 v[{ACC0}:{ACC0+3}], v[{VXF}:{VXF+3}], v[{PF}:{PF+3}], 0')
    a(f'v_add_f32 v{LX}, v{X}, v{X+1}\nv_add_f32 v{NM}, v{X+2}, v{X+3}')
    a(f'v_mfma_f32_16x16x32_bf16 v[{ACC1}:{ACC1+3}], v[{VXF+4}:{VXF+7}], v[{PF}:{PF+3}], 0')
    a(f'v_add_f32 v{LX}, v{LX}, v{Y}\nv_add_f32 v{LX}, v{LX}, v{NM}')
    a(f'v_mfma_f32_16x16x16_bf16 v[{ACC0}:{ACC0+3}], v[{PUB+2}:{PUB+3}], v[{PM}:{PM+1}], v[{ACC0}:{ACC0+3}]')
    a(f'v_xor_b32 v{OA+3}, 1536, v0')
    a(f'v_add_f32_dpp v{t0}, v{LX}, v{LX} row_ror:8 {DPP}')
    a(f'v_add_f32_dpp v{t0+1}, v{LX}, v{LX} row_ror:8 {DPP}')
    a(f'v_mfma_f32_16x16x16_bf16 v[{ACC1}:{ACC1+3}], v[{PUB+2}:{PUB+3}], v[{PM+2}:{PM+3}], v[{ACC1}:{ACC1+3}]')
    if not cfg.x_nokv: a(vxld[0])
    a(f'v_permlane32_swap_b32 v{t0}, v{t0+1}')
    a(f'v_add_f32 v{t0+2}, v{t0}, v{t0+1}\nv_add_f32 v{t0+3}, v{t0}, v{t0+1}')
    a(LSR[6]); a(LSR[7])
    a(f'v_permlane16_swap_b32 v{t0+2}, v{t0+3}')
    a(f'v_add_f32 v{t0+3}, v{t0+2}, v{t0+3}\nv_rcp_f32 v{t0+3}, v{t0+3}')
    for i in range(4): a(f'v_mov_b32_dpp v{ACC0+i}, v{ACC1+i} {idn} {HI}')
    for i in range(4): a(f'v_mul_f32 v{ACC0+i}, v{ACC0+i}, v{t0+3}')
    OP = PF
    a(f'v_cvt_pk_bf16_f32 v{OP}, v{ACC0}, v{ACC0+1}\nv_cvt_pk_bf16_f32 v{OP+1}, v{ACC0+2}, v{ACC0+3}')
    ts()
    a(f'ds_write_b64 v{vOw}, v[{OP}:{OP+1}] offset:{L_O}')
    def om(b): return f'v_smfmac_f32_16x16x64_bf16 v[{OUT+4*b[1]}:{OUT+4*b[1]+3}], v[{OF+4*b[2]}:{OF+4*b[2]+3}], {B8(b)}, v{vIdx}'
    a(f'v_mov_b64 v[{OF}:{OF+1}], v[{OP}:{OP+1}]\nv_mov_b64 v[{OF+2}:{OF+3}], v[{OP}:{OP+1}]')
    if not cfg.x_nokv: a(vxld[1])
    a(vxld[2])
    for i in range(2):
        a(f'v_mov_b32_dpp v{OF+i}, v{OP+i} row_ror:8 {HI}\nv_mov_b32_dpp v{OF+2+i}, v{OP+i} row_ror:8 {LO}')
    if cfg.kdpos == 1 and not cfg.x_nokv: a(kxdma[1]); a(kxdma[2])
    a(kxdma[3])
    a('s_waitcnt lgkmcnt(0)\ns_barrier')
    for sg in range(1, 4): a(f'ds_read_b128 v[{OF+4*sg}:{OF+4*sg+3}], v{OA+sg} offset:{L_O}')
    ts()
    def fin(z):
        A0, A1 = OUT + 8*z, OUT + 8*z + 4
        F = [f'v_cvt_pk_bf16_f32 v{A0+i}, v{A0+i}, v{A1+i}' for i in range(4)]
        F += [f'v_and_or_b32 v{A0}, v{A0}, -2, s{sTAG}']
        F += [f'buffer_store_dwordx4 v[{A0}:{A0+3}], v{vPst}, {S(sWS)}, s{sPART2 if z else sPART} offen{sc}']
        return F
    HV, HA, HP = 126, 127, 128
    hint = f's_mov_b64 exec, 1\nbuffer_store_dword v{HV}, off, {S(sWS)}, s{sHW}{sc}\ns_mov_b64 exec, -1'
    def probe(i): return f'buffer_load_dword v{HP+i}, v{HA}, {S(sWS)}, s{sHR} offen sc1'
    f0 = fin(0); f1 = fin(1)
    seq = []
    for i in range(4): seq += [om(OORD[i]), LSR[8+i]]
    seq += ['s_waitcnt lgkmcnt(4)', om(OORD[4]), LSR[12], om(OORD[5]), LSR[13]] + [om(b) for b in OORD[6:11]]
    seq += ['s_nop 0', om(OORD[11]), 's_nop 0', om(OORD[12]), 's_waitcnt lgkmcnt(0)']
    seq += [om(OORD[13]), 's_nop 0', f0[0], om(OORD[14]), f0[1], f0[4], om(OORD[15]), f0[2], f0[3], f0[5]]
    seq += [f'v_mov_b32 v{RDA+4}, -1', 's_nop 0', f'v_mov_b64 v[{RDA}:{RDA+1}], 0', f'v_mov_b64 v[{RDA+2}:{RDA+3}], 0'] + f1
    if cfg.hint:
        a(f'v_mov_b32 v{HV}, s{sS}\nv_bfe_u32 v{HA}, v{vL16}, 2, 7')
        ins = {cfg.hpos: hint}
        for i, p in enumerate(cfg.ppos): ins[p] = probe(i)
    else: ins = {}
    younger = []
    for i, l in enumerate(seq):
        if i in ins:
            a(ins[i]); younger.append('p' if i != cfg.hpos else 'h')
        a(l)
        if l.startswith('buffer_'): younger.append('s')
    ts()
    ESR = stage_reads('es', range(10))
    for l in ESR[:cfg.es1]: a(l)
    a(f's_mov_b32 s{sSPIN}, 0')
    if cfg.hint:
        k = 0
        for i, y in enumerate(younger):
            if y != 'p': continue
            a(f's_waitcnt vmcnt({len(younger)-1-i})\nv_cmp_ne_u32 vcc, v{HV}, v{HP+k}\ns_cbranch_vccz {pre}_hok')
            k += 1
        a(probe(0)); a('s_nop 7')
        a.label(pre + '_hl')
        a(probe(1)); a(f's_waitcnt vmcnt(1)\nv_cmp_ne_u32 vcc, v{HV}, v{HP}\ns_cbranch_vccz {pre}_hok')
        a(probe(0)); a(f's_waitcnt vmcnt(1)\nv_cmp_ne_u32 vcc, v{HV}, v{HP+1}\ns_cbranch_vccz {pre}_hok')
        a(f's_add_u32 s{sSPIN}, s{sSPIN}, 1\ns_cmp_lt_u32 s{sSPIN}, 0x400000\ns_cbranch_scc1 {pre}_hl\ns_branch L_end')
        a.label(pre + '_hok')
    for _ in range(cfg.pd1): a('s_nop 7')
    ts(True)
    pp = [f'buffer_load_dwordx4 v[{RL}:{RL+3}], v{vL16}, {S(sWS)}, s{sRED} offen sc1',
          f'buffer_load_dwordx4 v[{RL+4}:{RL+7}], v{vL16}, {S(sWS)}, s{sRED} offen offset:1024 sc1']
    for _ in range(cfg.np1 - 1):
        a(pp[0]); a(pp[1])
        for _ in range(cfg.sp1): a('s_nop 3')
    a(pp[0]); a(pp[1])
    a(f's_and_b32 s{sT}, s{sS}, 7\ns_cmp_lg_u32 s{sT}, 3\ns_cbranch_scc1 {pre}_nog')
    a(f's_cmp_eq_u32 s{sS}, 59\ns_cbranch_scc1 {pre}_nog')
    a(f's_lshl_b32 s{sT}, s{sW}, 8\nv_mov_b32 v0, s{sT}\ns_waitcnt vmcnt(6)\nds_read_b32 v0, v0 offset:{L_CNT}\ns_waitcnt lgkmcnt(0)')
    a(f'v_readfirstlane_b32 s{sT2}, v0\ns_cmp_ge_u32 s{sT2}, 192\ns_cbranch_scc1 {pre}_nog')
    wait_word(a, pre + '_gw', sDBG, f's{sG}', 192, v=RDA+6)
    a.label(pre + '_nog')
    a(f's_xor_b32 s{sT}, s{sMST}, 0x2000\ns_mov_b32 m0, s{sM0D}\ns_add_u32 s{sPF}, s{sPF}, 0x40000')
    a(f's_xor_b32 s{sMEM}, s{sMEM}, 0x2000\ns_add_u32 s{sS}, s{sS}, 1\ns_and_b32 s{sRARE}, s{sS}, 3')
    a(f's_add_u32 s{sPUB}, s{sPUB}, 0x40000')
    for l in ESR[cfg.es1:cfg.es2]: a(l)
    warm(cfg.wm1)
    a.label(pre + '_pp')
    a(f's_waitcnt vmcnt({2*(cfg.np1-1)})')
    red = f'v_smfmac_f32_16x16x64_bf16 v[{RDA}:{RDA+3}], v[{SEL}:{SEL+3}], v[{RL}:{RL+7}], v{vIdx}'
    if cfg.np1 == 1: a(red)
    a(f'v_bitop3_b32 v0, v{RL}, v{RL+4}, s{sTAG} bitop3:0x7e')
    if cfg.np1 > 1: a(red)
    a(f'v_and_b32 v0, 1, v0\nv_cmp_ne_u32 vcc, 0, v0\ns_cbranch_vccnz {pre}_pp_retry')
    ts()
    a(f's_xor_b32 s{sTAG}, s{sTAG}, 1')
    for r in (4, 8):
        for i in range(2): a(f'v_add_f32_dpp v{RDA+i}, v{RDA+i}, v{RDA+i} row_ror:{r} {DPP}')
    a(f's_mov_b32 exec_lo, 0x000f000f\ns_mov_b32 exec_hi, 0x000f000f')
    a(f'v_cvt_pk_bf16_f32 v{RDA}, v{RDA}, v{RDA+1}\nv_min_u32 v{RDA}, -2, v{RDA}')
    a(f'buffer_store_dword v{RDA}, v{vMst}, {S(sWS)}, s{sT} offen{sc}')
    a(f'buffer_store_dword v{RDA+4}, v{vMst}, {S(sWS)}, s{sMST} offen{sc}')
    a(f's_mov_b64 exec, -1\ns_mov_b32 s{sMST}, s{sT}')
    ts(True)
    for l in ESR[cfg.es2:]: a(l)
    for i in range(0, 12, 2): a(f'v_mov_b64 v[{AV+i}:{AV+i+1}], 0')
    a('s_waitcnt lgkmcnt(0)')
    if cfg.prof:
        for i in range(10):
            a(f's_sub_u32 s{sT}, s{20+2*i}, s{18+2*i}\ns_add_u32 s{68+i}, s{68+i}, s{sT}')
    if cfg.trace:
        a(f's_sub_u32 s{sT2}, s{sS}, {cfg.trace}\ns_cmp_gt_u32 s{sT2}, 1\ns_cbranch_scc1 {pre}_notr')
        a(f's_lshl_b32 s{sT}, s{sIDX}, 2\ns_add_u32 s{sT}, s{sT}, s{sW}\ns_lshl_b32 s{sT}, s{sT}, 1\ns_add_u32 s{sT}, s{sT}, s{sT2}\ns_lshl_b32 s{sT}, s{sT}, 6\ns_add_u32 s{sT}, s{sT}, {TS+0x8000:#x}')
        for i in range(cnt[0]): a(f'v_writelane_b32 v0, s{PAIRS[i]}, {i}')
        a(f'v_lshrrev_b32 v{MA01}, 2, v{vL16}\ns_mov_b64 exec, 0xffff\nbuffer_store_dword v0, v{MA01}, {S(sWS)}, s{sT} offen\ns_mov_b64 exec, -1')
        a.label(pre + '_notr')
    if cfg.bar2: a('s_barrier')
    for _ in range(cfg.pd2): a('s_nop 7')
    a.flush()
    a(f's_branch {pre}_step')
```

```python
import sys, os
sys.path.insert(0, os.path.dirname(__file__))
from asmlib import Asm, vr

NAME = 'concat_heads__sliding_local_dilated__memory_aug_recurrent_mem_tr__prompt'
QX, KX, VX, OX, KVM = 0x0000000, 0x1000000, 0x2000000, 0x3000000, 0x4000000
PART, MEMS, FLG = 0x5000000, 0x5080000, 0x5100000
WS_BYTES = 0x10000000
LDS_BYTES = 163840
sWS, sDBG = 4, 8
sR1, sR2, sR3 = 12, 44, 48
sXCD, sIDX, sW = 42, 43, 3
P = lambda i: 16 + 2 * i

class Cfg:
    roles = 'pcao'
    stamps = False
    h1 = 3
    h2 = 8
    kdpos = 0
    hint = 0
    hpos = 8
    ppos = (16, 20, 30)
    bar2 = 0
    np1 = 1
    np2 = 1
    sp1 = 6
    sp2 = 6
    trace = 0
    clk = 0
    x_nokv = 0
    x_nopub = 0
    x_nopf = 0
    x_pfplain = 0
    x_kvplain = 0
    wm1 = 0
    wm2 = 0
    es1 = 4
    es2 = 12
    pd1 = 0
    pd2 = 0
    prof = 0
    force_slow = 0
    x_nostore = 0
    x_nodma = 0
    x_plain = 0

def srd(a, d, base, size):
    a(f's_mov_b32 s{d}, s{base}\ns_and_b32 s{d+1}, s{base+1}, 0xffff\ns_mov_b32 s{d+2}, {size:#x}\ns_mov_b32 s{d+3}, 0x20000')

def S(d): return f's[{d}:{d+3}]'

TS = 0x5180000
def stamp(a, cfg, i):
    if cfg.stamps:
        a(f's_memrealtime s[{84+2*i}:{85+2*i}]')
def dump_stamps(a, cfg, n):
    if not cfg.stamps: return
    l = a.newlabel('L_ts')
    a(f's_waitcnt lgkmcnt(0)\ns_cmp_lg_u32 s{sW}, 0\ns_cbranch_scc1 {l}')
    a(f's_lshl_b32 s80, s2, 6\ns_add_u32 s80, s80, {TS:#x}\nv_mov_b32 v1, 0')
    for i in range(n):
        a(f'v_mov_b32 v2, s{84+2*i}\nbuffer_store_dword v2, v1, {S(sWS)}, s80 offen offset:{4*i}')
    a.label(l)

def prologue(a):
    a('s_cmp_ge_u32 s2, 256\ns_cbranch_scc1 L_end')
    a('s_load_dwordx16 s[16:31], s[0:1], 0\ns_load_dwordx8 s[32:39], s[0:1], 64\ns_load_dwordx2 s[40:41], s[0:1], 96')
    a(f's_and_b32 s{sXCD}, s2, 7\ns_lshr_b32 s{sIDX}, s2, 3')
    a(f'v_lshrrev_b32 v1, 6, v0\nv_and_b32 v0, 63, v0\nv_readfirstlane_b32 s{sW}, v1')
    a('s_waitcnt lgkmcnt(0)')
    srd(a, sWS, P(12), WS_BYTES)
    srd(a, sDBG, P(11), 256)
    a(f's_cmp_eq_u32 s{sXCD}, 0\ns_cbranch_scc1 L_chain')
    a(f's_cmp_eq_u32 s{sXCD}, 1\ns_cbranch_scc1 L_apart')

def role_proj(a, cfg):
    vL16, vSRC, vTR, vX, vRD, vZ = 1, 2, 3, 4, 5, 6
    XB = 16
    ACC = 48
    PK = 64
    XV, RB, RD = 72, 80, 84
    sJ, sWH, sPAR, sT, sT2, sI, sXO, sSLOT, sRSLOT, sOUT, sG = 52, 53, 54, 55, 56, 57, 58, 59, 60, 61, 62
    stamp(a, cfg, 0)
    a(f's_sub_u32 s{sJ}, s{sXCD}, 2\ns_lshr_b32 s{sWH}, s{sJ}, 1\ns_and_b32 s{sPAR}, s{sJ}, 1')
    a(f's_cmp_eq_u32 s{sWH}, 0\ns_cselect_b32 s64, s{P(6)}, s{P(7)}\ns_cselect_b32 s65, s{P(6)+1}, s{P(7)+1}')
    a(f's_mov_b32 s{sOUT}, {VX:#x}\ns_cselect_b32 s{sOUT}, {KX:#x}, s{sOUT}')
    a(f's_cmp_eq_u32 s{sWH}, 2\ns_cselect_b32 s64, s{P(5)}, s64\ns_cselect_b32 s65, s{P(5)+1}, s65\ns_cselect_b32 s{sOUT}, {QX:#x}, s{sOUT}')
    srd(a, sR1, 64, 512 * 8192)
    srd(a, sR2, P(3), 2048 * 1024)
    a(f'v_lshlrev_b32 v{vL16}, 4, v0')
    a(f'v_mov_b32 v{vZ}, 0\ns_lshl_b32 s{sT}, s{sIDX}, 7\ns_add_u32 s{sT}, s{sT}, {FLG:#x}')
    a(f's_lshl_b32 s{sT2}, s{sJ}, 7\ns_add_u32 s{sT2}, s{sT2}, {FLG+4096:#x}')
    a(f's_cmp_lg_u32 s{sW}, 0\ns_cbranch_scc1 L_pz2')
    a(f's_cmp_lg_u32 s{sJ}, 0\ns_cbranch_scc1 L_pz1')
    a(f'buffer_store_dword v{vZ}, v{vZ}, {S(sWS)}, s{sT} offen sc1')
    a('L_pz1:')
    a(f's_cmp_lg_u32 s{sIDX}, 0\ns_cbranch_scc1 L_pz2')
    a(f'buffer_store_dword v{vZ}, v{vZ}, {S(sWS)}, s{sT2} offen sc1')
    a('L_pz2:')
    a(f'v_lshrrev_b32 v8, 4, v0\nv_lshlrev_b32 v8, 3, v8\nv_bfe_u32 v9, v0, 2, 2\nv_add_u32 v8, v8, v9\nv_lshlrev_b32 v8, 13, v8')
    a(f'v_and_b32 v9, 3, v0\nv_lshlrev_b32 v9, 4, v9\nv_add_u32 v{vSRC}, v8, v9')
    a(f'v_lshrrev_b32 v8, 2, v0\nv_lshlrev_b32 v8, 6, v8\nv_and_b32 v9, 3, v0\nv_lshlrev_b32 v9, 3, v9\nv_add_u32 v8, v8, v9')
    a(f's_lshl_b32 s{sT}, s{sW}, 15\nv_add_u32 v{vTR}, s{sT}, v8')
    a(f's_lshl_b32 s{sT}, s{sW}, 3\ns_and_b32 s{sT2}, s{sT}, 15\ns_lshl_b32 s{sT}, s{sT}, 10')
    for i in range(8):
        a(f's_add_u32 s63, s{sT2}, {i}\nv_xor_b32 v8, s63, v0\nv_lshlrev_b32 v8, 4, v8')
        a(f's_add_u32 s63, s{sT}, {(i//4)*4096}\nv_add_u32 v{XV+i}, s63, v8')
    for uu in range(4):
        a(f'v_lshrrev_b32 v8, 4, v0\nv_or_b32 v8, {4*uu}, v8\nv_and_b32 v9, 15, v0\nv_xor_b32 v8, v8, v9\nv_lshlrev_b32 v8, 4, v8')
        a(f'v_lshlrev_b32 v9, 10, v9\nv_add_u32 v{RB+uu}, v8, v9')
    a(f's_lshl_b32 s{sT}, s{sIDX}, 8\ns_lshl_b32 s{sT2}, s{sW}, 6\ns_add_u32 s{sT}, s{sT}, s{sT2}')
    a(f's_lshl_b32 m0, s{sW}, 15')
    for ch in range(8):
        for c in range(4):
            a(f'buffer_load_dwordx4 v{vSRC}, {S(sR1)}, s{sT} offen lds')
            step = (4 if c % 2 == 0 else 28) * 8192
            a(f's_add_u32 s{sT}, s{sT}, {step:#x}\ns_add_u32 m0, m0, 1024')
    def xdma(only=None):
        for i in range(8):
            if only is not None and i != only: continue
            if i == 0: a(f's_lshl_b32 s{sT}, s{sW}, 13\ns_add_u32 m0, s{sSLOT}, s{sT}')
            a(f'buffer_load_dwordx4 v{XV+i}, {S(sR2)}, s{sXO} offen offset:{1024*(i%4)} lds')
            if i == 3: a('s_add_u32 m0, m0, 4096')
        if only is not None and only != 7: return
        a(f's_add_u32 s{sXO}, s{sXO}, 0x10000\ns_min_u32 s{sXO}, s{sXO}, 0x1f8000\ns_add_u32 s{sSLOT}, s{sSLOT}, 0x8000')
        a(f's_cmp_eq_u32 s{sSLOT}, 0x28000\ns_cselect_b32 s{sSLOT}, 0, s{sSLOT}')
    a(f's_lshl_b32 s{sXO}, s{sPAR}, 15\ns_mov_b32 s{sSLOT}, 0x20000\ns_mov_b32 s{sRSLOT}, 0x20000')
    xdma()
    for ch in range(8):
        a(f's_waitcnt vmcnt({8 + 4*(7-ch)})')
        for c in range(4):
            for t in range(2):
                u = 2 * ch + (c >> 1)
                r = (t * 16 + u) * 4 + 2 * (c & 1)
                a(f'ds_read_b64_tr_b16 a[{r}:{r+1}], v{vTR} offset:{ch*4096 + c*1024 + t*32}')
    a('s_waitcnt lgkmcnt(0)\ns_barrier')
    stamp(a, cfg, 1)
    xdma(); xdma()
    a(f's_lshl_b32 s{sT}, s{sPAR}, 18\ns_add_u32 s{sOUT}, s{sOUT}, s{sT}\ns_lshl_b32 s{sT}, s{sIDX}, 13\ns_add_u32 s{sOUT}, s{sOUT}, s{sT}')
    a(f's_cmp_eq_u32 s{sWH}, 1\ns_cselect_b32 s{sT2}, 11, 10\ns_lshl_b32 s{sT}, s{sW}, s{sT2}\ns_add_u32 s{sOUT}, s{sOUT}, s{sT}')
    a(f's_mov_b32 s{sI}, 0\ns_mov_b32 s{sG}, 0\nv_mov_b32 v7, 1')
    a(f's_cmp_eq_u32 s{sWH}, 1\ns_cbranch_scc1 L_pv_loop')
    for isv in (0, 1):
        lab = 'L_pv_loop' if isv else 'L_pk_loop'
        a.label(lab)
        a(f's_cmp_lt_u32 s{sI}, 3\ns_cbranch_scc1 {lab}_w0')
        a(f's_waitcnt vmcnt(22)\ns_branch {lab}_w1')
        a(f'{lab}_w0:\ns_waitcnt vmcnt(16)')
        a(f'{lab}_w1:\ns_barrier')
        for uu in range(4): a(f'v_add_u32 v{RD+uu}, s{sRSLOT}, v{RB+uu}')
        def rd(u):
            for T in range(2):
                b = XB + ((u % 4) * 2 + T) * 4
                a(f'ds_read_b128 v[{b}:{b+3}], v{RD+u%4} offset:{T*16384+(u//4)*256}')
        for u in range(4): rd(u)
        a(f's_and_b32 s{sT}, s{sI}, 3\ns_cmp_lg_u32 s{sT}, 3\ns_cbranch_scc1 {lab}_nf')
        a(f's_cmp_lt_u32 s{sI}, 7\ns_cbranch_scc1 {lab}_nf')
        a(f's_cmp_lg_u32 s{sW}, 0\ns_cbranch_scc1 {lab}_nf2')
        a(f's_mov_b64 exec, 1\nbuffer_atomic_add v7, v{vZ}, {S(sDBG)}, s{sG} offen sc1\ns_mov_b64 exec, -1')
        a(f'{lab}_nf2:\ns_add_u32 s{sG}, s{sG}, 4')
        a(f'{lab}_nf:')
        for u in range(16):
            a(f's_waitcnt lgkmcnt({min(6, 2*(15-u))})')
            for T in range(2):
                for t in range(2):
                    d = ACC + (t * 2 + T) * 4
                    x = XB + ((u % 4) * 2 + T) * 4
                    w = (t * 16 + u) * 4
                    c = '0' if u == 0 else f'v[{d}:{d+3}]'
                    if isv: a(f'v_mfma_f32_16x16x32_bf16 v[{d}:{d+3}], v[{x}:{x+3}], a[{w}:{w+3}], {c}')
                    else:   a(f'v_mfma_f32_16x16x32_bf16 v[{d}:{d+3}], a[{w}:{w+3}], v[{x}:{x+3}], {c}')
            if u + 4 < 16: rd(u + 4)
            if u % 2 == 0 and not cfg.x_nodma: xdma(u // 2)
        a(f's_add_u32 s{sRSLOT}, s{sRSLOT}, 0x8000\ns_cmp_eq_u32 s{sRSLOT}, 0x28000\ns_cselect_b32 s{sRSLOT}, 0, s{sRSLOT}')
        for f in range(2):
            for hlf in range(2):
                d = ACC + ((f * 2 + (hlf ^ f)) if isv else (hlf * 2 + f)) * 4
                a(f'v_cvt_pk_bf16_f32 v{PK+f*4+hlf*2}, v{d}, v{d+1}\nv_cvt_pk_bf16_f32 v{PK+f*4+hlf*2+1}, v{d+2}, v{d+3}')
            off = f * 1024 if isv else 0
            if cfg.x_nostore: continue
            sc = '' if cfg.x_plain else ' sc1'
            if not isv and f == 1:
                a(f's_add_u32 s{sT}, s{sOUT}, 4096')
                a(f'buffer_store_dwordx4 v[{PK+4}:{PK+7}], v{vL16}, {S(sWS)}, s{sT} offen{sc}')
            else:
                a(f'buffer_store_dwordx4 v[{PK+f*4}:{PK+f*4+3}], v{vL16}, {S(sWS)}, s{sOUT} offen offset:{off}{sc}')
        a(f's_add_u32 s{sOUT}, s{sOUT}, 0x80000\ns_add_u32 s{sI}, s{sI}, 1\ns_cmp_lt_u32 s{sI}, 32')
        a.flush()
        a(f's_cbranch_scc1 {lab}')
        if not isv: a('s_branch L_p_done')
    a('L_p_done:')
    stamp(a, cfg, 2)
    a('s_waitcnt vmcnt(0)\ns_barrier')
    stamp(a, cfg, 3)
    a(f's_cmp_lg_u32 s{sW}, 0\ns_cbranch_scc1 L_p_fl')
    a(f's_mov_b64 exec, 1\nbuffer_atomic_add v7, v{vZ}, {S(sDBG)}, s{sG} offen sc1\ns_mov_b64 exec, -1')
    a('L_p_fl:')

def build(cfg):
    a = Asm()
    hdr = open(os.path.join(os.path.dirname(__file__), '..', 'cdna_kernels', NAME + '.s.ref')).read().split('\n')
    for l in hdr:
        if l.startswith('; @launch'): break
        a.raw(l)
    a.raw(f'; @launch grid=(256,1,1) block=(256,1,1) lds={LDS_BYTES}')
    a.raw('.amdgcn_target "amdgcn-amd-amdhsa--gfx950"\n.text')
    a.raw(f'.globl {NAME}_kernel\n.p2align 8\n.type {NAME}_kernel,@function\n{NAME}_kernel:')
    prologue(a)
    role_proj(a, cfg)
    if 'a' in cfg.roles:
        from role_att import role_att
        role_att(a, cfg)
    dump_stamps(a, cfg, 8)
    a('s_endpgm')
    a.label('L_chain')
    if 'c' in cfg.roles:
        from role_chain import role_chain
        role_chain(a, cfg)
        dump_stamps(a, cfg, 8)
    a('s_endpgm')
    a.label('L_apart')
    if 'o' in cfg.roles:
        from role_apart import role_apart
        role_apart(a, cfg)
        dump_stamps(a, cfg, 8)
    a.label('L_end')
    a('s_endpgm')
    a.raw(f'''.section .rodata,"a"
.p2align 6
.amdhsa_kernel {NAME}_kernel
  .amdhsa_next_free_vgpr 512
  .amdhsa_next_free_sgpr 102
  .amdhsa_accum_offset 256
  .amdhsa_group_segment_fixed_size 0
  .amdhsa_kernarg_size 104
  .amdhsa_user_sgpr_count 2
  .amdhsa_user_sgpr_kernarg_segment_ptr 1
  .amdhsa_system_sgpr_workgroup_id_x 1
.end_amdhsa_kernel''')
    return a.text()

if __name__ == '__main__':
    sys.modules['gen'] = sys.modules['__main__']
    cfg = Cfg()
    out = None
    for arg in sys.argv[1:]:
        if arg.startswith('roles='): cfg.roles = arg[6:]
        elif arg.startswith('out='): out = arg[4:]
        elif '=' in arg:
            k, v = arg.split('='); setattr(cfg, k, tuple(int(x) for x in v.split(',')) if k == 'ppos' else int(v))
    out = out or os.path.join(os.path.dirname(__file__), '..', 'cdna_kernels', NAME + '.s')
    open(out, 'w').write(build(cfg))
    print('wrote', out)
```

```python
from gen import *
import struct, math
def f2u(x): return struct.unpack('<I', struct.pack('<f', x))[0]

def role_apart(a, cfg):
    a.comment('---- sliding-window dilated attention block (64 rows)')
    stamp(a, cfg, 0)
    vL16, vS1, vS2, vTRb, vTR, vNEG, vOut, vT = 1, 2, 3, 4, 5, 6, 7, 8
    RB = 12
    XF = 16
    WF = 56
    AQ, AK, AV = 72, 104, 144
    SC, PK, OC, TT = 16, 24, 28, 32
    OFR = 184
    sT, sT2, sNX, sSL, sRS, sKB, sRB, sC, sNC, sB0 = range(52, 62)
    MK = 62
    sX, sWq, sWo, sOut = 12, 16, 20, 24
    RING = 81920
    srd(a, sX, P(0), 2048*1024)
    a('s_mov_b32 s78, s18\ns_mov_b32 s79, s19\ns_mov_b32 s80, s20\ns_mov_b32 s81, s21')
    srd(a, sWq, 78, 512*3072); srd(a, sWo, 80, 512*1024); srd(a, sOut, P(10), 2048*2048)
    a(f'v_lshlrev_b32 v{vL16}, 4, v0')
    if cfg.warm:
        srd(a, 28, P(8), 4096*1024)
        a(f'v_lshlrev_b32 v{vS1}, 7, v0\ns_lshl_b32 s{sT}, s{sIDX}, 17\ns_lshl_b32 s{sT2}, s{sW}, 15\ns_add_u32 s{sT}, s{sT}, s{sT2}')
        for i in range(4):
            a(f'buffer_load_dword v{248+i}, v{vS1}, s[28:31], s{sT} offen\ns_add_u32 s{sT}, s{sT}, 8192')
    a(f's_lshl_b32 s{sB0}, s{sIDX}, 16')
    for q in range(4):
        a(f's_add_u32 s{sT}, s{sW}, {4*q}\nv_xor_b32 v{XF+q}, s{sT}, v0\nv_lshlrev_b32 v{XF+q}, 4, v{XF+q}')
    for tile in range(5):
        if tile == 0: a(f's_sub_u32 s{sT2}, s{sB0}, 16384\ns_max_i32 s{sT2}, s{sT2}, 0')
        else: a(f's_add_u32 s{sT2}, s{sB0}, {(tile-1)*16384}')
        a(f's_lshl_b32 s{sT}, s{sW}, 10\ns_add_u32 s{sT2}, s{sT2}, s{sT}\ns_add_u32 m0, s{sT}, {tile*16384}')
        for q in range(4):
            a(f'buffer_load_dwordx4 v{XF+q}, {S(sX)}, s{sT2} offen lds')
            if q < 3: a(f's_add_u32 s{sT2}, s{sT2}, 4096\ns_add_u32 m0, m0, 4096')
    g, r, pc, n = vT, vT+1, vT+2, vT+3
    a(f'v_lshrrev_b32 v{g}, 4, v0\nv_bfe_u32 v{r}, v0, 2, 2\nv_and_b32 v{pc}, 3, v0\nv_and_b32 v{n}, 15, v0')
    a(f'v_lshl_add_u32 v{vS1}, v{g}, 3, v{r}\nv_mul_u32_u24 v{vS1}, 3072, v{vS1}\nv_lshl_add_u32 v{vS1}, v{pc}, 4, v{vS1}')
    a(f'v_lshl_add_u32 v{vS2}, v{g}, 2, v{r}\nv_lshlrev_b32 v{vS2}, 10, v{vS2}\nv_lshl_add_u32 v{vS2}, v{pc}, 4, v{vS2}')
    a(f'v_lshrrev_b32 v{vTRb}, 2, v0\nv_lshlrev_b32 v{vTRb}, 6, v{vTRb}\nv_lshl_add_u32 v{vTRb}, v{pc}, 3, v{vTRb}')
    a(f's_mul_i32 s{sRB}, s{sW}, 20480\ns_add_u32 s{sRB}, s{sRB}, {RING}\nv_add_u32 v{vTRb}, s{sRB}, v{vTRb}')
    for uu in range(4):
        a(f'v_or_b32 v{RB+uu}, {4*uu}, v{g}\nv_xor_b32 v{RB+uu}, v{RB+uu}, v{n}\nv_lshlrev_b32 v{RB+uu}, 4, v{RB+uu}\nv_lshl_add_u32 v{RB+uu}, v{n}, 10, v{RB+uu}')
    a(f'v_mov_b32 v{vNEG}, 0xff800000')
    a(f'v_lshlrev_b32 v{vOut}, 11, v{n}\nv_lshl_add_u32 v{vOut}, v{g}, 3, v{vOut}')
    a(f'v_lshlrev_b32 v{r}, 2, v{g}\nv_sub_u32 v{r}, v{n}, v{r}')
    for t in range(2):
        for i in range(4):
            m = MK + 2*(4*t+i)
            a(f'v_add_u32 v{pc}, {16*(1-t)-i}, v{r}\nv_and_b32 v{pc}, -15, v{pc}\nv_cmp_eq_u32 s[{m}:{m+1}], 0, v{pc}')
    a(f's_cmp_eq_u32 s{sIDX}, 0')
    for i in range(4): a(f's_cselect_b64 s[{44+2*i}:{45+2*i}], 0, s[{MK+2*i}:{MK+2*i+1}]')
    c = 0.25 * math.log2(math.e)
    a(f's_mov_b32 s{sC}, {f2u(c):#x}\ns_mov_b32 s{sNC}, {f2u(-c):#x}')
    def issue(srcv, sr, off, rows, rs):
        a(f's_add_u32 m0, s{sRB}, s{sSL}\ns_add_u32 s{sT}, s{sNX}, {off}')
        for cidx in range(4):
            if cidx: a(f's_add_u32 s{sT}, s{sT}, {(rows[cidx]-rows[cidx-1])*rs}\ns_add_u32 m0, m0, 1024')
            a(f'buffer_load_dwordx4 v{srcv}, {S(sr)}, s{sT} offen lds')
        a(f's_add_u32 s{sSL}, s{sSL}, 4096\ns_cmp_eq_u32 s{sSL}, 20480\ns_cselect_b32 s{sSL}, 0, s{sSL}')
    ROWS1, ROWS2 = [0, 4, 32, 36], [0, 16, 32, 48]
    def wread():
        a(f'v_add_u32 v{vTR}, s{sRS}, v{vTRb}')
        a(f's_add_u32 s{sRS}, s{sRS}, 4096\ns_cmp_eq_u32 s{sRS}, 20480\ns_cselect_b32 s{sRS}, 0, s{sRS}')
        for cidx in range(4):
            for t in range(2):
                rr = WF + 4*(2*(cidx >> 1) + t) + 2*(cidx & 1)
                a(f'ds_read_b64_tr_b16 v[{rr}:{rr+1}], v{vTR} offset:{cidx*1024 + t*32}')
    a(f's_lshl_b32 s{sNX}, s{sW}, 8\ns_mov_b32 s{sSL}, 0\ns_mov_b32 s{sRS}, 0')
    for m in range(3): issue(vS1, sWq, m*1024, ROWS1, 3072)
    a('s_waitcnt vmcnt(12)\ns_barrier')
    for hp in range(4):
        for i in range(0, 112, 2): a(f'v_mov_b64 v[{AQ+i}:{AQ+i+1}], 0')
        a(f's_mov_b32 s{sKB}, 0')
        lab = f'L_x_kb{hp}'
        a.label(lab)
        for half in range(2):
            a(f's_add_u32 s{sNX}, s{sNX}, {64*3072}')
            if half == 1:
                nxt = min(hp + 1, 3) * 64
                a(f's_lshl_b32 s{sT}, s{sW}, 8\ns_add_u32 s{sT}, s{sT}, {nxt}\ns_cmp_eq_u32 s{sKB}, 768\ns_cselect_b32 s{sNX}, s{sT}, s{sNX}')
            for ks in range(2):
                a(f'v_add_u32 v{vT}, s{sKB}, v{RB+2*half+ks}')
                for tile in range(4):
                    x = XF + 4*(5*ks + tile)
                    a(f'ds_read_b128 v[{x}:{x+3}], v{vT} offset:{tile*16384}')
                x = XF + 4*(5*ks + 4)
                a(f'v_add_u32 v{vT}, 0x10000, v{vT}\nds_read_b128 v[{x}:{x+3}], v{vT}')
            for m in range(3):
                a('s_waitcnt vmcnt(8)')
                wread()
                issue(vS1, sWq, m*1024, ROWS1, 3072)
                a('s_waitcnt lgkmcnt(0)')
                for ks in range(2):
                    for t in range(2):
                        w = WF + 4*(2*ks + t)
                        for tile in range(5):
                            if m == 0 and tile == 0: continue
                            x = XF + 4*(5*ks + tile)
                            d = (AQ + 4*(4*t + tile - 1)) if m == 0 else ((AK if m == 1 else AV) + 4*(5*t + tile))
                            if m < 2: a(f'v_mfma_f32_16x16x32_bf16 v[{d}:{d+3}], v[{w}:{w+3}], v[{x}:{x+3}], v[{d}:{d+3}]')
                            else:     a(f'v_mfma_f32_16x16x32_bf16 v[{d}:{d+3}], v[{x}:{x+3}], v[{w}:{w+3}], v[{d}:{d+3}]')
        a(f's_add_u32 s{sKB}, s{sKB}, 256\ns_cmp_lt_u32 s{sKB}, 1024\ns_cbranch_scc1 {lab}')
        a.flush(); a('s_nop 7')
        for base, nt in ((AQ, 8), (AK, 10), (AV, 10)):
            for tl in range(nt):
                a(f'v_cvt_pk_bf16_f32 v{base+2*tl}, v{base+4*tl}, v{base+4*tl+1}\nv_cvt_pk_bf16_f32 v{base+2*tl+1}, v{base+4*tl+2}, v{base+4*tl+3}')
        for t in range(2):
            for R in range(1, 5):
                q = AQ + 2*(4*t + R - 1)
                for tt in range(2):
                    k = AK + 2*(5*t + R - 1 + tt)
                    a(f'v_mfma_f32_16x16x16_bf16 v[{SC+4*tt}:{SC+4*tt+3}], v[{k}:{k+1}], v[{q}:{q+1}], 0')
                for x in range(8):
                    m = (44 + 2*x) if (R == 1 and x < 4) else MK + 2*x
                    a(f'v_cndmask_b32 v{SC+x}, v{vNEG}, v{SC+x}, s[{m}:{m+1}]')
                MX, t0 = TT, TT + 2
                def allg(op, src):
                    a(f'v_mov_b32 v{t0}, v{src}\nv_mov_b32 v{t0+1}, v{src}\nv_permlane32_swap_b32 v{t0}, v{t0+1}')
                    a(f'{op} v{t0+2}, v{t0}, v{t0+1}\n{op} v{t0+3}, v{t0}, v{t0+1}\nv_permlane16_swap_b32 v{t0+2}, v{t0+3}\n{op} v{t0}, v{t0+2}, v{t0+3}')
                a(f'v_max3_f32 v{MX}, v{SC}, v{SC+1}, v{SC+2}\nv_max3_f32 v{MX}, v{MX}, v{SC+3}, v{SC+4}\nv_max3_f32 v{MX}, v{MX}, v{SC+5}, v{SC+6}\nv_max_f32 v{MX}, v{MX}, v{SC+7}')
                allg('v_max_f32', MX)
                a(f'v_mul_f32 v{MX}, s{sNC}, v{t0}')
                for x in range(8): a(f'v_fma_f32 v{SC+x}, v{SC+x}, s{sC}, v{MX}')
                for x in range(8): a(f'v_exp_f32 v{SC+x}, v{SC+x}')
                for x in range(4): a(f'v_cvt_pk_bf16_f32 v{PK+x}, v{SC+2*x}, v{SC+2*x+1}')
                vv = AV + 2*(5*t + R - 1)
                a(f'v_add_f32 v{MX}, v{SC}, v{SC+1}\nv_add_f32 v{MX}, v{MX}, v{SC+2}')
                a(f'v_mfma_f32_16x16x32_bf16 v[{OC}:{OC+3}], v[{vv}:{vv+3}], v[{PK}:{PK+3}], 0')
                for x in range(3, 8): a(f'v_add_f32 v{MX}, v{MX}, v{SC+x}')
                allg('v_add_f32', MX)
                a(f'v_rcp_f32 v{t0}, v{t0}')
                for x in range(4): a(f'v_mul_f32 v{OC+x}, v{OC+x}, v{t0}')
                o = OFR + 4*(4*hp + R - 1) + 2*t
                a(f'v_cvt_pk_bf16_f32 v{o}, v{OC}, v{OC+1}\nv_cvt_pk_bf16_f32 v{o+1}, v{OC+2}, v{OC+3}')
    stamp(a, cfg, 1)
    a('s_waitcnt vmcnt(0)\ns_barrier')
    a(f's_lshl_b32 s{sNX}, s{sW}, 8\ns_mov_b32 s{sSL}, 0\ns_mov_b32 s{sRS}, 0')
    for cp in range(4): issue(vS2, sWo, cp*64, ROWS2, 1024)
    a(f's_lshl_b32 s{sT}, s{sW}, 14\nv_add_u32 v{vT}, s{sT}, v{vL16}')
    for f in range(16): a(f'ds_write_b128 v{vT}, v[{OFR+4*f}:{OFR+4*f+3}] offset:{f*1024}')
    OA = 72
    for i in range(0, 128, 2): a(f'v_mov_b64 v[{OA+i}:{OA+i+1}], 0') if OA + i < OFR else None
    a('s_waitcnt lgkmcnt(0)\ns_barrier')
    for i in range(OFR - OA, 128, 2): a(f'v_mov_b64 v[{OA+i}:{OA+i+1}], 0')
    a(f's_mov_b32 s{sKB}, 0')
    a('L_x_o:')
    a(f's_add_u32 s{sNX}, s{sNX}, 0x10000\ns_and_b32 s{sNX}, s{sNX}, 0x7ffff')
    a(f'v_add_u32 v{vT}, s{sKB}, v{vL16}')
    for f in range(8): a(f'ds_read_b128 v[{XF+4*f}:{XF+4*f+3}], v{vT} offset:{f*1024}')
    for cp in range(4):
        a('s_waitcnt vmcnt(12)')
        wread()
        issue(vS2, sWo, cp*64, ROWS2, 1024)
        a('s_waitcnt lgkmcnt(0)')
        for ks in range(2):
            for t in range(2):
                w = WF + 4*(2*ks + t)
                for R in range(4):
                    x = XF + 4*(4*ks + R); d = OA + 4*(4*(2*cp + t) + R)
                    a(f'v_mfma_f32_16x16x32_bf16 v[{d}:{d+3}], v[{w}:{w+3}], v[{x}:{x+3}], v[{d}:{d+3}]')
    a(f's_add_u32 s{sKB}, s{sKB}, 8192\ns_cmp_lt_u32 s{sKB}, 0x10000\ns_cbranch_scc1 L_x_o')
    a.flush(); a('s_nop 7')
    a(f's_lshl_b32 s{sT}, s{sIDX}, 17\ns_lshl_b32 s{sT2}, s{sW}, 8\ns_add_u32 s{sT}, s{sT}, s{sT2}')
    for R in range(4):
        for ct in range(8):
            d = OA + 4*(4*ct + R)
            a(f'v_cvt_pk_bf16_f32 v{d}, v{d}, v{d+1}\nv_cvt_pk_bf16_f32 v{d+1}, v{d+2}, v{d+3}')
            a(f'buffer_store_dwordx2 v[{d}:{d+1}], v{vOut}, {S(sOut)}, s{sT} offen offset:{ct*32}')
        a(f's_add_u32 s{sT}, s{sT}, 0x8000')
    a('s_waitcnt vmcnt(0)')
    stamp(a, cfg, 3)
```

```python
from gen import *
import struct, math
def f2u(x): return struct.unpack('<I', struct.pack('<f', x))[0]

def spin(a, name, srd, soff, target, vtmp, vaddr, scnt, sleep=1):
    a(f's_cmp_lg_u32 s{sW}, 0\ns_cbranch_scc1 {name}_ok')
    a(f's_mov_b32 s{scnt}, 0')
    a.label(name)
    a(f'buffer_load_dword v{vtmp}, v{vaddr}, {S(srd)}, {soff} offen sc1\ns_waitcnt vmcnt(0)')
    a(f'v_cmp_gt_u32 vcc, {target}, v{vtmp}\ns_cbranch_vccz {name}_ok')
    a(f's_sleep {sleep}\ns_add_u32 s{scnt}, s{scnt}, 1\ns_cmp_lt_u32 s{scnt}, 0x200000\ns_cbranch_scc1 {name}')
    a.label(name + '_ok')
    a('s_barrier')

def role_att(a, cfg):
    a.comment('---- attention of the segment rows + output projection')
    vL16, vZ, vONE = 1, 6, 7
    vL8, vKa, vKb, vKr, vOut, vNEG, vRW, vRR, vT = 2, 3, 4, 5, 8, 9, 10, 11, 12
    QF, KF, VF, PB, KM = 16, 32, 64, 80, 96
    S0, S1, SMm = 112, 116, 120
    PP, PD, AC, OPK, TT = 124, 130, 136, 152, 160
    OB = 128
    OA = 112
    sJ = 52
    sT, sT2, sS, sB, sTq, sEH, sGD, sNEED, sCNT, sFC, sFA, sC, sNC, sO = range(53, 67)
    MK = 68
    DPP = 'row_mask:0xf bank_mask:0xf'
    srd(a, sR1, P(8), 4096*1024)
    srd(a, sR2, P(10), 2048*2048)
    a(f'v_lshrrev_b32 v{vT}, 1, v0\nv_lshlrev_b32 v{vT}, 10, v{vT}\nv_and_b32 v{vT+1}, 1, v0\nv_lshl_add_u32 v{vT}, v{vT+1}, 4, v{vT}')
    a(f's_lshl_b32 s{sT}, s{sW}, 20\ns_lshl_b32 s{sT2}, s{sIDX}, 5\ns_add_u32 s{sT}, s{sT}, s{sT2}\ns_lshl_b32 m0, s{sW}, 15')
    for i in range(32):
        a(f'buffer_load_dwordx4 v{vT}, {S(sR1)}, s{sT} offen lds')
        a(f's_add_u32 s{sT}, s{sT}, 0x8000\ns_add_u32 m0, m0, 1024')
    a(f's_lshl_b32 s{sT}, s{sW}, 15\nv_lshlrev_b32 v{vL8}, 3, v0\nv_add_u32 v{vL8}, s{sT}, v{vL8}')
    a(f's_and_b32 s{sTq}, s{sW}, 1\ns_lshr_b32 s{sEH}, s{sW}, 1')
    n, g, b4, b5 = vT+1, vT+2, vT+3, 112
    a(f'v_and_b32 v{n}, 15, v0\nv_lshrrev_b32 v{g}, 4, v0\nv_bfe_u32 v{b4}, v0, 4, 1\nv_bfe_u32 v{b5}, v0, 5, 1')
    PRIV = 131072
    a(f'v_lshlrev_b32 v{vKa}, 4, v{n}\nv_lshl_add_u32 v{vKa}, v{b5}, 8, v{vKa}\nv_lshl_add_u32 v{vKa}, v{b4}, 3, v{vKa}')
    a(f's_lshl_b32 s{sT}, s{sW}, 11\ns_add_u32 s{sT}, s{sT}, {PRIV}\ns_lshl_b32 s{sT2}, s{sEH}, 10\ns_add_u32 s{sT2}, s{sT2}, s{sT}')
    a(f'v_add_u32 v{vKa}, s{sT2}, v{vKa}\nv_xor_b32 v{vKb}, 1024, v{vKa}')
    a(f'v_lshrrev_b32 v113, 2, v0\nv_lshlrev_b32 v113, 4, v113\nv_and_b32 v114, 1, v0\nv_lshl_add_u32 v113, v114, 3, v113\nv_add_u32 v{vKr}, s{sT}, v113')
    a(f'v_lshlrev_b32 v{vOut}, 11, v{n}\nv_lshl_add_u32 v{vOut}, v{g}, 3, v{vOut}')
    a(f's_lshl_b32 s{sT}, s{sW}, 10\ns_add_u32 s{sT}, s{sT}, {PRIV+8192}\nv_add_u32 v{vRW}, s{sT}, v{vL16}')
    a(f's_lshl_b32 s{sT}, s{sTq}, 12\ns_add_u32 s{sT}, s{sT}, {PRIV+8192}\nv_add_u32 v{vRR}, s{sT}, v{vL16}')
    sc = 128 ** -0.5
    a(f'v_mov_b32 v{vNEG}, {f2u(-1e9/sc):#x}')
    a(f's_lshl_b32 s{sT}, s{sTq}, 4\nv_lshlrev_b32 v113, 2, v{g}\nv_sub_u32 v113, v{n}, v113\nv_add_u32 v113, s{sT}, v113')
    for Tk in range(2):
        for i in range(4):
            m = MK + 2*(4*Tk+i)
            a(f'v_cmp_gt_i32 s[{m}:{m+1}], {16*Tk+i}, v113')
    c = sc * math.log2(math.e)
    a(f's_mov_b32 s{sC}, {f2u(c):#x}\ns_mov_b32 s{sNC}, {f2u(-c):#x}')
    a(f's_lshl_b32 s{sT}, s{sIDX}, 7\ns_add_u32 s{sFC}, s{sT}, {FLG:#x}\ns_lshl_b32 s{sT}, s{sJ}, 12\ns_add_u32 s{sFA}, s{sT}, {FLG+4096:#x}')
    a(f's_mov_b32 s{sS}, s{sJ}\ns_mov_b32 s{sGD}, -1\ns_mov_b32 s{sNEED}, 1\nv_and_b32 v{vONE}, 31, v0\nv_lshlrev_b32 v{vONE}, {cfg.fsh}, v{vONE}')
    for i in range(32):
        if i % 8 == 0: a(f's_waitcnt vmcnt({24 - i})')
        for t in range(2):
            a(f'ds_read_b64_tr_b16 a[{4*i+2*t}:{4*i+2*t+1}], v{vL8} offset:{i*1024 + t*512}')
    stamp(a, cfg, 4)
    a('L_a_loop:')
    a(f's_lshr_b32 s{sT}, s{sS}, 3\ns_cmp_eq_u32 s{sT}, s{sGD}\ns_cbranch_scc1 L_a_g')
    a(f's_mov_b32 s{sGD}, s{sT}\ns_lshl_b32 s{sB}, s{sT}, 2')
    spin(a, 'L_a_gw', sDBG, f's{sB}', 192, vT, vZ, sCNT, 8)
    a('L_a_g:')
    a(f's_lshl_b32 s{sB}, s{sS}, 5\ns_add_u32 s{sB}, s{sB}, s{sIDX}\ns_lshl_b32 s{sB}, s{sB}, 13')
    a(f's_lshl_b32 s{sT}, s{sTq}, 12\ns_add_u32 s{sT}, s{sT}, s{sB}')
    for u in range(4): a(f'buffer_load_dwordx4 v[{QF+4*u}:{QF+4*u+3}], v{vL16}, {S(sWS)}, s{sT} offen offset:{u*1024} sc1')
    for Tk in range(2):
        a(f's_add_u32 s{sT}, s{sB}, {KX + Tk*4096:#x}')
        for u in range(4): a(f'buffer_load_dwordx4 v[{KF+16*Tk+4*u}:{KF+16*Tk+4*u+3}], v{vL16}, {S(sWS)}, s{sT} offen offset:{u*1024} sc1')
    a(f's_lshl_b32 s{sT}, s{sEH}, 12\ns_add_u32 s{sT}, s{sT}, s{sB}\ns_add_u32 s{sT}, s{sT}, {VX:#x}')
    for u in range(4): a(f'buffer_load_dwordx4 v[{VF+4*u}:{VF+4*u+3}], v{vL16}, {S(sWS)}, s{sT} offen offset:{u*1024} sc1')
    a('s_waitcnt vmcnt(4)')
    for u in range(4):
        for Tk, d in ((0, S0), (1, S1)):
            cc = '0' if u == 0 else f'v[{d}:{d+3}]'
            a(f'v_mfma_f32_16x16x32_bf16 v[{d}:{d+3}], v[{KF+16*Tk+4*u}:{KF+16*Tk+4*u+3}], v[{QF+4*u}:{QF+4*u+3}], {cc}')
    for x in range(8):
        a(f'v_cndmask_b32 v{S0+x}, v{S0+x}, v{vNEG}, s[{MK+2*x}:{MK+2*x+1}]')
    MX = TT
    a(f'v_max3_f32 v{MX}, v{S0}, v{S0+1}, v{S0+2}\nv_max3_f32 v{MX}, v{MX}, v{S0+3}, v{S0+4}\nv_max3_f32 v{MX}, v{MX}, v{S0+5}, v{S0+6}\nv_max_f32 v{MX}, v{MX}, v{S0+7}')
    a(f'v_mov_b32 v{PD+1}, 0\nv_mov_b32 v{PD+2}, 0')
    a(f's_add_u32 s{sO}, s{sS}, 1')
    spin(a, 'L_a_cw', sWS, f's{sFC}', f's{sO}', vT, vZ, sCNT, cfg.sl1)
    stamp(a, cfg, 1)
    a(f's_lshl_b32 s{sT}, s{sEH}, 11\ns_add_u32 s{sT2}, s{sB}, {KVM:#x}\ns_add_u32 s{sO}, s{sT}, s{sT2}\ns_xor_b32 s{sT}, s{sT}, 2048\ns_add_u32 s{sT}, s{sT}, s{sT2}')
    for p in range(4):
        a(f'buffer_load_dwordx4 v[{PB+4*p}:{PB+4*p+3}], v{vL16}, {S(sWS)}, s{sO if p < 2 else sT} offen offset:{(p%2)*1024} sc1')
    for p in range(4):
        a(f's_waitcnt vmcnt({3-p})\nds_write_b64 v{vKa if p < 2 else vKb}, v[{PB+4*p}:{PB+4*p+1}] offset:{(p%2)*512}')
    for u in range(4):
        for t in range(2):
            a(f'ds_read_b64_tr_b16 v[{KM+4*u+2*t}:{KM+4*u+2*t+1}], v{vKr} offset:{u*512 + t*256}')
    for u in range(4):
        a(f's_waitcnt lgkmcnt({6-2*u})')
        cc = '0' if u == 0 else f'v[{SMm}:{SMm+3}]'
        a(f'v_mfma_f32_16x16x32_bf16 v[{SMm}:{SMm+3}], v[{KM+4*u}:{KM+4*u+3}], v[{QF+4*u}:{QF+4*u+3}], {cc}')
    for i in range(2): a(f'v_mov_b32_dpp v{SMm+i}, v{SMm+2+i} quad_perm:[0,1,2,3] row_mask:0xc bank_mask:0xf')
    t0 = TT + 2
    def allg(op, src):
        a(f'v_mov_b32 v{t0}, v{src}\nv_mov_b32 v{t0+1}, v{src}\nv_permlane32_swap_b32 v{t0}, v{t0+1}')
        a(f'{op} v{t0+2}, v{t0}, v{t0+1}\n{op} v{t0+3}, v{t0}, v{t0+1}\nv_permlane16_swap_b32 v{t0+2}, v{t0+3}\n{op} v{t0}, v{t0+2}, v{t0+3}')
    a(f'v_max3_f32 v{MX}, v{MX}, v{SMm}, v{SMm+1}')
    allg('v_max_f32', MX)
    a(f'v_mul_f32 v{MX}, s{sNC}, v{t0}')
    for x in range(10): a(f'v_fma_f32 v{S0+x}, v{S0+x}, s{sC}, v{MX}')
    for x in range(10): a(f'v_exp_f32 v{S0+x}, v{S0+x}')
    for i, x in enumerate((0, 2, 4, 6, 0, 2)): a(f'v_cvt_pk_bf16_f32 v{PP+i}, v{S0+x}, v{S0+x+1}')
    a(f'v_cvt_pk_bf16_f32 v{PD}, v{SMm}, v{SMm+1}\nv_cvt_pk_bf16_f32 v{PD+3}, v{SMm+1}, v{SMm}')
    for tau in range(4):
        pb = PP + 2*(tau & 1)
        a(f'v_mfma_f32_16x16x32_bf16 v[{AC+4*tau}:{AC+4*tau+3}], v[{VF+4*tau}:{VF+4*tau+3}], v[{pb}:{pb+3}], 0')
    for tau in range(4):
        vb = PB + 4*(tau >> 1) + 2; pd = PD + 2*(tau & 1)
        a(f'v_mfma_f32_16x16x16_bf16 v[{AC+4*tau}:{AC+4*tau+3}], v[{vb}:{vb+1}], v[{pd}:{pd+1}], v[{AC+4*tau}:{AC+4*tau+3}]')
    a(f'v_add_f32 v{MX}, v{S0}, v{S0+1}')
    for x in range(2, 10): a(f'v_add_f32 v{MX}, v{MX}, v{S0+x}')
    allg('v_add_f32', MX)
    a(f'v_rcp_f32 v{t0}, v{t0}')
    for x in range(16): a(f'v_mul_f32 v{AC+x}, v{AC+x}, v{t0}')
    for x in range(8): a(f'v_cvt_pk_bf16_f32 v{OPK+x}, v{AC+2*x}, v{AC+2*x+1}')
    a(f's_lshl_b32 s{sT}, s{sTq}, 12\ns_lshl_b32 s{sT2}, s{sEH}, 11\ns_add_u32 s{sT}, s{sT}, s{sT2}\ns_add_u32 s{sT}, s{sT}, s{sB}\ns_add_u32 s{sT}, s{sT}, {OX:#x}')
    for uu in range(2): a(f'buffer_store_dwordx4 v[{OPK+4*uu}:{OPK+4*uu+3}], v{vL16}, {S(sWS)}, s{sT} offen offset:{uu*1024} sc1')
    stamp(a, cfg, 2)
    a('s_waitcnt vmcnt(0)\ns_barrier')
    stamp(a, cfg, 4)
    a(f's_cmp_lg_u32 s{sW}, 0\ns_cbranch_scc1 L_a_nf')
    a(f'v_mov_b32 v{vT}, s{sNEED}\ns_lshl_b32 s{sT}, s{sIDX}, {cfg.fsh}\ns_add_u32 s{sT}, s{sT}, s{sFA}')
    a(f's_mov_b64 exec, 1\nbuffer_store_dword v{vT}, v{vZ}, {S(sWS)}, s{sT} offen sc1\ns_mov_b64 exec, -1')
    a('L_a_nf:')
    spin(a, 'L_a_ow', sWS, f's{sFA}', f's{sNEED}', vT, vONE, sCNT, cfg.sl2)
    stamp(a, cfg, 6)
    a(f's_lshl_b32 s{sO}, s{sS}, 18\ns_lshl_b32 s{sT}, s{sW}, 16\ns_add_u32 s{sO}, s{sO}, s{sT}\ns_add_u32 s{sO}, s{sO}, {OX:#x}')
    def ld(f):
        r = OB + 4*(f % 32)
        a(f'buffer_load_dwordx4 v[{r}:{r+3}], v{vL16}, {S(sWS)}, s{sO} offen offset:{(f%4)*1024} sc1')
        if f % 4 == 3: a(f's_add_u32 s{sO}, s{sO}, 4096')
    for f in range(32): ld(f)
    for grp in range(16):
        hh, T = grp // 2, grp % 2
        a(f's_waitcnt vmcnt({min(28, 60 - 4*grp)})')
        for u in range(4):
            f = 4*grp + u; r = OB + 4*(f % 32); wv = 4*(4*hh + u); d = OA + 8*T + 4*(u & 1)
            cc = '0' if hh == 0 and u < 2 else f'v[{d}:{d+3}]'
            a(f'v_mfma_f32_16x16x32_bf16 v[{d}:{d+3}], a[{wv}:{wv+3}], v[{r}:{r+3}], {cc}')
        if grp < 8:
            for u in range(4): ld(32 + 4*grp + u)
    stamp(a, cfg, 7)
    for T in range(2):
        for i in range(4): a(f'v_add_f32 v{OA+8*T+i}, v{OA+8*T+i}, v{OA+8*T+4+i}')
        a(f'ds_write_b128 v{vRW}, v[{OA+8*T}:{OA+8*T+3}] offset:{T*4096}')
    a('s_waitcnt lgkmcnt(0)\ns_barrier')
    a(f's_cmp_ge_u32 s{sW}, 2\ns_cbranch_scc1 L_a_ns')
    for w in range(4): a(f'ds_read_b128 v[{OB+4*w}:{OB+4*w+3}], v{vRR} offset:{w*1024}')
    a(f's_lshl_b32 s{sT}, s{sS}, 16\ns_lshl_b32 s{sT2}, s{sTq}, 15\ns_add_u32 s{sT}, s{sT}, s{sT2}\ns_lshl_b32 s{sT2}, s{sIDX}, 5\ns_add_u32 s{sT}, s{sT}, s{sT2}')
    a('s_waitcnt lgkmcnt(0)')
    for i in range(4): a(f'v_add_f32 v{OB+i}, v{OB+i}, v{OB+4+i}\nv_add_f32 v{OB+8+i}, v{OB+8+i}, v{OB+12+i}')
    for i in range(4): a(f'v_add_f32 v{OB+i}, v{OB+i}, v{OB+8+i}')
    a(f'v_cvt_pk_bf16_f32 v{OB}, v{OB}, v{OB+1}\nv_cvt_pk_bf16_f32 v{OB+1}, v{OB+2}, v{OB+3}')
    a(f'buffer_store_dwordx2 v[{OB}:{OB+1}], v{vOut}, {S(sR2)}, s{sT} offen offset:1024')
    a('L_a_ns:')
    a(f's_add_u32 s{sNEED}, s{sNEED}, 1\ns_add_u32 s{sS}, s{sS}, 6\ns_cmp_lt_u32 s{sS}, 64')
    a.flush()
    a('s_cbranch_scc1 L_a_loop')
    stamp(a, cfg, 5)
```

```python
from gen import *
import struct, math

def f2u(x): return struct.unpack('<I', struct.pack('<f', x))[0]

L_MEM, L_KX, L_Q, L_CNT, L_O, L_LS, L_ES = 0, 8192, 16384, 20480, 21504, 24576, 81920
vL16, vTX, vMem, vMH1, vMH2, vKw, vPF, vOw, vPst, vMst, vIdx, SEL, VXF = 1, 2, 3, 4, 5, 6, 7, 8, 9, 10, 11, 12, 16
ES0 = 24
F0, F0R = 104, 112
AV, AK, AQ, PUB = 120, 124, 128, 132
FO = 24
KXF, QKF = 72, 104
SX, SX1, SM = 24, 28, 32
ACC0, ACC1, PF, PM = 96, 100, 124, 128
OUT, OF, LS0 = 104, 24, 40
RL, RDA = 112, 104
MA01 = F0
L_DUM = 23552
sT, sT2, sS, sMEM, sPART, sPART2, sRED, sMST, sKX, sVX, sPUB, sFL, sC, sNC, sSPIN, sG = range(52, 68)
sTAG, sXX, sPF, sM0K, sM0D, sRARE = 82, 83, 12, 13, 14, 15
sHW, sHR = 48, 49
HINT = MEMS + 0x8000

OORD = [('o',x,0) for x in range(4)] + [('o',2*z+p,sg) for z in range(2) for sg in range(1,4) for p in range(2)]
OTH = [(2*pr + h, rho) for pr in range(1, 4) for rho in range(2) for h in range(2)]
PORD = [(m,rho,sl) for sl in range(2) for rho in range(2) for m in 'qkv']
PORD += [(m,rho,sl) for (sl,rho) in OTH for m in 'qk']
HELD = [('v',rho,sl) for (sl,rho) in OTH]
def blocks():
    loc = {}
    for i, b in enumerate(PORD[:10]): loc[b] = ('es', i)
    for i, b in enumerate(OORD[-7:]): loc[b] = ('ls', i)
    n = 0
    for b in PORD + HELD + OORD:
        if b in loc: continue
        loc[b] = ('a', 8*n) if n < 32 else ('v', 136 + 8*(n-32)); n += 1
    assert n == 47
    return loc
LOC = blocks()
def breg(b):
    k, i = LOC[b]
    if k == 'es': return 'v', ES0 + 8*i
    if k == 'ls': return 'v', LS0 + 8*i
    return k, i
def B8(b):
    k, i = breg(b); return f'{k}[{i}:{i+7}]'
def ldsaddr(off):
    if off < 65536 - 8192: return vMem, off
    if off < 65536: return vMem, off
    if off < 131072: return vMH1, off - 65536
    return vMH2, off - 131072
def ma(rho, slot):
    b = (F0R if rho else F0) + 4*slot if slot < 2 else FO + 4*OTH.index((slot, rho))
    return b
def smf(b):
    m, rho, slot = b
    acc = {'q': AQ, 'k': AK, 'v': AV}[m]
    f = ma(rho, slot)
    return f'v_smfmac_f32_16x16x64_bf16 v[{acc}:{acc+3}], v[{f}:{f+3}], {B8(b)}, v{vIdx}'
def stage_reads(kind, idxs):
    out = []
    for i in idxs:
        base, r0 = (L_ES, ES0) if kind == 'es' else (L_LS, LS0)
        for h in range(2):
            va, off = ldsaddr(base + i*8192 + h*1024)
            out.append(f'ds_read_b128 v[{r0+8*i+4*h}:{r0+8*i+4*h+3}], v{va} offset:{off}')
    return out
def weave(a, M, F, per=2, lead=0):
    F = list(F)
    for _ in range(lead):
        if F: a(F.pop(0))
    for m in M:
        a(m)
        for _ in range(per):
            if F: a(F.pop(0))
    for f in F: a(f)

def poll(a, name, issue, check, cnt=0):
    a(f's_mov_b32 s{sSPIN}, 0')
    a.label(name)
    for l in issue: a(l)
    a(f's_waitcnt vmcnt({cnt})')
    for l in check: a(l)
    a(f's_cbranch_vccz {name}_ok')
    a(f's_add_u32 s{sSPIN}, s{sSPIN}, 1\ns_cmp_lt_u32 s{sSPIN}, 0x200000\ns_cbranch_scc1 {name}')
    a('s_branch L_end')
    a.label(name + '_ok')

def wait_word(a, name, srd, soff, target, v=0, sleep=2):
    a(f's_mov_b32 s{sSPIN}, 0\nv_mov_b32 v{v+1}, 0')
    a.label(name)
    a(f'buffer_load_dword v{v}, v{v+1}, {S(srd)}, {soff} offen sc1\ns_waitcnt vmcnt(0)')
    a(f'v_readfirstlane_b32 s{sT2}, v{v}')
    a(f's_cmp_ge_u32 s{sT2}, {target}\ns_cbranch_scc1 {name}_ok')
    a(f's_sleep {sleep}\ns_add_u32 s{sSPIN}, s{sSPIN}, 1\ns_cmp_lt_u32 s{sSPIN}, 0x400000\ns_cbranch_scc1 {name}')
    a('s_branch L_end')
    a.label(name + '_ok')

VT = 36
KPK = [f'v_cvt_pk_bf16_f32 v{PUB}, v{AK}, v{AK+1}', f'v_cvt_pk_bf16_f32 v{PUB+1}, v{AK+2}, v{AK+3}']
VPK = [f'v_cvt_pk_bf16_f32 v{PUB+2}, v{AV}, v{AV+1}', f'v_cvt_pk_bf16_f32 v{VT}, v{AV+2}, v{AV+3}',
       f'v_cvt_pk_bf16_f32 v{VT+1}, v{AV+1}, v{AV}', f'v_cvt_pk_bf16_f32 v{PUB+3}, v{AV+3}, v{AV+2}',
       f'v_permlane32_swap_b32 v{PUB+2}, v{VT}', f'v_permlane32_swap_b32 v{VT+1}, v{PUB+3}']
RARE_AT = 32

def role_chain(a, cfg):
    a.comment('---- chain head')
    stamp(a, cfg, 0)
    vS1, vS2, vTR, vTR0, vTR1 = 104, 105, 106, 107, 108
    T = 110
    a(f'v_lshlrev_b32 v{vL16}, 4, v0\nv_lshlrev_b32 v{vPF}, 6, v0')
    a(f's_lshl_b32 s{sT}, s{sW}, 11\nv_add_u32 v{vMem}, s{sT}, v{vL16}')
    a(f'v_add_u32 v{vMH1}, 0x10000, v{vMem}\nv_add_u32 v{vMH2}, 0x20000, v{vMem}')
    a(f'v_and_b32 v{T}, 3, v0\nv_lshlrev_b32 v{T}, 4, v{T}')
    a(f'v_bfe_u32 v{T+1}, v0, 5, 1\nv_bfe_u32 v{T+2}, v0, 4, 1\nv_bfe_u32 v{T+3}, v0, 2, 1\nv_bfe_u32 v{T+4}, v0, 3, 1')
    a(f'v_lshl_add_u32 v{vS1}, v{T+1}, 16, v{T}\nv_lshl_add_u32 v{vS1}, v{T+2}, 14, v{vS1}')
    a(f'v_lshl_add_u32 v{vS1}, v{T+3}, 17, v{vS1}\nv_lshl_add_u32 v{vS1}, v{T+4}, 15, v{vS1}')
    a(f'v_lshl_add_u32 v{vS2}, v{T+2}, 14, v{T}\nv_lshl_add_u32 v{vS2}, v{T+1}, 12, v{vS2}')
    a(f'v_lshl_add_u32 v{vS2}, v{T+4}, 6, v{vS2}\nv_lshl_add_u32 v{vS2}, v{T+3}, 10, v{vS2}')
    a(f'v_lshrrev_b32 v{T+5}, 2, v0\nv_lshlrev_b32 v{T+5}, 6, v{T+5}\nv_lshrrev_b32 v{T+6}, 1, v{T}\nv_add_u32 v{T+5}, v{T+5}, v{T+6}')
    a(f's_mul_i32 s{sG}, s{sW}, 20480\nv_add_u32 v{vTR}, s{sG}, v{T+5}')
    a(f'v_lshl_add_u32 v{vTR0}, v{T+4}, 5, v{vTR}\nv_xor_b32 v{vTR1}, 128, v{vTR0}')
    sQ, sK, sV, sO = 68, 72, 76, sR1
    srd(a, sQ, P(5), 512*8192); srd(a, sK, P(6), 512*8192); srd(a, sV, P(7), 512*8192); srd(a, sO, P(8), 4096*1024)
    SO = (0, 2, 1, 3, 4, 6, 5, 7) if cfg.cord else range(8)
    chunks = [(m, s) for m in 'qkv' for s in SO] + [('o', (sg, z)) for sg in range(4) for z in range(2)]
    ops = []
    def waitfor(tag):
        last = max(i for i, t in enumerate(ops) if t == tag)
        a(f's_waitcnt vmcnt({len(ops) - 1 - last})')
    sB1, sB2, s2W = 96, 97, 98
    a(f's_lshl_b32 s{sB1}, s{sIDX}, 8\ns_lshl_b32 s{sT}, s{sW}, 6\ns_add_u32 s{sB1}, s{sB1}, s{sT}')
    a(f's_lshl_b32 s{sB2}, s{sIDX}, 17\ns_lshl_b32 s{sT}, s{sW}, 8\ns_add_u32 s{sB2}, s{sB2}, s{sT}')
    a(f's_lshl_b32 s{s2W}, s{sW}, 1')
    def issue(ci):
        m, x = chunks[ci]
        a(f's_add_u32 m0, s{sG}, {(ci % 5) * 4096}')
        if m != 'o':
            a(f's_xor_b32 s{sT}, s{s2W}, {x}\ns_lshl_b32 s{sT}, s{sT}, 19\ns_add_u32 s{sT}, s{sT}, s{sB1}')
            rows = [32*(c>>1) + (c&1) for c in range(4)]; rs = 8192; vs = vS1; sr = {'q': sQ, 'k': sK, 'v': sV}[m]
        else:
            sg, z = x
            a(f's_xor_b32 s{sT}, s{sW}, {sg}\ns_lshl_b32 s{sT}, s{sT}, 15\ns_add_u32 s{sT}, s{sT}, s{sB2}')
            if z: a(f's_add_u32 s{sT}, s{sT}, 128')
            rows = [8*(c>>1) + 2*(c&1) for c in range(4)]; rs = 1024; vs = vS2; sr = sO
        for c in range(4):
            if c: a(f's_add_u32 s{sT}, s{sT}, {(rows[c]-rows[c-1])*rs}\ns_add_u32 m0, m0, 1024')
            a(f'buffer_load_dwordx4 v{vs}, {S(sr)}, s{sT} offen lds'); ops.append(ci)
    for ci in range(4): issue(ci)
    a(f'v_and_b32 v{T}, 15, v0\nv_lshrrev_b32 v{T+1}, 4, v0')
    a(f's_lshl_b32 s{sT}, s{sW}, 10')
    a(f'v_bfe_u32 v{T+3}, v0, 4, 1\nv_bfe_u32 v{T+4}, v0, 5, 1')
    a(f'v_bfe_u32 v{T+2}, v0, 2, 1\nv_xor_b32 v{T+2}, v{T+2}, v{T+3}\nv_lshlrev_b32 v{T+2}, 4, v{T+2}')
    a(f'v_lshl_add_u32 v{vKw}, v{T}, 5, v{T+2}\nv_lshl_add_u32 v{vKw}, v{T+4}, 9, v{vKw}\nv_add_u32 v{vKw}, s{sT}, v{vKw}')
    a(f'v_and_b32 v{T+2}, 1, v0\nv_xor_b32 v{T+2}, v{T+2}, v{T+3}\nv_lshlrev_b32 v{T+2}, 4, v{T+2}\nv_bfe_u32 v{T+5}, v0, 1, 1\nv_lshl_add_u32 v{T+2}, v{T+5}, 3, v{T+2}')
    a(f'v_lshrrev_b32 v{T+5}, 2, v0\nv_lshl_add_u32 v{vTX}, v{T+5}, 5, v{T+2}')
    a(f'v_and_b32 v{T+5}, 7, v0\nv_bfe_u32 v{T+6}, v0, 3, 1\nv_lshlrev_b32 v{vOw}, 7, v{T+1}\nv_lshl_add_u32 v{vOw}, v{T+5}, 4, v{vOw}\nv_lshl_add_u32 v{vOw}, v{T+6}, 3, v{vOw}')
    a(f's_lshl_b32 s{sT}, s{sW}, 9\nv_add_u32 v{vOw}, s{sT}, v{vOw}')
    a(f'v_bfe_u32 v{T+5}, v0, 2, 2\nv_and_b32 v{T+6}, 3, v0')
    a(f'v_lshlrev_b32 v{vPst}, 4, v{T+6}\nv_lshl_add_u32 v{vPst}, v{T+3}, 11, v{vPst}\nv_lshl_add_u32 v{vPst}, v{T+5}, 12, v{vPst}\nv_lshl_add_u32 v{vPst}, v{T+4}, 14, v{vPst}')
    a(f's_lshl_b32 s{sT}, s{sW}, 16\ns_lshl_b32 s{sT2}, s{sIDX}, 6\ns_add_u32 s{sT}, s{sT}, s{sT2}\nv_add_u32 v{vPst}, s{sT}, v{vPst}')
    if cfg.swz: a(f'v_bfe_u32 v{T+7}, v{vPst}, 11, 4\nv_lshlrev_b32 v{T+7}, {cfg.swz}, v{T+7}\nv_and_b32 v{T+7}, 0x7c0, v{T+7}\nv_xor_b32 v{vPst}, v{vPst}, v{T+7}')
    a(f'v_lshlrev_b32 v{vMst}, 2, v{T+6}\nv_lshl_add_u32 v{vMst}, v{T+3}, 5, v{vMst}\nv_lshl_add_u32 v{vMst}, v{T+4}, 4, v{vMst}')
    a(f'v_mov_b32 v{vIdx}, 0x4444\nv_mov_b32 v{T+7}, 0xeeee\nv_cmp_lt_u32 vcc, 7, v{T}\nv_cndmask_b32 v{vIdx}, v{vIdx}, v{T+7}, vcc')
    a(f'v_and_b32 v{T+7}, 1, v0\nv_lshlrev_b32 v{T+7}, 4, v{T+7}\nv_mov_b32 v{T+8}, 0x3f80\nv_lshlrev_b32 v{T+7}, v{T+7}, v{T+8}')
    a(f'v_and_b32 v{T+8}, 6, v0')
    a(f'v_cmp_eq_u32 vcc, 0, v{T+8}\nv_cndmask_b32 v{SEL}, 0, v{T+7}, vcc\nv_cndmask_b32 v{SEL+2}, 0, v{T+7}, vcc')
    a(f'v_cmp_eq_u32 vcc, 4, v{T+8}\nv_cndmask_b32 v{SEL+1}, 0, v{T+7}, vcc\nv_cndmask_b32 v{SEL+3}, 0, v{T+7}, vcc')
    a(f's_lshl_b32 s{sT}, s{sIDX}, 1\ns_and_b32 s{sT2}, s{sW}, 1\ns_add_u32 s{sT}, s{sT}, s{sT2}')
    a(f's_and_b32 s{sT2}, s{sT}, 48\ns_add_u32 s{sT}, s{sT}, s{sT2}\ns_lshr_b32 s{sT2}, s{sW}, 1\ns_lshl_b32 s{sT2}, s{sT2}, 4\ns_add_u32 s{sT}, s{sT}, s{sT2}')
    a(f's_lshl_b32 s{sRED}, s{sT}, 11\ns_add_u32 s{sRED}, s{sRED}, {PART:#x}\ns_lshl_b32 s{sMST}, s{sT}, 6\ns_add_u32 s{sMST}, s{sMST}, {MEMS:#x}')
    a(f's_mov_b32 s{sMEM}, {MEMS:#x}\ns_mov_b32 s{sPART}, {PART:#x}\ns_mov_b32 s{sPART2}, {PART+0x8000:#x}')
    srd(a, sR2, P(4), 8192)
    a(f's_lshr_b32 s{sT2}, s{sT}, 3\ns_lshl_b32 s{sT2}, s{sT2}, 6')
    a(f's_bfe_u32 s{sS}, s{sT}, 0x20001\ns_lshl_b32 s{sS}, s{sS}, 3\ns_add_u32 s{sT2}, s{sT2}, s{sS}')
    a(f's_and_b32 s{sS}, s{sT}, 1\ns_lshl_b32 s{sS}, s{sS}, 12\ns_add_u32 s{sT2}, s{sT2}, s{sS}')
    a(f'v_lshlrev_b32 v{T+7}, 1, v{T+6}\nv_lshl_add_u32 v{T+7}, v{T+3}, 11, v{T+7}\nv_lshl_add_u32 v{T+7}, v{T+4}, 10, v{T+7}')
    U = 80
    a(f'buffer_load_ushort v{U}, v{T+7}, {S(sR2)}, s{sT2} offen\nbuffer_load_ushort v{U+1}, v{T+7}, {S(sR2)}, s{sT2} offen offset:32'); ops += ['m0', 'm0']
    for i in range(4): a(f'v_mov_b32 v{U+4+i}, -1')
    for z in range(2):
        a(f'buffer_store_dwordx4 v[{U+4}:{U+7}], v{vPst}, {S(sWS)}, s{sPART2 if z else sPART} offen sc1'); ops.append('i')
    c = (128 ** -0.5) * math.log2(math.e)
    a(f's_mov_b32 s{sC}, {f2u(c):#x}\ns_mov_b32 s{sNC}, {f2u(-c):#x}')
    a(f's_lshl_b32 s{sT}, s{sIDX}, 13')
    a(f's_add_u32 s{sKX}, s{sT}, {KX:#x}\ns_add_u32 s{sVX}, s{sT}, {VX:#x}\ns_add_u32 s{sPUB}, s{sT}, {KVM-0x40000:#x}')
    a(f's_lshl_b32 s{sT}, s{sW}, 10\ns_add_u32 s{sPUB}, s{sPUB}, s{sT}')
    a(f's_lshl_b32 s{sT}, s{sIDX}, 7\ns_add_u32 s{sFL}, s{sT}, {FLG:#x}\ns_mov_b32 s{sTAG}, 0')
    kxdma = [f's_mov_b32 m0, s{sM0K}',
             f'buffer_load_dwordx4 v{vMem}, {S(sWS)}, s{sKX} offen sc1 lds',
             f'buffer_load_dwordx4 v{vMem}, {S(sWS)}, s{sKX} offen offset:1024 sc1 lds',
             f's_add_u32 s{sKX}, s{sKX}, 0x40000']
    vxld = [f'buffer_load_dwordx4 v[{VXF}:{VXF+3}], v{vMem}, {S(sWS)}, s{sVX} offen sc1',
            f'buffer_load_dwordx4 v[{VXF+4}:{VXF+7}], v{vMem}, {S(sWS)}, s{sVX} offen offset:1024 sc1',
            f's_add_u32 s{sVX}, s{sVX}, 0x40000']
    def init_mem():
        waitfor('m0')
        a(f'v_lshl_or_b32 v{U}, v{U+1}, 16, v{U}\nv_min_u32 v{U}, -2, v{U}')
        a(f's_mov_b32 exec_lo, 0x000f000f\ns_mov_b32 exec_hi, 0x000f000f')
        a(f'buffer_store_dword v{U}, v{vMst}, {S(sWS)}, s{sMST} offen sc1')
        a(f's_add_u32 s{sS}, s{sMST}, 0x2000\nbuffer_store_dword v{U+4}, v{vMst}, {S(sWS)}, s{sS} offen sc1')
        a('s_mov_b64 exec, -1'); ops.extend(['i', 'i'])
    def publish_id():
        waitfor('i'); a('s_barrier')
        a(f's_getreg_b32 s{sT}, hwreg(HW_REG_XCC_ID)\ns_and_b32 s{sT}, s{sT}, 0xf\ns_add_u32 s{sT}, s{sT}, 1')
        a(f's_lshl_b32 s{sT2}, s{sIDX}, 2\nv_mov_b32 v{U}, s{sT}\nv_mov_b32 v{U+1}, 0')
        a(f's_cmp_lg_u32 s{sW}, 0\ns_cbranch_scc1 L_c_noid')
        a(f's_mov_b64 exec, 1\nbuffer_store_dword v{U}, v{U+1}, {S(sDBG)}, s{sT2} offen offset:128 sc1\ns_mov_b64 exec, -1')
        a('L_c_noid:')
    idld = f'buffer_load_dword v{U+2}, v{U+3}, {S(sDBG)}, 0 offen offset:128 sc1'
    def ask():
        a(f'v_bfe_u32 v{U+3}, v{vL16}, 2, 7')
        a(idld); a(f'buffer_load_dword v{U+8}, v{U+1}, {S(sDBG)}, 0 offen sc1'); ops.extend(['q', 'q'])
    def answer():
        waitfor('q')
        a(f's_mov_b32 s{sSPIN}, 0')
        a('L_c_ids:')
        a(f'v_cmp_eq_u32 vcc, 0, v{U+2}\ns_cbranch_vccz L_c_ids_ok')
        a(f's_sleep 2\n{idld}\ns_waitcnt vmcnt(0)')
        a(f's_add_u32 s{sSPIN}, s{sSPIN}, 1\ns_cmp_lt_u32 s{sSPIN}, 0x400000\ns_cbranch_scc1 L_c_ids\ns_branch L_end')
        a('L_c_ids_ok:')
        a(f'v_readfirstlane_b32 s{sT}, v{U+2}\nv_readfirstlane_b32 s{sT2}, v{U+8}')
        a(f'v_cmp_ne_u32 s[80:81], s{sT}, v{U+2}')
        a(f's_cmp_ge_u32 s{sT2}, {cfg.need0}\ns_cbranch_scc1 L_c_g0_ok')
        wait_word(a, 'L_c_g0', sDBG, 0, cfg.need0, v=U+8)
        for l in vxld: a(l)
        a(f'buffer_load_dword v{U+8}, v{vPF}, {S(sWS)}, s{sKX} offen sc1\nbuffer_load_dword v{U+8}, v{vPF}, {S(sWS)}, s{sKX} offen offset:4032 sc1')
        ops.extend(['x'] * 4)
    TMP = 112
    n = len(chunks)
    for ci in range(n):
        if ci + 4 < n: issue(ci + 4)
        if ci == 2: init_mem()
        if ci == 8: publish_id()
        if ci == n - 7: ask()
        if ci == n - 2: answer()
        waitfor(ci)
        m, x = chunks[ci]
        bl = [(m, t, x) for t in range(2)] if m != 'o' else [('o', 2*x[1]+t, x[0]) for t in range(2)]
        post = []
        for t, b in enumerate(bl):
            k, i = LOC[b]
            if k == 'es': k, r0 = 'v', TMP + 8*t; post.append((i, r0))
            elif k == 'ls': k, r0 = 'v', 24 + 8*i
            else: r0 = i
            for c in range(4):
                if m == 'o': a(f'ds_read_b64_tr_b16 {k}[{r0+2*c}:{r0+2*c+1}], v{vTR} offset:{(ci%5)*4096 + c*1024 + t*32}')
                else: a(f'ds_read_b64_tr_b16 {k}[{r0+2*c}:{r0+2*c+1}], v{vTR1 if t else vTR0} offset:{(ci%5)*4096 + c*1024}')
        a('s_waitcnt lgkmcnt(0)')
        for i, r0 in post:
            for h in range(2):
                va, off = ldsaddr(L_ES + i*8192 + h*1024)
                a(f'ds_write_b128 v{va}, v[{r0+4*h}:{r0+4*h+3}] offset:{off}')
        if post: a('s_waitcnt lgkmcnt(0)')
    a('s_barrier')
    stamp(a, cfg, 1)
    if cfg.x_stop:
        stamp(a, cfg, 2); stamp(a, cfg, 3); return
    a(f's_lshl_b32 s{sT}, s{sW}, 11\ns_add_u32 s{sM0K}, s{sT}, {L_KX}\ns_lshl_b32 s{sT}, s{sW}, 8\ns_add_u32 s{sM0D}, s{sT}, {L_DUM}')
    for l in kxdma: a(l)
    a(f's_bitcmp1_b32 s{sW}, 0\ns_cselect_b32 s{sPF}, s{sVX}, s{sKX}\ns_lshr_b32 s{sT2}, s{sW}, 1\ns_lshl_b32 s{sT2}, s{sT2}, 12\ns_add_u32 s{sPF}, s{sPF}, s{sT2}\ns_mov_b32 s{sS}, 0')
    for i in range(7):
        for h in range(2):
            va, off = ldsaddr(L_LS + i*8192 + h*1024)
            a(f'ds_write_b128 v{va}, v[{24+8*i+4*h}:{24+8*i+4*h+3}] offset:{off}')
    a('s_waitcnt vmcnt(2) lgkmcnt(0)')
    for l in stage_reads('es', range(10)): a(l)
    a(f's_mov_b32 m0, s{sM0D}\ns_mov_b32 s{sRARE}, 0\ns_mov_b32 s{sSPIN}, 0')
    for i in range(16): a(f'v_mov_b32 v{AV+i}, 0')
    stamp(a, cfg, 2)
    if cfg.stamps: a('s_memtime s[92:93]')
    if cfg.prof:
        for i in range(12): a(f's_mov_b32 s{68+i}, 0')
    a('s_waitcnt lgkmcnt(0)')
    a('s_cmp_lg_u64 s[80:81], 0\ns_cbranch_scc1 L_cs_step')
    a('s_branch L_cs_step' if cfg.force_slow else 's_branch L_cf_step')
    for pre, sc in (('L_cf', ''), ('L_cs', ' sc1')):
        step_loop(a, cfg, pre, sc, kxdma, vxld)
    a('L_c_last:')
    a(f's_add_u32 s{sPUB}, s{sPUB}, 0x40000\ns_waitcnt lgkmcnt(0)')
    for b in PORD[RARE_AT:] + HELD:
        if b[0] != 'q': a(smf(b))
    for l in KPK + VPK: a(l)
    a(f'buffer_store_dwordx4 v[{PUB}:{PUB+3}], v{vL16}, {S(sWS)}, s{sPUB} offen sc1')
    a('s_waitcnt vmcnt(0)\ns_barrier')
    a(f's_cmp_lg_u32 s{sW}, 0\ns_cbranch_scc1 L_c_done')
    a(f'v_mov_b32 v24, 64\nv_mov_b32 v25, 0\ns_mov_b64 exec, 1\nbuffer_store_dword v24, v25, {S(sWS)}, s{sFL} offen sc1\ns_mov_b64 exec, -1')
    a('L_c_done:')
    stamp(a, cfg, 3)
    if cfg.stamps: a('s_memtime s[94:95]')
    if cfg.prof:
        a(f's_lshl_b32 s{sT}, s{sIDX}, 2\ns_add_u32 s{sT}, s{sT}, s{sW}\ns_lshl_b32 s{sT}, s{sT}, 6\ns_add_u32 s{sT}, s{sT}, {TS+0x8000:#x}\nv_mov_b32 v25, 0')
        for i in range(12):
            a(f'v_mov_b32 v24, s{68+i}\nbuffer_store_dword v24, v25, {S(sWS)}, s{sT} offen offset:{4*i}')

def step_loop(a, cfg, pre, sc, kxdma, vxld):
    cnt = [0]
    PAIRS = list(range(16, 42, 2)) + list(range(68, 80, 2))
    def ts(trace_only=False):
        if (cfg.prof and not trace_only) or cfg.trace:
            p = PAIRS[cnt[0]]
            a(f's_memtime s[{p}:{p+1}]'); cnt[0] += 1
    DPP = 'row_mask:0xf bank_mask:0xf'
    LO, HI = 'row_mask:0xf bank_mask:0x3', 'row_mask:0xf bank_mask:0xc'
    idn = 'quad_perm:[0,1,2,3]'
    ESR = stage_reads('es', range(10))
    def warm(n):
        for i in range(n): a('v_mov_b32 v0, v0\ns_nop 1')
    def count(i):
        if cfg.prof: a(f's_add_u32 s{78+i}, s{78+i}, 63')
    def bound(back):
        a(f's_add_u32 s{sSPIN}, s{sSPIN}, 1\ns_cmp_lt_u32 s{sSPIN}, 0x400000\ns_cbranch_scc1 {back}\ns_branch L_end')
    def ld2(r, va, so): return f'buffer_load_dwordx4 v[{r}:{r+3}], v{va}, {S(sWS)}, s{so} offen sc1\nbuffer_load_dwordx4 v[{r+4}:{r+7}], v{va}, {S(sWS)}, s{so} offen offset:1024 sc1'
    pmA, pmB = ld2(F0, vMem, sMEM), ld2(F0R, 0, sMEM)
    RLB = 96
    assert cfg.es3 <= 18
    ppA, ppB = ld2(RL, vL16, sRED), ld2(RLB, vL16, sRED)
    def chk_mem(r): return f'v_cmp_eq_u32 vcc, -1, v{r}\nv_cmp_eq_u32 s[50:51], -1, v{r+4}\ns_or_b64 vcc, vcc, s[50:51]'
    def red(r): return f'v_smfmac_f32_16x16x64_bf16 v[{RDA}:{RDA+3}], v[{SEL}:{SEL+3}], v[{r}:{r+7}], v{vIdx}'
    def chk_part(r): return f'{red(r)}\nv_bitop3_b32 v0, v{r}, v{r+4}, s{sTAG} bitop3:0x7e\nv_and_b32 v0, 1, v0\nv_cmp_ne_u32 vcc, 0, v0'
    zr = f's_nop 3\nv_mov_b64 v[{RDA}:{RDA+1}], 0\nv_mov_b64 v[{RDA+2}:{RDA+3}], 0'
    def mld(z, rho): return f'buffer_load_dwordx4 v[{(F0R if rho else F0)+4*z}:{(F0R if rho else F0)+4*z+3}], v{0 if rho else vMem}, {S(sWS)}, s{sMEM} offen offset:{1024*z} sc1'
    PM_ = [smf(b) for b in PORD]
    def twin(z, src, dst):
        for i in range(4): a(f'v_mov_b32_dpp v{dst+4*z+i}, v{src+4*z+i} row_ror:8 {DPP}')
    def wr(z, rho): a(f'ds_write_b128 v{0 if rho else vMem}, v[{(F0R if rho else F0)+4*z}:{(F0R if rho else F0)+4*z+3}] offset:{L_MEM+1024*z}')
    a.label(f'{pre}_pm0_retry')
    a(pmA)
    for _ in range(cfg.sp4): a('s_nop 3')
    a.label(f'{pre}_pm0_loop')
    a(pmB); count(0)
    a('s_waitcnt vmcnt(2)'); a(chk_mem(F0)); a(f's_cbranch_scc1 {pre}_pm0_b')
    wr(0, 0); wr(1, 0); twin(0, F0, F0R)
    a(f's_branch {pre}_pm0_go')
    a.label(f'{pre}_pm0_b')
    a(pmA); count(0)
    a('s_waitcnt vmcnt(2)'); a(chk_mem(F0R)); a(f's_cbranch_scc0 {pre}_pm0_bok')
    bound(f'{pre}_pm0_loop')
    a.label(f'{pre}_pm0_bok')
    wr(0, 1); wr(1, 1); twin(0, F0R, F0); twin(1, F0R, F0)
    a.label(f'{pre}_pm0_go')
    a('s_nop 1')
    for m in PM_[:6]: a(m)
    a(f's_branch {pre}_pm1_join')
    a.label(f'{pre}_pm1_retry')
    a(mld(1, 0)); count(0)
    a(f's_waitcnt vmcnt(1)\nv_cmp_eq_u32 vcc, -1, v{F0R+4}\ns_cbranch_vccnz {pre}_pm1_again')
    wr(1, 1); twin(1, F0R, F0)
    a(f's_nop 0\ns_branch {pre}_pm1_join')
    a.label(f'{pre}_pm1_again')
    a(mld(1, 1)); count(0); bound(f'{pre}_pm1')
    a.label(pre + '_pp_retry')
    a(ppA); count(1); a(zr)
    if cfg.dual1:
        a('s_waitcnt vmcnt(2)'); a(chk_part(RLB))
        a(f's_cbranch_vccz {pre}_pp_join')
        a(ppB); count(1); a(zr)
    bound(pre + '_pp')
    a.label(pre + '_rare')
    a(f's_cmp_lg_u32 s{sW}, 0\ns_cbranch_scc1 {pre}_nofl')
    a(f's_sub_u32 s{sT}, s{sS}, 1')
    a(f'v_mov_b32 v{F0}, s{sT}\nv_mov_b32 v0, 0\ns_mov_b64 exec, 1\nbuffer_store_dword v{F0}, v0, {S(sWS)}, s{sFL} offen sc1\ns_mov_b64 exec, -1')
    if cfg.clk:
        a(f's_memrealtime s[16:17]\ns_memtime s[18:19]\ns_waitcnt lgkmcnt(0)\nv_mov_b32 v{F0}, s16\nv_mov_b32 v{F0+1}, s18')
        a(f's_lshl_b32 s{sT}, s{sIDX}, 7\ns_lshl_b32 s{sT2}, s{sS}, 1\ns_and_b32 s{sT2}, s{sT2}, 0x78\ns_add_u32 s{sT}, s{sT}, s{sT2}\ns_add_u32 s{sT}, s{sT}, {TS+0x8000:#x}')
        a(f's_mov_b64 exec, 1\nbuffer_store_dwordx2 v[{F0}:{F0+1}], v0, {S(sWS)}, s{sT} offen\ns_mov_b64 exec, -1')
    a.label(pre + '_nofl')
    a(f's_cmp_eq_u32 s{sS}, 63\ns_cbranch_scc1 L_c_last')
    a(f's_add_u32 s{sT}, s{sS}, 5\ns_lshr_b32 s{sT}, s{sT}, 3\ns_lshl_b32 s{sG}, s{sT}, 2\ns_add_u32 m0, s{sM0D}, {L_CNT - L_DUM}\nv_mov_b32 v0, 0')
    a(f'buffer_load_dword v0, {S(sDBG)}, s{sG} offen sc1 lds')
    a(f's_branch {pre}_rare_done')

    a.label(pre + '_step')
    ts()
    a(f'v_xor_b32 v0, 128, v{vMem}')
    a(mld(0, 0)); a(mld(0, 1))
    a('s_waitcnt vmcnt(4)')
    for l in ESR[cfg.es3:]: a(l)
    for _ in range(cfg.sp2): a('s_nop 3')
    a(mld(1, 0))
    for _ in range(cfg.sp3): a('s_nop 3')
    a(mld(1, 1))
    warm(cfg.wm2)
    a(f's_waitcnt vmcnt(3) lgkmcnt(0)\nds_write_b128 v{vMem}, v[{F0}:{F0+3}] offset:{L_MEM}')
    a(f'v_cmp_eq_u32 vcc, -1, v{F0}\ns_cbranch_vccnz {pre}_pm0_retry')
    for m in PM_[:3]: a(m)
    a('s_waitcnt vmcnt(2)')
    for m in PM_[3:6]: a(m)
    a.label(pre + '_pm1')
    a(f's_waitcnt vmcnt(1)\nds_write_b128 v{vMem}, v[{F0+4}:{F0+7}] offset:{L_MEM+1024}')
    a(f'v_cmp_eq_u32 vcc, -1, v{F0+4}\ns_cbranch_vccnz {pre}_pm1_retry')
    a.label(pre + '_pm1_join')
    ts()
    a(PM_[6]); a(f'v_xor_b32 v0, 2048, v{vMem}'); a(PM_[7]); a(PM_[8])
    a('s_waitcnt lgkmcnt(0)\ns_barrier')
    ts()
    R = []
    for f, (sl, rho) in enumerate(OTH):
        if f and f % 2 == 0: R.append(f'v_xor_b32 v0, {(sl//2)*2048 + rho*128}, v{vMem}')
        R.append(f'ds_read_b128 v[{FO+4*f}:{FO+4*f+3}], v0 offset:{L_MEM + (sl%2)*1024}')
    kxr = [f'ds_read_b128 v[{KXF+4*(2*u+T)}:{KXF+4*(2*u+T)+3}], v{vL16} offset:{L_KX + (T*4+u)*1024}' for u in range(4) for T in range(2)]
    side = []
    if not cfg.x_nopf: side.append(f'buffer_load_dword v{vPF}, {S(sWS)}, s{sPF} offen sc1 lds')
    if not cfg.x_nopub: side.append(f'buffer_store_dwordx4 v[{PUB}:{PUB+3}], v{vL16}, {S(sWS)}, s{sPUB} offen sc1')
    fill = R + kxr + side
    for _ in range(5): a(fill.pop(0))
    a('s_waitcnt vmcnt(0)')
    issued = 4
    for i in range(9, len(PORD)):
        m, rho, sl = PORD[i]
        waited = False
        if sl >= 2:
            f = OTH.index((sl, rho))
            if m == 'q' and f % 2 == 0:
                assert f + 1 < issued
                a(f's_waitcnt lgkmcnt({min(15, issued - f - 2)})')
        if i == RARE_AT:
            assert not fill
            a(f's_cmp_eq_u32 s{sRARE}, 3\ns_cbranch_scc1 {pre}_rare')
            a.label(pre + '_rare_done')
        a(PM_[i])
        if i == 11 or i == 23: ts()
        if fill:
            l = fill.pop(0); a(l)
            if l.startswith('ds_read'): issued += 1
    ts()
    HM = [smf(b) for b in HELD]
    h1, h2 = cfg.h1, cfg.h2
    for m in HM[:h1]: a(m); a('s_nop 0')
    a(f'v_cvt_pk_bf16_f32 v{AQ+3}, v{AQ+2}, v{AQ+3}\nv_cvt_pk_bf16_f32 v{AQ+2}, v{AQ}, v{AQ+1}')
    a(KPK[0]); a(KPK[1])
    a(f'ds_write_b128 v{vKw}, v[{AQ+2}:{AQ+5}] offset:{L_Q}')
    for m in HM[h1:h2]: a(m)
    a(kxdma[0])
    a('s_waitcnt lgkmcnt(0)\ns_barrier')
    ts()
    qr = [f'ds_read_b64_tr_b16 v[{QKF+4*u+2*t}:{QKF+4*u+2*t+1}], v{vTX} offset:{L_Q + u*1024 + t*512}' for u in range(4) for t in range(2)]
    weave(a, HM[h2:], qr, 2, lead=2)
    SXM = []
    for u in range(4):
        for T in range(2):
            d = SX1 if T else SX
            cc = '0' if u == 0 else f'v[{d}:{d+3}]'
            kb = KXF + 4*(2*u+T)
            SXM.append(f'v_mfma_f32_16x16x32_bf16 v[{d}:{d+3}], v[{kb}:{kb+3}], v[{QKF+4*u}:{QKF+4*u+3}], {cc}')
    SMM = []
    for u in range(4):
        cc = '0' if u == 0 else f'v[{SM}:{SM+3}]'
        SMM.append(f'v_mfma_f32_16x16x32_bf16 v[{SM}:{SM+3}], v[{QKF+4*u}:{QKF+4*u+3}], v[{QKF+4*u}:{QKF+4*u+3}], {cc}')
    LSR = stage_reads('ls', range(7))
    kd = [] if cfg.x_nokv or cfg.kdpos != 0 else [kxdma[1], kxdma[2]]
    a('s_waitcnt lgkmcnt(4)'); a(SXM[0]); a(f'v_mov_b32 v{PM+1}, 0'); a(f'v_mov_b32 v{PM+2}, 0'); a(SXM[1])
    if kd: a(kd[0])
    a(SXM[2])
    if kd: a(kd[1])
    a(SXM[3]); a('s_waitcnt lgkmcnt(0)')
    a(SXM[4]); a(LSR[0]); a(VPK[0]); a(SXM[5]); a(LSR[1]); a(VPK[1]); a(SXM[6]); a(LSR[2]); a(VPK[2]); a(SXM[7]); a(LSR[3]); a(VPK[3])
    X = SX
    C = [f'v_mov_b32_dpp v{X+i}, v{SX1+i} row_ror:8 {HI}' for i in range(4)]
    a(SMM[0]); a(VPK[4]); a(SMM[1]); a(VPK[5]); a(SMM[2]); a(LSR[4]); a(C[0]); a(SMM[3])
    ts()
    t0 = SX1
    MX, NM, LX, Y = 38, 39, 36, SM + 2
    ZO = [f'v_mov_b64 v[{OUT+i}:{OUT+i+1}], 0' for i in range(0, 16, 2)]
    a(C[1]); a(C[2]); a(C[3]); a(LSR[5])
    a(f'v_max3_f32 v{MX}, v{X}, v{X+1}, v{X+2}')
    a(ZO[0]); a(ZO[1]); a(ZO[2])
    a(f'v_mov_b32_dpp v{SM}, v{SM+1} row_ror:8 {HI}\nv_mov_b32_dpp v{SM+2}, v{SM+3} row_ror:8 {HI}')
    a(ZO[3]); a(ZO[4])
    a(f'v_permlane32_swap_b32 v{SM}, v{SM+2}')
    a(f'v_max3_f32 v{MX}, v{MX}, v{X+3}, v{Y}')
    a(ZO[5]); a(ZO[6])
    a(f'v_max_f32_dpp v{t0}, v{MX}, v{MX} row_ror:8 {DPP}\nv_max_f32_dpp v{t0+1}, v{MX}, v{MX} row_ror:8 {DPP}')
    a(ZO[7]); a(f'v_and_b32 v0, -9, v{vOw}')
    a(f'v_permlane32_swap_b32 v{t0}, v{t0+1}')
    a(f'v_max_f32 v{t0+2}, v{t0}, v{t0+1}\nv_max_f32 v{t0+3}, v{t0}, v{t0+1}')
    OA = 120
    a(f'v_xor_b32 v{OA+1}, 512, v0\nv_xor_b32 v{OA+2}, 1024, v0')
    a(f'v_permlane16_swap_b32 v{t0+2}, v{t0+3}')
    a(f'v_max_f32 v{t0}, v{t0+2}, v{t0+3}\nv_mul_f32 v{NM}, s{sNC}, v{t0}')
    E = (X, X+1, X+2, X+3, Y)
    for r in E: a(f'v_fma_f32 v{r}, v{r}, s{sC}, v{NM}')
    for r in E: a(f'v_exp_f32 v{r}, v{r}')
    a(f'v_cvt_pk_bf16_f32 v{PF}, v{X}, v{X+1}\nv_cvt_pk_bf16_f32 v{PF+1}, v{X+2}, v{X+3}')
    a(f'v_mov_b32_dpp v{t0}, v{Y} row_ror:8 {DPP}')
    a(f'v_mov_b32_dpp v{PF+2}, v{PF} row_ror:8 {DPP}\nv_mov_b32_dpp v{PF+3}, v{PF+1} row_ror:8 {DPP}')
    a(f'v_cvt_pk_bf16_f32 v{PM}, v{Y}, v{t0}\nv_cvt_pk_bf16_f32 v{PM+3}, v{Y}, v{t0}')
    a(f'v_mfma_f32_16x16x32_bf16 v[{ACC0}:{ACC0+3}], v[{VXF}:{VXF+3}], v[{PF}:{PF+3}], 0')
    a(f'v_add_f32 v{LX}, v{X}, v{X+1}\nv_add_f32 v{NM}, v{X+2}, v{X+3}')
    a(f'v_mfma_f32_16x16x32_bf16 v[{ACC1}:{ACC1+3}], v[{VXF+4}:{VXF+7}], v[{PF}:{PF+3}], 0')
    a(f'v_add_f32 v{LX}, v{LX}, v{Y}\nv_add_f32 v{LX}, v{LX}, v{NM}')
    a(f'v_mfma_f32_16x16x16_bf16 v[{ACC0}:{ACC0+3}], v[{PUB+2}:{PUB+3}], v[{PM}:{PM+1}], v[{ACC0}:{ACC0+3}]')
    a(f'v_xor_b32 v{OA+3}, 1536, v0')
    a(f'v_add_f32_dpp v{t0}, v{LX}, v{LX} row_ror:8 {DPP}')
    a(f'v_add_f32_dpp v{t0+1}, v{LX}, v{LX} row_ror:8 {DPP}')
    a(f'v_mfma_f32_16x16x16_bf16 v[{ACC1}:{ACC1+3}], v[{PUB+2}:{PUB+3}], v[{PM+2}:{PM+3}], v[{ACC1}:{ACC1+3}]')
    if not cfg.x_nokv: a(vxld[0])
    a(f'v_permlane32_swap_b32 v{t0}, v{t0+1}')
    a(f'v_add_f32 v{t0+2}, v{t0}, v{t0+1}\nv_add_f32 v{t0+3}, v{t0}, v{t0+1}')
    a(LSR[6]); a(LSR[7])
    a(f'v_permlane16_swap_b32 v{t0+2}, v{t0+3}')
    a(f'v_add_f32 v{t0+3}, v{t0+2}, v{t0+3}\nv_rcp_f32 v{t0+3}, v{t0+3}')
    for i in range(4): a(f'v_mov_b32_dpp v{ACC0+i}, v{ACC1+i} {idn} {HI}')
    for i in range(4): a(f'v_mul_f32 v{ACC0+i}, v{ACC0+i}, v{t0+3}')
    OP = PF
    a(f'v_cvt_pk_bf16_f32 v{OP}, v{ACC0}, v{ACC0+1}\nv_cvt_pk_bf16_f32 v{OP+1}, v{ACC0+2}, v{ACC0+3}')
    ts()
    a(f'ds_write_b64 v{vOw}, v[{OP}:{OP+1}] offset:{L_O}')
    def om(b): return f'v_smfmac_f32_16x16x64_bf16 v[{OUT+4*b[1]}:{OUT+4*b[1]+3}], v[{OF+4*b[2]}:{OF+4*b[2]+3}], {B8(b)}, v{vIdx}'
    a(f'v_mov_b64 v[{OF}:{OF+1}], v[{OP}:{OP+1}]\nv_mov_b64 v[{OF+2}:{OF+3}], v[{OP}:{OP+1}]')
    if not cfg.x_nokv: a(vxld[1])
    a(vxld[2])
    for i in range(2):
        a(f'v_mov_b32_dpp v{OF+i}, v{OP+i} row_ror:8 {HI}\nv_mov_b32_dpp v{OF+2+i}, v{OP+i} row_ror:8 {LO}')
    if cfg.kdpos == 1 and not cfg.x_nokv: a(kxdma[1]); a(kxdma[2])
    a(kxdma[3])
    a('s_waitcnt lgkmcnt(0)\ns_barrier')
    for sg in range(1, 4): a(f'ds_read_b128 v[{OF+4*sg}:{OF+4*sg+3}], v{OA+sg} offset:{L_O}')
    ts()
    def fin(z):
        A0, A1 = OUT + 8*z, OUT + 8*z + 4
        F = [f'v_cvt_pk_bf16_f32 v{A0+i}, v{A0+i}, v{A1+i}' for i in range(4)]
        F += [f'v_and_or_b32 v{A0}, v{A0}, -2, s{sTAG}']
        F += [f'buffer_store_dwordx4 v[{A0}:{A0+3}], v{vPst}, {S(sWS)}, s{sPART2 if z else sPART} offen{sc}']
        return F
    HV, HA, HP = 126, 127, 128
    hint = f's_mov_b64 exec, 1\nbuffer_store_dword v{HV}, off, {S(sWS)}, s{sHW}{sc}\ns_mov_b64 exec, -1'
    def probe(i): return f'buffer_load_dword v{HP+i}, v{HA}, {S(sWS)}, s{sHR} offen sc1'
    f0 = fin(0); f1 = fin(1)
    seq = []
    for i in range(4): seq += [om(OORD[i]), LSR[8+i]]
    seq += ['s_waitcnt lgkmcnt(4)', om(OORD[4]), LSR[12], om(OORD[5]), LSR[13]] + [om(b) for b in OORD[6:11]]
    seq += ['s_nop 1', om(OORD[11]), 's_nop 1', om(OORD[12]), 's_waitcnt lgkmcnt(0)', f0[0], f0[1], om(OORD[13]), f0[2], f0[3], f0[4], f0[5]]
    seq += [om(OORD[14]), f'v_mov_b32 v{RDA+4}, -1', om(OORD[15]), f'v_mov_b64 v[{RDA}:{RDA+1}], 0', f'v_mov_b64 v[{RDA+2}:{RDA+3}], 0', f's_mov_b32 s{sSPIN}, 0', f's_cmp_lt_u32 s{sW}, 2'] + f1
    if cfg.hint:
        a(f'v_mov_b32 v{HV}, s{sS}\nv_bfe_u32 v{HA}, v{vL16}, 2, 7')
        ins = {cfg.hpos: hint}
        for i, p in enumerate(cfg.ppos): ins[p] = probe(i)
    else: ins = {}
    younger = []
    for i, l in enumerate(seq):
        if i in ins:
            a(ins[i]); younger.append('p' if i != cfg.hpos else 'h')
        a(l)
        if l.startswith('buffer_'): younger.append('s')
    ts()
    for _ in range(cfg.pd0): a('s_nop 3')
    a(f's_cbranch_scc1 {pre}_e1')
    for l in ESR[:cfg.es1]: a(l)
    for _ in range(cfg.pd1): a('s_nop 3')
    a.label(pre + '_e1')
    ts(True)
    a(ppA)
    a(f's_cbranch_scc0 {pre}_e2')
    for l in ESR[:cfg.es1]: a(l)
    a.label(pre + '_e2')
    a(f's_and_b32 s{sT}, s{sS}, 7\ns_cmp_lg_u32 s{sT}, 3\ns_cbranch_scc1 {pre}_nog')
    a(f's_cmp_eq_u32 s{sS}, 59\ns_cbranch_scc1 {pre}_nog')
    a(f's_lshl_b32 s{sT}, s{sW}, 8\nv_mov_b32 v0, s{sT}\ns_waitcnt vmcnt(6)\nds_read_b32 v0, v0 offset:{L_CNT}\ns_waitcnt lgkmcnt(0)')
    a(f'v_readfirstlane_b32 s{sT2}, v0\ns_cmp_ge_u32 s{sT2}, 192\ns_cbranch_scc1 {pre}_nog')
    wait_word(a, pre + '_gw', sDBG, f's{sG}', 192, v=RDA+6)
    a.label(pre + '_nog')
    a(f's_xor_b32 s{sT}, s{sMST}, 0x2000\ns_mov_b32 m0, s{sM0D}\ns_add_u32 s{sPF}, s{sPF}, 0x40000')
    a(f's_xor_b32 s{sMEM}, s{sMEM}, 0x2000\ns_add_u32 s{sS}, s{sS}, 1\ns_and_b32 s{sRARE}, s{sS}, 3')
    a(f's_add_u32 s{sPUB}, s{sPUB}, 0x40000')
    if cfg.dual1:
        for _ in range(cfg.sp1): a('s_nop 3')
        a(ppB)
    for l in ESR[cfg.es1:cfg.es2]: a(l)
    for i in range(0, 12, 2): a(f'v_mov_b64 v[{AV+i}:{AV+i+1}], 0')
    warm(cfg.wm1)
    a.label(pre + '_pp')
    a(f's_waitcnt vmcnt({2 if cfg.dual1 else 0})')
    a(chk_part(RL)); a(f's_cbranch_vccnz {pre}_pp_retry')
    a.label(pre + '_pp_join')
    ts()
    a(f's_xor_b32 s{sTAG}, s{sTAG}, 1')
    for r in (4, 8):
        for i in range(2): a(f'v_add_f32_dpp v{RDA+i}, v{RDA+i}, v{RDA+i} row_ror:{r} {DPP}')
    a(f's_mov_b32 exec_lo, 0x000f000f\ns_mov_b32 exec_hi, 0x000f000f')
    a(f'v_cvt_pk_bf16_f32 v{RDA}, v{RDA}, v{RDA+1}\nv_min_u32 v{RDA}, -2, v{RDA}')
    a(f'buffer_store_dword v{RDA}, v{vMst}, {S(sWS)}, s{sT} offen{sc}')
    a(f'buffer_store_dword v{RDA+4}, v{vMst}, {S(sWS)}, s{sMST} offen{sc}')
    a(f's_mov_b64 exec, -1\ns_mov_b32 s{sMST}, s{sT}')
    ts(True)
    for l in ESR[cfg.es2:cfg.es3]: a(l)
    if cfg.prof or cfg.trace: a('s_waitcnt lgkmcnt(0)')
    if cfg.prof:
        for i in range(10):
            a(f's_sub_u32 s{sT}, s{20+2*i}, s{18+2*i}\ns_add_u32 s{68+i}, s{68+i}, s{sT}')
    if cfg.trace:
        a(f's_sub_u32 s{sT2}, s{sS}, {cfg.trace}\ns_cmp_gt_u32 s{sT2}, 1\ns_cbranch_scc1 {pre}_notr')
        a(f's_lshl_b32 s{sT}, s{sIDX}, 2\ns_add_u32 s{sT}, s{sT}, s{sW}\ns_lshl_b32 s{sT}, s{sT}, 1\ns_add_u32 s{sT}, s{sT}, s{sT2}\ns_lshl_b32 s{sT}, s{sT}, 6\ns_add_u32 s{sT}, s{sT}, {TS+0x8000:#x}')
        for i in range(cnt[0]): a(f'v_writelane_b32 v0, s{PAIRS[i]}, {i}')
        a('v_writelane_b32 v0, s96, 14\nv_writelane_b32 v0, s98, 15')
        a(f'v_lshrrev_b32 v{MA01}, 2, v{vL16}\ns_mov_b64 exec, 0xffff\nbuffer_store_dword v0, v{MA01}, {S(sWS)}, s{sT} offen\ns_mov_b64 exec, -1')
        a.label(pre + '_notr')
        a(f's_cmp_lg_u32 s{sS}, {cfg.trace-4}\ns_cbranch_scc1 {pre}_nocal')
        a('s_memrealtime s[100:101]\ns_waitcnt lgkmcnt(0)')
        a.label(pre + '_cal')
        a(f's_memrealtime s[96:97]\ns_memtime s[98:99]\ns_waitcnt lgkmcnt(0)\ns_cmp_eq_u32 s96, s100\ns_cbranch_scc1 {pre}_cal')
        a.label(pre + '_nocal')
    if cfg.bar2: a('s_barrier')
    for _ in range(cfg.pd2): a('s_nop 3')
    a.flush()
    a(f's_branch {pre}_step')
```

```python
import sys, os
sys.path.insert(0, os.path.dirname(__file__))
from asmlib import Asm, vr

NAME = 'concat_heads__sliding_local_dilated__memory_aug_recurrent_mem_tr__prompt'
QX, KX, VX, OX, KVM = 0x0000000, 0x1000000, 0x2000000, 0x3000000, 0x4000000
PART, MEMS, FLG = 0x5000000, 0x5080000, 0x5100000
WS_BYTES = 0x10000000
LDS_BYTES = 163840
sWS, sDBG = 4, 8
sR1, sR2, sR3 = 12, 44, 48
sXCD, sIDX, sW = 42, 43, 3
P = lambda i: 16 + 2 * i

class Cfg:
    roles = 'pcao'
    stamps = False
    fsh = 7
    sl1 = 2
    sl2 = 1
    warm = 1
    cord = 1
    need0 = 192
    x_only = -1
    x_stop = 0
    dual1 = 1
    sp4 = 7
    swz = 0
    pd0 = 6
    sp3 = 4
    h1 = 3
    h2 = 8
    kdpos = 0
    hint = 0
    hpos = 8
    ppos = (16, 20, 30)
    bar2 = 1
    np1 = 1
    np2 = 1
    sp1 = 2
    sp2 = 2
    trace = 0
    clk = 0
    x_nokv = 0
    x_nopub = 0
    x_nopf = 0
    x_pfplain = 0
    x_kvplain = 0
    wm1 = 0
    wm2 = 0
    es1 = 10
    es2 = 16
    es3 = 16
    pd1 = 4
    pd2 = 0
    prof = 0
    force_slow = 0
    x_nostore = 0
    x_nodma = 0
    x_plain = 0

def srd(a, d, base, size):
    a(f's_mov_b32 s{d}, s{base}\ns_and_b32 s{d+1}, s{base+1}, 0xffff\ns_mov_b32 s{d+2}, {size:#x}\ns_mov_b32 s{d+3}, 0x20000')

def S(d): return f's[{d}:{d+3}]'

TS = 0x5180000
def stamp(a, cfg, i):
    if cfg.stamps:
        a(f's_memrealtime s[{84+2*i}:{85+2*i}]')
def dump_stamps(a, cfg, n):
    if not cfg.stamps: return
    l = a.newlabel('L_ts')
    a(f's_waitcnt lgkmcnt(0)\ns_cmp_lg_u32 s{sW}, 0\ns_cbranch_scc1 {l}')
    a(f's_lshl_b32 s80, s2, 6\ns_add_u32 s80, s80, {TS:#x}\nv_mov_b32 v1, 0')
    for i in range(n):
        a(f'v_mov_b32 v2, s{84+2*i}\nbuffer_store_dword v2, v1, {S(sWS)}, s80 offen offset:{4*i}')
    a.label(l)

def prologue(a):
    a('s_cmp_ge_u32 s2, 256\ns_cbranch_scc1 L_end')
    a('s_load_dwordx16 s[16:31], s[0:1], 0\ns_load_dwordx8 s[32:39], s[0:1], 64\ns_load_dwordx2 s[40:41], s[0:1], 96')
    a(f's_and_b32 s{sXCD}, s2, 7\ns_lshr_b32 s{sIDX}, s2, 3')
    a(f'v_lshrrev_b32 v1, 6, v0\nv_and_b32 v0, 63, v0\nv_readfirstlane_b32 s{sW}, v1')
    a('s_waitcnt lgkmcnt(0)')
    srd(a, sWS, P(12), WS_BYTES)
    srd(a, sDBG, P(11), 256)
    a(f's_cmp_eq_u32 s{sXCD}, 0\ns_cbranch_scc1 L_chain')
    a(f's_cmp_eq_u32 s{sXCD}, 1\ns_cbranch_scc1 L_apart')

def role_proj(a, cfg):
    vL16, vSRC, vTR, vX, vRD, vZ = 1, 2, 3, 4, 5, 6
    XB = 16
    ACC = 48
    PK = 64
    XV, RB, RD = 72, 80, 84
    sJ, sWH, sPAR, sT, sT2, sI, sXO, sSLOT, sRSLOT, sOUT, sG = 52, 53, 54, 55, 56, 57, 58, 59, 60, 61, 62
    stamp(a, cfg, 0)
    a(f's_sub_u32 s{sJ}, s{sXCD}, 2\ns_lshr_b32 s{sWH}, s{sJ}, 1\ns_and_b32 s{sPAR}, s{sJ}, 1')
    a(f's_cmp_eq_u32 s{sWH}, 0\ns_cselect_b32 s64, s{P(6)}, s{P(7)}\ns_cselect_b32 s65, s{P(6)+1}, s{P(7)+1}')
    a(f's_mov_b32 s{sOUT}, {VX:#x}\ns_cselect_b32 s{sOUT}, {KX:#x}, s{sOUT}')
    a(f's_cmp_eq_u32 s{sWH}, 2\ns_cselect_b32 s64, s{P(5)}, s64\ns_cselect_b32 s65, s{P(5)+1}, s65\ns_cselect_b32 s{sOUT}, {QX:#x}, s{sOUT}')
    srd(a, sR1, 64, 512 * 8192)
    srd(a, sR2, P(3), 2048 * 1024)
    a(f'v_lshlrev_b32 v{vL16}, 4, v0')
    a(f'v_mov_b32 v{vZ}, 0\ns_lshl_b32 s{sT}, s{sIDX}, 7\ns_add_u32 s{sT}, s{sT}, {FLG:#x}')
    a(f's_lshl_b32 s{sT2}, s{sJ}, 12\ns_add_u32 s{sT2}, s{sT2}, {FLG+4096:#x}\ns_lshl_b32 s63, s{sIDX}, {cfg.fsh}\ns_add_u32 s{sT2}, s{sT2}, s63')
    a(f's_cmp_lg_u32 s{sW}, 0\ns_cbranch_scc1 L_pz2')
    a(f'buffer_store_dword v{vZ}, v{vZ}, {S(sWS)}, s{sT2} offen sc1')
    a(f's_cmp_lg_u32 s{sJ}, 0\ns_cbranch_scc1 L_pz2')
    a(f'buffer_store_dword v{vZ}, v{vZ}, {S(sWS)}, s{sT} offen sc1')
    a('L_pz2:')
    a(f'v_lshrrev_b32 v8, 4, v0\nv_lshlrev_b32 v8, 3, v8\nv_bfe_u32 v9, v0, 2, 2\nv_add_u32 v8, v8, v9\nv_lshlrev_b32 v8, 13, v8')
    a(f'v_and_b32 v9, 3, v0\nv_lshlrev_b32 v9, 4, v9\nv_add_u32 v{vSRC}, v8, v9')
    a(f'v_lshrrev_b32 v8, 2, v0\nv_lshlrev_b32 v8, 6, v8\nv_and_b32 v9, 3, v0\nv_lshlrev_b32 v9, 3, v9\nv_add_u32 v8, v8, v9')
    a(f's_lshl_b32 s{sT}, s{sW}, 15\nv_add_u32 v{vTR}, s{sT}, v8')
    a(f's_lshl_b32 s{sT}, s{sW}, 3\ns_and_b32 s{sT2}, s{sT}, 15\ns_lshl_b32 s{sT}, s{sT}, 10')
    for i in range(8):
        a(f's_add_u32 s63, s{sT2}, {i}\nv_xor_b32 v8, s63, v0\nv_lshlrev_b32 v8, 4, v8')
        a(f's_add_u32 s63, s{sT}, {(i//4)*4096}\nv_add_u32 v{XV+i}, s63, v8')
    for uu in range(4):
        a(f'v_lshrrev_b32 v8, 4, v0\nv_or_b32 v8, {4*uu}, v8\nv_and_b32 v9, 15, v0\nv_xor_b32 v8, v8, v9\nv_lshlrev_b32 v8, 4, v8')
        a(f'v_lshlrev_b32 v9, 10, v9\nv_add_u32 v{RB+uu}, v8, v9')
    a(f's_lshl_b32 s{sT}, s{sIDX}, 8\ns_lshl_b32 s{sT2}, s{sW}, 6\ns_add_u32 s{sT}, s{sT}, s{sT2}')
    a(f's_lshl_b32 m0, s{sW}, 15')
    for ch in range(8):
        for c in range(4):
            a(f'buffer_load_dwordx4 v{vSRC}, {S(sR1)}, s{sT} offen lds')
            step = (4 if c % 2 == 0 else 28) * 8192
            a(f's_add_u32 s{sT}, s{sT}, {step:#x}\ns_add_u32 m0, m0, 1024')
    def xdma(only=None):
        for i in range(8):
            if only is not None and i != only: continue
            if i == 0: a(f's_lshl_b32 s{sT}, s{sW}, 13\ns_add_u32 m0, s{sSLOT}, s{sT}')
            a(f'buffer_load_dwordx4 v{XV+i}, {S(sR2)}, s{sXO} offen offset:{1024*(i%4)} lds')
            if i == 3: a('s_add_u32 m0, m0, 4096')
        if only is not None and only != 7: return
        a(f's_add_u32 s{sXO}, s{sXO}, 0x10000\ns_min_u32 s{sXO}, s{sXO}, 0x1f8000\ns_add_u32 s{sSLOT}, s{sSLOT}, 0x8000')
        a(f's_cmp_eq_u32 s{sSLOT}, 0x28000\ns_cselect_b32 s{sSLOT}, 0, s{sSLOT}')
    a(f's_lshl_b32 s{sXO}, s{sPAR}, 15\ns_mov_b32 s{sSLOT}, 0x20000\ns_mov_b32 s{sRSLOT}, 0x20000')
    xdma()
    for ch in range(8):
        a(f's_waitcnt vmcnt({8 + 4*(7-ch)})')
        for c in range(4):
            for t in range(2):
                u = 2 * ch + (c >> 1)
                r = (t * 16 + u) * 4 + 2 * (c & 1)
                a(f'ds_read_b64_tr_b16 a[{r}:{r+1}], v{vTR} offset:{ch*4096 + c*1024 + t*32}')
    a('s_waitcnt lgkmcnt(0)\ns_barrier')
    stamp(a, cfg, 1)
    xdma(); xdma()
    a(f's_lshl_b32 s{sT}, s{sPAR}, 18\ns_add_u32 s{sOUT}, s{sOUT}, s{sT}\ns_lshl_b32 s{sT}, s{sIDX}, 13\ns_add_u32 s{sOUT}, s{sOUT}, s{sT}')
    a(f's_cmp_eq_u32 s{sWH}, 1\ns_cselect_b32 s{sT2}, 11, 10\ns_lshl_b32 s{sT}, s{sW}, s{sT2}\ns_add_u32 s{sOUT}, s{sOUT}, s{sT}')
    a(f's_mov_b32 s{sI}, 0\ns_mov_b32 s{sG}, 0\nv_mov_b32 v7, 1')
    a(f's_cmp_eq_u32 s{sWH}, 1\ns_cbranch_scc1 L_pv_loop')
    for isv in (0, 1):
        lab = 'L_pv_loop' if isv else 'L_pk_loop'
        a.label(lab)
        a(f's_cmp_lt_u32 s{sI}, 3\ns_cbranch_scc1 {lab}_w0')
        a(f's_waitcnt vmcnt(22)\ns_branch {lab}_w1')
        a(f'{lab}_w0:\ns_waitcnt vmcnt(16)')
        a(f'{lab}_w1:\ns_barrier')
        for uu in range(4): a(f'v_add_u32 v{RD+uu}, s{sRSLOT}, v{RB+uu}')
        def rd(u):
            for T in range(2):
                b = XB + ((u % 4) * 2 + T) * 4
                a(f'ds_read_b128 v[{b}:{b+3}], v{RD+u%4} offset:{T*16384+(u//4)*256}')
        for u in range(4): rd(u)
        a(f's_and_b32 s{sT}, s{sI}, 3\ns_cmp_lg_u32 s{sT}, 3\ns_cbranch_scc1 {lab}_nf')
        a(f's_cmp_lt_u32 s{sI}, 7\ns_cbranch_scc1 {lab}_nf')
        a(f's_cmp_lg_u32 s{sW}, 0\ns_cbranch_scc1 {lab}_nf2')
        a(f's_mov_b64 exec, 1\nbuffer_atomic_add v7, v{vZ}, {S(sDBG)}, s{sG} offen sc1\ns_mov_b64 exec, -1')
        a(f'{lab}_nf2:\ns_add_u32 s{sG}, s{sG}, 4')
        a(f'{lab}_nf:')
        for u in range(16):
            a(f's_waitcnt lgkmcnt({min(6, 2*(15-u))})')
            for T in range(2):
                for t in range(2):
                    d = ACC + (t * 2 + T) * 4
                    x = XB + ((u % 4) * 2 + T) * 4
                    w = (t * 16 + u) * 4
                    c = '0' if u == 0 else f'v[{d}:{d+3}]'
                    if isv: a(f'v_mfma_f32_16x16x32_bf16 v[{d}:{d+3}], v[{x}:{x+3}], a[{w}:{w+3}], {c}')
                    else:   a(f'v_mfma_f32_16x16x32_bf16 v[{d}:{d+3}], a[{w}:{w+3}], v[{x}:{x+3}], {c}')
            if u + 4 < 16: rd(u + 4)
            if u % 2 == 0 and not cfg.x_nodma: xdma(u // 2)
        a(f's_add_u32 s{sRSLOT}, s{sRSLOT}, 0x8000\ns_cmp_eq_u32 s{sRSLOT}, 0x28000\ns_cselect_b32 s{sRSLOT}, 0, s{sRSLOT}')
        for f in range(2):
            for hlf in range(2):
                d = ACC + ((f * 2 + (hlf ^ f)) if isv else (hlf * 2 + f)) * 4
                a(f'v_cvt_pk_bf16_f32 v{PK+f*4+hlf*2}, v{d}, v{d+1}\nv_cvt_pk_bf16_f32 v{PK+f*4+hlf*2+1}, v{d+2}, v{d+3}')
            off = f * 1024 if isv else 0
            if cfg.x_nostore: continue
            sc = '' if cfg.x_plain else ' sc1'
            if not isv and f == 1:
                a(f's_add_u32 s{sT}, s{sOUT}, 4096')
                a(f'buffer_store_dwordx4 v[{PK+4}:{PK+7}], v{vL16}, {S(sWS)}, s{sT} offen{sc}')
            else:
                a(f'buffer_store_dwordx4 v[{PK+f*4}:{PK+f*4+3}], v{vL16}, {S(sWS)}, s{sOUT} offen offset:{off}{sc}')
        a(f's_add_u32 s{sOUT}, s{sOUT}, 0x80000\ns_add_u32 s{sI}, s{sI}, 1\ns_cmp_lt_u32 s{sI}, 32')
        a.flush()
        a(f's_cbranch_scc1 {lab}')
        if not isv: a('s_branch L_p_done')
    a('L_p_done:')
    stamp(a, cfg, 2)
    a('s_waitcnt vmcnt(0)\ns_barrier')
    stamp(a, cfg, 3)
    a(f's_cmp_lg_u32 s{sW}, 0\ns_cbranch_scc1 L_p_fl')
    a(f's_mov_b64 exec, 1\nbuffer_atomic_add v7, v{vZ}, {S(sDBG)}, s{sG} offen sc1\ns_mov_b64 exec, -1')
    a('L_p_fl:')

def build(cfg):
    a = Asm()
    hdr = open(os.path.join(os.path.dirname(__file__), '..', 'cdna_kernels', NAME + '.s.ref')).read().split('\n')
    for l in hdr:
        if l.startswith('; @launch'): break
        a.raw(l)
    a.raw(f'; @launch grid=(256,1,1) block=(256,1,1) lds={LDS_BYTES}')
    a.raw('.amdgcn_target "amdgcn-amd-amdhsa--gfx950"\n.text')
    a.raw(f'.globl {NAME}_kernel\n.p2align 8\n.type {NAME}_kernel,@function\n{NAME}_kernel:')
    prologue(a)
    if cfg.x_only >= 0: a(f's_cmp_gt_u32 s{sXCD}, {cfg.x_only}\ns_cbranch_scc1 L_end')
    role_proj(a, cfg)
    if 'a' in cfg.roles:
        from role_att import role_att
        role_att(a, cfg)
    dump_stamps(a, cfg, 8)
    a('s_endpgm')
    a.label('L_chain')
    if 'c' in cfg.roles:
        from role_chain import role_chain
        role_chain(a, cfg)
        dump_stamps(a, cfg, 8)
    a('s_endpgm')
    a.label('L_apart')
    if 'o' in cfg.roles:
        from role_apart import role_apart
        role_apart(a, cfg)
        dump_stamps(a, cfg, 8)
    a.label('L_end')
    a('s_endpgm')
    a.raw(f'''.section .rodata,"a"
.p2align 6
.amdhsa_kernel {NAME}_kernel
  .amdhsa_next_free_vgpr 512
  .amdhsa_next_free_sgpr 102
  .amdhsa_accum_offset 256
  .amdhsa_group_segment_fixed_size 0
  .amdhsa_kernarg_size 104
  .amdhsa_user_sgpr_count 2
  .amdhsa_user_sgpr_kernarg_segment_ptr 1
  .amdhsa_system_sgpr_workgroup_id_x 1
.end_amdhsa_kernel''')
    return a.text()

if __name__ == '__main__':
    sys.modules['gen'] = sys.modules['__main__']
    cfg = Cfg()
    out = None
    for arg in sys.argv[1:]:
        if arg.startswith('roles='): cfg.roles = arg[6:]
        elif arg.startswith('out='): out = arg[4:]
        elif '=' in arg:
            k, v = arg.split('='); setattr(cfg, k, tuple(int(x) for x in v.split(',')) if k == 'ppos' else int(v))
    out = out or os.path.join(os.path.dirname(__file__), '..', 'cdna_kernels', NAME + '.s')
    open(out, 'w').write(build(cfg))
    print('wrote', out)
```

```python
from gen import *
import struct, math
def f2u(x): return struct.unpack('<I', struct.pack('<f', x))[0]

def spin(a, name, srd, soff, target, vtmp, vaddr, scnt, sleep=1):
    a(f's_cmp_lg_u32 s{sW}, 0\ns_cbranch_scc1 {name}_ok')
    a(f's_mov_b32 s{scnt}, 0')
    a.label(name)
    a(f'buffer_load_dword v{vtmp}, v{vaddr}, {S(srd)}, {soff} offen sc1\ns_waitcnt vmcnt(0)')
    a(f'v_cmp_gt_u32 vcc, {target}, v{vtmp}\ns_cbranch_vccz {name}_ok')
    a(f's_sleep {sleep}\ns_add_u32 s{scnt}, s{scnt}, 1\ns_cmp_lt_u32 s{scnt}, 0x200000\ns_cbranch_scc1 {name}')
    a.label(name + '_ok')
    a('s_barrier')

def role_att(a, cfg):
    a.comment('---- attention of the segment rows + output projection')
    vL16, vZ, vONE = 1, 6, 7
    vL8, vKa, vKb, vKr, vOut, vNEG, vRW, vRR, vT = 2, 3, 4, 5, 8, 9, 10, 11, 12
    QF, KF, VF, PB, KM = 16, 32, 64, 80, 96
    vVr = 88
    S0, S1, SMm = 112, 116, 120
    PP, PD, AC, OPK, TT = 124, 130, 136, 152, 160
    OB = 128
    OA = 112
    sJ = 52
    sT, sT2, sS, sB, sTq, sEH, sGD, sNEED, sCNT, sFC, sFA, sC, sNC, sO = range(53, 67)
    MK = 68
    DPP = 'row_mask:0xf bank_mask:0xf'
    srd(a, sR1, P(8), 4096*1024)
    srd(a, sR2, P(10), 2048*2048)
    a(f'v_lshrrev_b32 v{vT}, 1, v0\nv_lshlrev_b32 v{vT}, 10, v{vT}\nv_and_b32 v{vT+1}, 1, v0\nv_lshl_add_u32 v{vT}, v{vT+1}, 4, v{vT}')
    a(f's_lshl_b32 s{sT}, s{sW}, 20\ns_lshl_b32 s{sT2}, s{sIDX}, 5\ns_add_u32 s{sT}, s{sT}, s{sT2}\ns_lshl_b32 m0, s{sW}, 15')
    for i in range(32):
        a(f'buffer_load_dwordx4 v{vT}, {S(sR1)}, s{sT} offen lds')
        a(f's_add_u32 s{sT}, s{sT}, 0x8000\ns_add_u32 m0, m0, 1024')
    a(f's_lshl_b32 s{sT}, s{sW}, 15\nv_lshlrev_b32 v{vL8}, 3, v0\nv_add_u32 v{vL8}, s{sT}, v{vL8}')
    a(f's_and_b32 s{sTq}, s{sW}, 1\ns_lshr_b32 s{sEH}, s{sW}, 1')
    n, g, b4, b5 = vT+1, vT+2, vT+3, 112
    a(f'v_and_b32 v{n}, 15, v0\nv_lshrrev_b32 v{g}, 4, v0\nv_bfe_u32 v{b4}, v0, 4, 1\nv_bfe_u32 v{b5}, v0, 5, 1')
    PRIV = 131072
    a(f'v_lshlrev_b32 v{vKa}, 4, v{n}\nv_lshl_add_u32 v{vKa}, v{b5}, 8, v{vKa}\nv_lshl_add_u32 v{vKa}, v{b4}, 3, v{vKa}')
    a(f's_lshl_b32 s{sT}, s{sW}, 9\ns_add_u32 s{sT}, s{sT}, {PRIV}\nv_add_u32 v{vKa}, s{sT}, v{vKa}')
    a(f'v_lshlrev_b32 v113, 3, v0\ns_add_u32 s{sT}, s{sT}, 2048\nv_add_u32 v{vKb}, s{sT}, v113')
    a(f's_lshl_b32 s{sT}, s{sEH}, 10\ns_add_u32 s{sT}, s{sT}, {PRIV+2048}\nv_add_u32 v{vVr}, s{sT}, v113')
    a(f'v_lshrrev_b32 v113, 2, v0\nv_lshlrev_b32 v113, 4, v113\nv_and_b32 v114, 1, v0\nv_lshl_add_u32 v113, v114, 3, v113\nv_add_u32 v{vKr}, {PRIV}, v113')
    a(f'v_lshlrev_b32 v{vOut}, 11, v{n}\nv_lshl_add_u32 v{vOut}, v{g}, 3, v{vOut}')
    a(f's_lshl_b32 s{sT}, s{sW}, 10\ns_add_u32 s{sT}, s{sT}, {PRIV+8192}\nv_add_u32 v{vRW}, s{sT}, v{vL16}')
    a(f's_lshl_b32 s{sT}, s{sTq}, 12\ns_add_u32 s{sT}, s{sT}, {PRIV+8192}\nv_add_u32 v{vRR}, s{sT}, v{vL16}')
    sc = 128 ** -0.5
    a(f'v_mov_b32 v{vNEG}, {f2u(-1e9/sc):#x}')
    a(f's_lshl_b32 s{sT}, s{sTq}, 4\nv_lshlrev_b32 v113, 2, v{g}\nv_sub_u32 v113, v{n}, v113\nv_add_u32 v113, s{sT}, v113')
    for Tk in range(2):
        for i in range(4):
            m = MK + 2*(4*Tk+i)
            a(f'v_cmp_gt_i32 s[{m}:{m+1}], {16*Tk+i}, v113')
    c = sc * math.log2(math.e)
    a(f's_mov_b32 s{sC}, {f2u(c):#x}\ns_mov_b32 s{sNC}, {f2u(-c):#x}')
    a(f's_lshl_b32 s{sT}, s{sJ}, 12\ns_add_u32 s{sFA}, s{sT}, {FLG+4096:#x}')
    a(f's_mov_b32 s{sS}, s{sJ}\ns_mov_b32 s{sGD}, -1\ns_mov_b32 s{sNEED}, 1\nv_and_b32 v{vONE}, 31, v0\nv_lshlrev_b32 v{vONE}, {cfg.fsh}, v{vONE}')
    for i in range(32):
        if i % 8 == 0: a(f's_waitcnt vmcnt({24 - i})')
        for t in range(2):
            a(f'ds_read_b64_tr_b16 a[{4*i+2*t}:{4*i+2*t+1}], v{vL8} offset:{i*1024 + t*512}')
    stamp(a, cfg, 4)
    a('L_a_loop:')
    a(f's_lshr_b32 s{sT}, s{sS}, 3\ns_cmp_eq_u32 s{sT}, s{sGD}\ns_cbranch_scc1 L_a_g')
    a(f's_mov_b32 s{sGD}, s{sT}\ns_lshl_b32 s{sB}, s{sT}, 2')
    spin(a, 'L_a_gw', sDBG, f's{sB}', 192, vT, vZ, sCNT, 8)
    a('L_a_g:')
    a(f's_lshl_b32 s{sB}, s{sIDX}, 6\ns_add_u32 s{sB}, s{sB}, s{sS}\ns_lshl_b32 s{sB}, s{sB}, 15')
    a(f's_lshl_b32 s{sT}, s{sTq}, 12\ns_add_u32 s{sT}, s{sT}, s{sB}')
    for u in range(4): a(f'buffer_load_dwordx4 v[{QF+4*u}:{QF+4*u+3}], v{vL16}, {S(sWS)}, s{sT} offen offset:{u*1024} sc1')
    for Tk in range(2):
        a(f's_add_u32 s{sT}, s{sB}, {KX + Tk*4096:#x}')
        for u in range(4): a(f'buffer_load_dwordx4 v[{KF+16*Tk+4*u}:{KF+16*Tk+4*u+3}], v{vL16}, {S(sWS)}, s{sT} offen offset:{u*1024} sc1')
    a(f's_lshl_b32 s{sT}, s{sEH}, 12\ns_add_u32 s{sT}, s{sT}, s{sB}\ns_add_u32 s{sT}, s{sT}, {VX:#x}')
    for u in range(4): a(f'buffer_load_dwordx4 v[{VF+4*u}:{VF+4*u+3}], v{vL16}, {S(sWS)}, s{sT} offen offset:{u*1024} sc1')
    a('s_waitcnt vmcnt(4)')
    for u in range(4):
        for Tk, d in ((0, S0), (1, S1)):
            cc = '0' if u == 0 else f'v[{d}:{d+3}]'
            a(f'v_mfma_f32_16x16x32_bf16 v[{d}:{d+3}], v[{KF+16*Tk+4*u}:{KF+16*Tk+4*u+3}], v[{QF+4*u}:{QF+4*u+3}], {cc}')
    for x in range(8):
        a(f'v_cndmask_b32 v{S0+x}, v{S0+x}, v{vNEG}, s[{MK+2*x}:{MK+2*x+1}]')
    MX = TT
    a(f'v_max3_f32 v{MX}, v{S0}, v{S0+1}, v{S0+2}\nv_max3_f32 v{MX}, v{MX}, v{S0+3}, v{S0+4}\nv_max3_f32 v{MX}, v{MX}, v{S0+5}, v{S0+6}\nv_max_f32 v{MX}, v{MX}, v{S0+7}')
    a(f'v_mov_b32 v{PD+1}, 0\nv_mov_b32 v{PD+2}, 0')
    a(f's_lshl_b32 s{sT}, s{sW}, 10\ns_add_u32 s{sO}, s{sB}, s{sT}\ns_add_u32 s{sO}, s{sO}, {KVM:#x}\ns_mov_b32 s{sCNT}, 0')
    a('L_a_cw:')
    a(f'buffer_load_dwordx4 v[{PB}:{PB+3}], v{vL16}, {S(sWS)}, s{sO} offen sc1\ns_waitcnt vmcnt(0)')
    a(f'v_cmp_eq_u32 vcc, -1, v{PB}\ns_cbranch_vccz L_a_cw_ok')
    a(f's_sleep {cfg.sl1}\ns_add_u32 s{sCNT}, s{sCNT}, 1\ns_cmp_lt_u32 s{sCNT}, 0x200000\ns_cbranch_scc1 L_a_cw')
    a('L_a_cw_ok:')
    stamp(a, cfg, 1)
    a(f'ds_write_b64 v{vKa}, v[{PB}:{PB+1}]\nds_write_b64 v{vKb}, v[{PB+2}:{PB+3}]\ns_waitcnt lgkmcnt(0)\ns_barrier')
    for p in range(2): a(f'ds_read_b64 v[{PB+4*p+2}:{PB+4*p+3}], v{vVr} offset:{p*512}')
    for u in range(4):
        for t in range(2):
            a(f'ds_read_b64_tr_b16 v[{KM+4*u+2*t}:{KM+4*u+2*t+1}], v{vKr} offset:{u*512 + t*256}')
    for u in range(4):
        a(f's_waitcnt lgkmcnt({6-2*u})')
        cc = '0' if u == 0 else f'v[{SMm}:{SMm+3}]'
        a(f'v_mfma_f32_16x16x32_bf16 v[{SMm}:{SMm+3}], v[{KM+4*u}:{KM+4*u+3}], v[{QF+4*u}:{QF+4*u+3}], {cc}')
    for i in range(2): a(f'v_mov_b32_dpp v{SMm+i}, v{SMm+2+i} quad_perm:[0,1,2,3] row_mask:0xc bank_mask:0xf')
    t0 = TT + 2
    def allg(op, src):
        a(f'v_mov_b32 v{t0}, v{src}\nv_mov_b32 v{t0+1}, v{src}\nv_permlane32_swap_b32 v{t0}, v{t0+1}')
        a(f'{op} v{t0+2}, v{t0}, v{t0+1}\n{op} v{t0+3}, v{t0}, v{t0+1}\nv_permlane16_swap_b32 v{t0+2}, v{t0+3}\n{op} v{t0}, v{t0+2}, v{t0+3}')
    a(f'v_max3_f32 v{MX}, v{MX}, v{SMm}, v{SMm+1}')
    allg('v_max_f32', MX)
    a(f'v_mul_f32 v{MX}, s{sNC}, v{t0}')
    for x in range(10): a(f'v_fma_f32 v{S0+x}, v{S0+x}, s{sC}, v{MX}')
    for x in range(10): a(f'v_exp_f32 v{S0+x}, v{S0+x}')
    for i, x in enumerate((0, 2, 4, 6, 0, 2)): a(f'v_cvt_pk_bf16_f32 v{PP+i}, v{S0+x}, v{S0+x+1}')
    a(f'v_cvt_pk_bf16_f32 v{PD}, v{SMm}, v{SMm+1}\nv_cvt_pk_bf16_f32 v{PD+3}, v{SMm+1}, v{SMm}')
    for tau in range(4):
        pb = PP + 2*(tau & 1)
        a(f'v_mfma_f32_16x16x32_bf16 v[{AC+4*tau}:{AC+4*tau+3}], v[{VF+4*tau}:{VF+4*tau+3}], v[{pb}:{pb+3}], 0')
    for tau in range(4):
        vb = PB + 4*(tau >> 1) + 2; pd = PD + 2*(tau & 1)
        a(f'v_mfma_f32_16x16x16_bf16 v[{AC+4*tau}:{AC+4*tau+3}], v[{vb}:{vb+1}], v[{pd}:{pd+1}], v[{AC+4*tau}:{AC+4*tau+3}]')
    a(f'v_add_f32 v{MX}, v{S0}, v{S0+1}')
    for x in range(2, 10): a(f'v_add_f32 v{MX}, v{MX}, v{S0+x}')
    allg('v_add_f32', MX)
    a(f'v_rcp_f32 v{t0}, v{t0}')
    for x in range(16): a(f'v_mul_f32 v{AC+x}, v{AC+x}, v{t0}')
    for x in range(8): a(f'v_cvt_pk_bf16_f32 v{OPK+x}, v{AC+2*x}, v{AC+2*x+1}')
    a(f's_lshl_b32 s{sT}, s{sTq}, 12\ns_lshl_b32 s{sT2}, s{sEH}, 11\ns_add_u32 s{sT}, s{sT}, s{sT2}\ns_add_u32 s{sT}, s{sT}, {OX:#x}')
    a(f's_lshl_b32 s{sT2}, s{sS}, 5\ns_add_u32 s{sT2}, s{sT2}, s{sIDX}\ns_lshl_b32 s{sT2}, s{sT2}, 13\ns_add_u32 s{sT}, s{sT}, s{sT2}')
    for uu in range(2): a(f'buffer_store_dwordx4 v[{OPK+4*uu}:{OPK+4*uu+3}], v{vL16}, {S(sWS)}, s{sT} offen offset:{uu*1024} sc1')
    stamp(a, cfg, 2)
    a('s_waitcnt vmcnt(0)\ns_barrier')
    stamp(a, cfg, 4)
    a(f's_cmp_lg_u32 s{sW}, 0\ns_cbranch_scc1 L_a_nf')
    a(f'v_mov_b32 v{vT}, s{sNEED}\ns_lshl_b32 s{sT}, s{sIDX}, {cfg.fsh}\ns_add_u32 s{sT}, s{sT}, s{sFA}')
    a(f's_mov_b64 exec, 1\nbuffer_store_dword v{vT}, v{vZ}, {S(sWS)}, s{sT} offen sc1\ns_mov_b64 exec, -1')
    a('L_a_nf:')
    spin(a, 'L_a_ow', sWS, f's{sFA}', f's{sNEED}', vT, vONE, sCNT, cfg.sl2)
    stamp(a, cfg, 6)
    a(f's_lshl_b32 s{sO}, s{sS}, 18\ns_lshl_b32 s{sT}, s{sW}, 16\ns_add_u32 s{sO}, s{sO}, s{sT}\ns_add_u32 s{sO}, s{sO}, {OX:#x}')
    def ld(f):
        r = OB + 4*(f % 32)
        a(f'buffer_load_dwordx4 v[{r}:{r+3}], v{vL16}, {S(sWS)}, s{sO} offen offset:{(f%4)*1024} sc1')
        if f % 4 == 3: a(f's_add_u32 s{sO}, s{sO}, 4096')
    for f in range(32): ld(f)
    for grp in range(16):
        hh, T = grp // 2, grp % 2
        a(f's_waitcnt vmcnt({min(28, 60 - 4*grp)})')
        for u in range(4):
            f = 4*grp + u; r = OB + 4*(f % 32); wv = 4*(4*hh + u); d = OA + 8*T + 4*(u & 1)
            cc = '0' if hh == 0 and u < 2 else f'v[{d}:{d+3}]'
            a(f'v_mfma_f32_16x16x32_bf16 v[{d}:{d+3}], a[{wv}:{wv+3}], v[{r}:{r+3}], {cc}')
        if grp < 8:
            for u in range(4): ld(32 + 4*grp + u)
    stamp(a, cfg, 7)
    for T in range(2):
        for i in range(4): a(f'v_add_f32 v{OA+8*T+i}, v{OA+8*T+i}, v{OA+8*T+4+i}')
        a(f'ds_write_b128 v{vRW}, v[{OA+8*T}:{OA+8*T+3}] offset:{T*4096}')
    a('s_waitcnt lgkmcnt(0)\ns_barrier')
    a(f's_cmp_ge_u32 s{sW}, 2\ns_cbranch_scc1 L_a_ns')
    for w in range(4): a(f'ds_read_b128 v[{OB+4*w}:{OB+4*w+3}], v{vRR} offset:{w*1024}')
    a(f's_lshl_b32 s{sT}, s{sS}, 16\ns_lshl_b32 s{sT2}, s{sTq}, 15\ns_add_u32 s{sT}, s{sT}, s{sT2}\ns_lshl_b32 s{sT2}, s{sIDX}, 5\ns_add_u32 s{sT}, s{sT}, s{sT2}')
    a('s_waitcnt lgkmcnt(0)')
    for i in range(4): a(f'v_add_f32 v{OB+i}, v{OB+i}, v{OB+4+i}\nv_add_f32 v{OB+8+i}, v{OB+8+i}, v{OB+12+i}')
    for i in range(4): a(f'v_add_f32 v{OB+i}, v{OB+i}, v{OB+8+i}')
    a(f'v_cvt_pk_bf16_f32 v{OB}, v{OB}, v{OB+1}\nv_cvt_pk_bf16_f32 v{OB+1}, v{OB+2}, v{OB+3}')
    a(f'buffer_store_dwordx2 v[{OB}:{OB+1}], v{vOut}, {S(sR2)}, s{sT} offen offset:1024')
    a('L_a_ns:')
    a(f's_add_u32 s{sNEED}, s{sNEED}, 1\ns_add_u32 s{sS}, s{sS}, 6\ns_cmp_lt_u32 s{sS}, 64')
    a.flush()
    a('s_cbranch_scc1 L_a_loop')
    stamp(a, cfg, 5)
```

```python
from gen import *
import struct, math

def f2u(x): return struct.unpack('<I', struct.pack('<f', x))[0]

L_MEM, L_KX, L_Q, L_O, L_LS, L_ES = 0, 8192, 0, 4096, 24576, 81920
vL16, vTX, vMem, vMH1, vMH2, vKw, vTM, vOw, vPst, vMst, vIdx, SEL, VXF = 1, 2, 3, 4, 5, 6, 7, 8, 9, 10, 11, 12, 16
ES0 = 24
F0, F0R = 104, 112
AV, AK, AQ, PUB = 120, 124, 128, 132
FO = 24
KXF, QKF = 72, 104
SX, SX1, SM = 24, 28, 32
ACC0, ACC1, PF, PM = 96, 100, 124, 128
OUT, OF, LS0 = 104, 24, 40
RL, RDA = 112, 104
MA01 = F0
L_DUM = 23552
sT, sT2, sS, sMEM, sPART, sPART2, sRED, sMST, sKX, sVX, sPUB, sFL, sC, sNC, sSPIN, sG = range(52, 68)
sTAG, sLIM, sM0K, sKXB = 82, 83, 13, 14
sP1, sP3 = 48, 49
HINT = MEMS + 0x8000

OORD = [('o',x,0) for x in range(4)] + [('o',x,sg) for x in range(4) for sg in range(1,4)]
OTH = [(2*pr + h, rho) for pr in range(1, 4) for rho in range(2) for h in range(2)]
PORD = [(m,rho,sl) for rho in range(2) for sl in range(2) for m in 'qkv']
PORD += [(m,rho,sl) for (sl,rho) in OTH for m in 'qk']
HELD = [('v',rho,sl) for (sl,rho) in OTH]
def blocks():
    loc = {}
    for i, b in enumerate(PORD[:10]): loc[b] = ('es', i)
    for i, b in enumerate(OORD[-7:]): loc[b] = ('ls', i)
    n = 0
    for b in PORD + HELD + OORD:
        if b in loc: continue
        loc[b] = ('a', 8*n) if n < 32 else ('v', 136 + 8*(n-32)); n += 1
    assert n == 47
    return loc
LOC = blocks()
def breg(b):
    k, i = LOC[b]
    if k == 'es': return 'v', ES0 + 8*i
    if k == 'ls': return 'v', LS0 + 8*i
    return k, i
def B8(b):
    k, i = breg(b); return f'{k}[{i}:{i+7}]'
def ldsaddr(off):
    if off < 65536 - 8192: return vMem, off
    if off < 65536: return vMem, off
    if off < 131072: return vMH1, off - 65536
    return vMH2, off - 131072
def ma(rho, slot):
    b = (F0R if rho else F0) + 4*slot if slot < 2 else FO + 4*OTH.index((slot, rho))
    return b
def smf(b):
    m, rho, slot = b
    acc = {'q': AQ, 'k': AK, 'v': AV}[m]
    f = ma(rho, slot)
    return f'v_smfmac_f32_16x16x64_bf16 v[{acc}:{acc+3}], v[{f}:{f+3}], {B8(b)}, v{vIdx}'
def stage_reads(kind, idxs):
    out = []
    for i in idxs:
        base, r0 = (L_ES, ES0) if kind == 'es' else (L_LS, LS0)
        for h in range(2):
            va, off = ldsaddr(base + i*8192 + h*1024)
            out.append(f'ds_read_b128 v[{r0+8*i+4*h}:{r0+8*i+4*h+3}], v{va} offset:{off}')
    return out
def weave(a, M, F, per=2, lead=0):
    F = list(F)
    for _ in range(lead):
        if F: a(F.pop(0))
    for m in M:
        a(m)
        for _ in range(per):
            if F: a(F.pop(0))
    for f in F: a(f)

def poll(a, name, issue, check, cnt=0):
    a(f's_mov_b32 s{sSPIN}, 0')
    a.label(name)
    for l in issue: a(l)
    a(f's_waitcnt vmcnt({cnt})')
    for l in check: a(l)
    a(f's_cbranch_vccz {name}_ok')
    a(f's_add_u32 s{sSPIN}, s{sSPIN}, 1\ns_cmp_lt_u32 s{sSPIN}, 0x200000\ns_cbranch_scc1 {name}')
    a('s_branch L_end')
    a.label(name + '_ok')

def wait_word(a, name, srd, soff, target, v=0, sleep=2):
    a(f's_mov_b32 s{sSPIN}, 0\nv_mov_b32 v{v+1}, 0')
    a.label(name)
    a(f'buffer_load_dword v{v}, v{v+1}, {S(srd)}, {soff} offen sc1\ns_waitcnt vmcnt(0)')
    a(f'v_readfirstlane_b32 s{sT2}, v{v}')
    a(f's_cmp_ge_u32 s{sT2}, {target}\ns_cbranch_scc1 {name}_ok')
    a(f's_sleep {sleep}\ns_add_u32 s{sSPIN}, s{sSPIN}, 1\ns_cmp_lt_u32 s{sSPIN}, 0x400000\ns_cbranch_scc1 {name}')
    a('s_branch L_end')
    a.label(name + '_ok')

VT = 36
KPK = [f'v_cvt_pk_bf16_f32 v{PUB}, v{AK}, v{AK+1}', f'v_cvt_pk_bf16_f32 v{PUB+1}, v{AK+2}, v{AK+3}']
CANON = f'v_min_u32 v{PUB}, -2, v{PUB}'

def groups(a, name, v, need_s):
    a(f's_mov_b32 s{sSPIN}, 0')
    a.label(name)
    a(f'v_cmp_gt_u32 vcc, 192, v{v}\ns_or_b32 s{sT}, vcc_lo, 0x100\ns_ff1_i32_b32 s{sT}, s{sT}\ns_lshl_b32 s{sT}, s{sT}, 3')
    a(f's_cmp_gt_u32 s{sT}, {need_s}\ns_cbranch_scc1 {name}_ok')
    a(f's_sleep 2\nbuffer_load_dword v{v}, v{v+1}, {S(sDBG)}, 0 offen sc1\ns_waitcnt vmcnt(0)')
    a(f's_add_u32 s{sSPIN}, s{sSPIN}, 1\ns_cmp_lt_u32 s{sSPIN}, 0x400000\ns_cbranch_scc1 {name}\ns_branch L_end')
    a.label(name + '_ok')
    a(f's_sub_u32 s{sLIM}, s{sT}, 1\ns_mov_b32 s{sSPIN}, 0')
VPK = [f'v_cvt_pk_bf16_f32 v{PUB+2}, v{AV}, v{AV+1}', f'v_cvt_pk_bf16_f32 v{VT}, v{AV+2}, v{AV+3}',
       f'v_cvt_pk_bf16_f32 v{VT+1}, v{AV+1}, v{AV}', f'v_cvt_pk_bf16_f32 v{PUB+3}, v{AV+3}, v{AV+2}',
       f'v_permlane32_swap_b32 v{PUB+2}, v{VT}', f'v_permlane32_swap_b32 v{VT+1}, v{PUB+3}']
RARE_AT = 34

def role_chain(a, cfg):
    a.comment('---- chain head')
    stamp(a, cfg, 0)
    vS1, vS2, vTR, vTR0, vTR1 = 104, 105, 106, 107, 108
    T = 110
    a(f'v_lshlrev_b32 v{vL16}, 4, v0\nv_and_b32 v{vTM}, 1, v0\nv_xor_b32 v{vTM}, 1, v{vTM}')
    a(f's_lshl_b32 s{sT}, s{sW}, 11\nv_add_u32 v{vMem}, s{sT}, v{vL16}')
    a(f'v_add_u32 v{vMH1}, 0x10000, v{vMem}\nv_add_u32 v{vMH2}, 0x20000, v{vMem}')
    a(f'v_and_b32 v{T}, 3, v0\nv_lshlrev_b32 v{T}, 4, v{T}')
    a(f'v_bfe_u32 v{T+1}, v0, 5, 1\nv_bfe_u32 v{T+2}, v0, 4, 1\nv_bfe_u32 v{T+3}, v0, 2, 1\nv_bfe_u32 v{T+4}, v0, 3, 1')
    sh = (16, 14, 17, 15) if cfg.x4 else (17, 15, 13, 16)
    a(f'v_lshl_add_u32 v{vS1}, v{T+1}, {sh[0]}, v{T}\nv_lshl_add_u32 v{vS1}, v{T+2}, {sh[1]}, v{vS1}')
    a(f'v_lshl_add_u32 v{vS1}, v{T+3}, {sh[2]}, v{vS1}\nv_lshl_add_u32 v{vS1}, v{T+4}, {sh[3]}, v{vS1}')
    a(f'v_lshl_add_u32 v{vS2}, v{T+2}, 14, v{T}\nv_lshl_add_u32 v{vS2}, v{T+1}, 12, v{vS2}')
    a(f'v_lshl_add_u32 v{vS2}, v{T+4}, 6, v{vS2}\nv_lshl_add_u32 v{vS2}, v{T+3}, 10, v{vS2}')
    a(f'v_lshrrev_b32 v{T+5}, 2, v0\nv_lshlrev_b32 v{T+5}, 6, v{T+5}\nv_lshrrev_b32 v{T+6}, 1, v{T}\nv_add_u32 v{T+5}, v{T+5}, v{T+6}')
    a(f's_mul_i32 s{sG}, s{sW}, 20480\nv_add_u32 v{vTR}, s{sG}, v{T+5}')
    a(f'v_lshl_add_u32 v{vTR0}, v{T+4}, 5, v{vTR}\nv_xor_b32 v{vTR1}, 128, v{vTR0}')
    sQ, sK, sV, sO = 68, 72, 76, sR1
    srd(a, sQ, P(5), 512*8192); srd(a, sK, P(6), 512*8192); srd(a, sV, P(7), 512*8192); srd(a, sO, P(8), 4096*1024)
    SO = (0, 2, 1, 3, 4, 6, 5, 7) if cfg.cord else range(8)
    chunks = [(m, s) for m in 'qkv' for s in SO] + [('o', (sg, z)) for sg in range(4) for z in range(2)]
    ops = []
    def waitfor(tag):
        last = max(i for i, t in enumerate(ops) if t == tag)
        a(f's_waitcnt vmcnt({len(ops) - 1 - last})')
    sB1, sB2, s2W = 96, 97, 98
    a(f's_lshl_b32 s{sB1}, s{sIDX}, 8\ns_lshl_b32 s{sT}, s{sW}, 6\ns_add_u32 s{sB1}, s{sB1}, s{sT}')
    a(f's_lshl_b32 s{sB2}, s{sIDX}, 17\ns_lshl_b32 s{sT}, s{sW}, 8\ns_add_u32 s{sB2}, s{sB2}, s{sT}')
    a(f's_lshl_b32 s{s2W}, s{sW}, 1')
    def issue(ci):
        m, x = chunks[ci]
        a(f's_add_u32 m0, s{sG}, {(ci % 5) * 4096}')
        if m != 'o':
            a(f's_xor_b32 s{sT}, s{s2W}, {x}\ns_lshl_b32 s{sT}, s{sT}, 19\ns_add_u32 s{sT}, s{sT}, s{sB1}')
            rows = [32*(c>>1) + (1 if cfg.x4 else 2)*(c&1) for c in range(4)]; rs = 8192; vs = vS1; sr = {'q': sQ, 'k': sK, 'v': sV}[m]
        else:
            sg, z = x
            a(f's_xor_b32 s{sT}, s{sW}, {sg}\ns_lshl_b32 s{sT}, s{sT}, 15\ns_add_u32 s{sT}, s{sT}, s{sB2}')
            if z: a(f's_add_u32 s{sT}, s{sT}, 128')
            rows = [8*(c>>1) + 2*(c&1) for c in range(4)]; rs = 1024; vs = vS2; sr = sO
        for c in range(4):
            if c: a(f's_add_u32 s{sT}, s{sT}, {(rows[c]-rows[c-1])*rs}\ns_add_u32 m0, m0, 1024')
            a(f'buffer_load_dwordx4 v{vs}, {S(sr)}, s{sT} offen lds'); ops.append(ci)
    for ci in range(4): issue(ci)
    a(f'v_and_b32 v{T}, 15, v0\nv_lshrrev_b32 v{T+1}, 4, v0')
    a(f's_lshl_b32 s{sT}, s{sW}, 10')
    a(f'v_bfe_u32 v{T+3}, v0, 4, 1\nv_bfe_u32 v{T+4}, v0, 5, 1')
    a(f'v_bfe_u32 v{T+2}, v0, 2, 1\nv_xor_b32 v{T+2}, v{T+2}, v{T+3}\nv_lshlrev_b32 v{T+2}, 4, v{T+2}')
    a(f'v_lshl_add_u32 v{vKw}, v{T}, 5, v{T+2}\nv_lshl_add_u32 v{vKw}, v{T+4}, 9, v{vKw}\nv_add_u32 v{vKw}, s{sT}, v{vKw}')
    a(f'v_and_b32 v{T+2}, 1, v0\nv_xor_b32 v{T+2}, v{T+2}, v{T+3}\nv_lshlrev_b32 v{T+2}, 4, v{T+2}\nv_bfe_u32 v{T+5}, v0, 1, 1\nv_lshl_add_u32 v{T+2}, v{T+5}, 3, v{T+2}')
    a(f'v_lshrrev_b32 v{T+5}, 2, v0\nv_lshl_add_u32 v{vTX}, v{T+5}, 5, v{T+2}')
    a(f'v_and_b32 v{T+5}, 7, v0\nv_bfe_u32 v{T+6}, v0, 3, 1\nv_lshlrev_b32 v{vOw}, 7, v{T+1}\nv_lshl_add_u32 v{vOw}, v{T+5}, 4, v{vOw}\nv_lshl_add_u32 v{vOw}, v{T+6}, 3, v{vOw}')
    a(f's_lshl_b32 s{sT}, s{sW}, 9\nv_add_u32 v{vOw}, s{sT}, v{vOw}')
    if cfg.x4: a(f'v_and_b32 v{T+5}, 3, v0\nv_lshlrev_b32 v{T+5}, 1, v{T+5}\nv_bfe_u32 v{T+6}, v0, 2, 2')
    a(f'v_lshlrev_b32 v{vPst}, 3, v{T+5}\nv_lshl_add_u32 v{vPst}, v{T+3}, 11, v{vPst}\nv_lshl_add_u32 v{vPst}, v{T+6}, 12, v{vPst}\nv_lshl_add_u32 v{vPst}, v{T+4}, 14, v{vPst}')
    a(f's_lshl_b32 s{sT}, s{sW}, 16\ns_lshl_b32 s{sT2}, s{sIDX}, 6\ns_add_u32 s{sT}, s{sT}, s{sT2}\nv_add_u32 v{vPst}, s{sT}, v{vPst}')
    a(f'v_and_b32 v{T+6}, 3, v0\nv_lshlrev_b32 v{vMst}, 2, v{T+6}\nv_lshl_add_u32 v{vMst}, v{T+1}, 4, v{vMst}')
    a(f'v_mov_b32 v{vIdx}, 0x4444\nv_mov_b32 v{T+7}, 0xeeee\nv_cmp_lt_u32 vcc, 7, v{T}\nv_cndmask_b32 v{vIdx}, v{vIdx}, v{T+7}, vcc')
    a(f'v_bfe_u32 v{T+7}, v0, 2, 1\nv_lshlrev_b32 v{T+7}, 4, v{T+7}\nv_mov_b32 v{T+8}, 0x3f80\nv_lshlrev_b32 v{T+7}, v{T+7}, v{T+8}')
    a(f'v_cmp_eq_u32 vcc, 0, v{T+6}\nv_cndmask_b32 v{SEL}, 0, v{T+7}, vcc\nv_cndmask_b32 v{SEL+2}, 0, v{T+7}, vcc')
    a(f'v_cmp_eq_u32 vcc, 1, v{T+6}\nv_cndmask_b32 v{SEL+1}, 0, v{T+7}, vcc\nv_cndmask_b32 v{SEL+3}, 0, v{T+7}, vcc')
    a(f's_lshr_b32 s{sT}, s{sIDX}, 3\ns_lshl_b32 s{sT}, s{sT}, 5\ns_and_b32 s{sT2}, s{sIDX}, 4\ns_lshl_b32 s{sT2}, s{sT2}, 1\ns_add_u32 s{sT}, s{sT}, s{sT2}')
    a(f's_and_b32 s{sT2}, s{sIDX}, 3\ns_add_u32 s{sT}, s{sT}, s{sT2}\ns_and_b32 s{sT2}, s{sW}, 2\ns_lshl_b32 s{sT2}, s{sT2}, 3\ns_add_u32 s{sT}, s{sT}, s{sT2}')
    a(f's_and_b32 s{sT2}, s{sW}, 1\ns_lshl_b32 s{sT2}, s{sT2}, 2\ns_add_u32 s{sT}, s{sT}, s{sT2}')
    a(f's_lshl_b32 s{sRED}, s{sT}, 11\ns_add_u32 s{sRED}, s{sRED}, {PART:#x}\ns_lshl_b32 s{sMST}, s{sT}, 6\ns_add_u32 s{sMST}, s{sMST}, {MEMS:#x}')
    a(f's_mov_b32 s{sMEM}, {MEMS:#x}\ns_mov_b32 s{sPART}, {PART:#x}\ns_mov_b32 s{sPART2}, {PART+0x8000:#x}\ns_mov_b32 s{sP1}, {PART+0x2000:#x}\ns_mov_b32 s{sP3}, {PART+0xa000:#x}')
    srd(a, sR2, P(4), 8192)
    U = 80
    for i in range(4): a(f'v_mov_b32 v{U+4+i}, -1')
    if cfg.x4:
        a(f's_lshr_b32 s{sT2}, s{sT}, 3\ns_lshl_b32 s{sT2}, s{sT2}, 6\ns_bfe_u32 s{sS}, s{sT}, 0x20001\ns_lshl_b32 s{sS}, s{sS}, 3\ns_add_u32 s{sT2}, s{sT2}, s{sS}')
        a(f's_and_b32 s{sS}, s{sT}, 1\ns_lshl_b32 s{sS}, s{sS}, 12\ns_add_u32 s{sT2}, s{sT2}, s{sS}')
        a(f'v_lshlrev_b32 v{T+7}, 1, v{T+6}\nv_lshl_add_u32 v{T+7}, v{T+1}, 10, v{T+7}')
        a(f'buffer_load_ushort v{U}, v{T+7}, {S(sR2)}, s{sT2} offen\nbuffer_load_ushort v{U+1}, v{T+7}, {S(sR2)}, s{sT2} offen offset:32'); ops.extend(['m0', 'm0'])
        for so in (sPART, sPART2):
            a(f'buffer_store_dwordx4 v[{U+4}:{U+7}], v{vPst}, {S(sWS)}, s{so} offen sc1'); ops.append('i')
    else:
        a(f's_lshr_b32 s{sT2}, s{sT}, 1\ns_lshl_b32 s{sT2}, s{sT2}, 4\ns_and_b32 s{sS}, s{sT}, 1\ns_lshl_b32 s{sS}, s{sS}, 12\ns_add_u32 s{sT2}, s{sT2}, s{sS}')
        a(f'v_lshlrev_b32 v{T+7}, 2, v{T+6}\nv_lshl_add_u32 v{T+7}, v{T+1}, 10, v{T+7}')
        a(f'buffer_load_dword v{U}, v{T+7}, {S(sR2)}, s{sT2} offen'); ops.append('m0')
        for so in (sPART, sP1, sPART2, sP3):
            a(f'buffer_store_dwordx2 v[{U+4}:{U+5}], v{vPst}, {S(sWS)}, s{so} offen sc1'); ops.append('i')
    c = (128 ** -0.5) * math.log2(math.e)
    a(f's_mov_b32 s{sC}, {f2u(c):#x}\ns_mov_b32 s{sNC}, {f2u(-c):#x}')
    a(f's_lshl_b32 s{sT}, s{sIDX}, 21')
    a(f's_add_u32 s{sKX}, s{sT}, {KX:#x}\ns_add_u32 s{sVX}, s{sT}, {VX:#x}\ns_add_u32 s{sPUB}, s{sT}, {KVM+0x1000:#x}')
    a(f's_lshl_b32 s{sT}, s{sW}, 10\ns_add_u32 s{sPUB}, s{sPUB}, s{sT}')
    a(f's_mov_b32 s{sTAG}, 0')
    kxdma = [f's_mov_b32 m0, s{sM0K}',
             f'buffer_load_dwordx4 v{vMem}, {S(sWS)}, s{sKX} offen sc1 lds',
             f'buffer_load_dwordx4 v{vMem}, {S(sWS)}, s{sKX} offen offset:1024 sc1 lds',
             f's_add_u32 s{sKX}, s{sKX}, 0x8000']
    vxld = [f'buffer_load_dwordx4 v[{VXF}:{VXF+3}], v{vMem}, {S(sWS)}, s{sVX} offen sc1',
            f'buffer_load_dwordx4 v[{VXF+4}:{VXF+7}], v{vMem}, {S(sWS)}, s{sVX} offen offset:1024 sc1',
            f's_add_u32 s{sVX}, s{sVX}, 0x8000']
    def init_mem():
        waitfor('m0')
        if cfg.x4: a(f'v_lshl_or_b32 v{U}, v{U+1}, 16, v{U}')
        a(f'v_min_u32 v{U}, -2, v{U}')
        a(f's_mov_b32 exec_lo, 0x000f000f\ns_mov_b32 exec_hi, 0x000f000f')
        a(f'buffer_store_dword v{U}, v{vMst}, {S(sWS)}, s{sMST} offen sc1')
        a(f's_add_u32 s{sS}, s{sMST}, 0x2000\nbuffer_store_dword v{U+4}, v{vMst}, {S(sWS)}, s{sS} offen sc1')
        a('s_mov_b64 exec, -1'); ops.extend(['i', 'i'])
    def publish_id():
        waitfor('i'); a('s_barrier')
        a(f's_getreg_b32 s{sT}, hwreg(HW_REG_XCC_ID)\ns_and_b32 s{sT}, s{sT}, 0xf\ns_add_u32 s{sT}, s{sT}, 1')
        a(f's_lshl_b32 s{sT2}, s{sIDX}, 2\nv_mov_b32 v{U}, s{sT}\nv_mov_b32 v{U+1}, 0')
        a(f's_cmp_lg_u32 s{sW}, 0\ns_cbranch_scc1 L_c_noid')
        a(f's_mov_b64 exec, 1\nbuffer_store_dword v{U}, v{U+1}, {S(sDBG)}, s{sT2} offen offset:128 sc1\ns_mov_b64 exec, -1')
        a('L_c_noid:')
    idld = f'buffer_load_dword v{U+2}, v{U+3}, {S(sDBG)}, 0 offen offset:128 sc1'
    def ask():
        a(f'v_bfe_u32 v{U+3}, v{vL16}, 2, 7')
        a(f'v_bfe_u32 v{U+9}, v{vL16}, 2, 5')
        a(idld); a(f'buffer_load_dword v{U+8}, v{U+9}, {S(sDBG)}, 0 offen sc1'); ops.extend(['q', 'q'])
    def answer():
        waitfor('q')
        a(f's_mov_b32 s{sSPIN}, 0')
        a('L_c_ids:')
        a(f'v_cmp_eq_u32 vcc, 0, v{U+2}\ns_cbranch_vccz L_c_ids_ok')
        a(f's_sleep 2\n{idld}\ns_waitcnt vmcnt(0)')
        a(f's_add_u32 s{sSPIN}, s{sSPIN}, 1\ns_cmp_lt_u32 s{sSPIN}, 0x400000\ns_cbranch_scc1 L_c_ids\ns_branch L_end')
        a('L_c_ids_ok:')
        a(f'v_readfirstlane_b32 s{sT}, v{U+2}')
        a(f'v_cmp_ne_u32 s[80:81], s{sT}, v{U+2}')
        groups(a, 'L_c_g0', U+8, 0)
        a(f'v_lshlrev_b32 v{U+3}, 2, v{vL16}\nbuffer_load_dword v{U+8}, v{U+3}, {S(sWS)}, s{sKX} offen sc1\nbuffer_load_dword v{U+8}, v{U+3}, {S(sWS)}, s{sKX} offen offset:4032 sc1')
        a(f'buffer_load_dword v{U+8}, v{U+3}, {S(sWS)}, s{sVX} offen sc1\nbuffer_load_dword v{U+8}, v{U+3}, {S(sWS)}, s{sVX} offen offset:4032 sc1')
        ops.extend(['x'] * 4)
    TMP = 112
    n = len(chunks)
    for ci in range(n):
        if ci + 4 < n: issue(ci + 4)
        if ci == 2: init_mem()
        if ci == 8: publish_id()
        if ci == n - 7: ask()
        if ci == n - 2: answer()
        waitfor(ci)
        m, x = chunks[ci]
        bl = [(m, t, x) for t in range(2)] if m != 'o' else [('o', 2*x[1]+t, x[0]) for t in range(2)]
        post = []
        for t, b in enumerate(bl):
            k, i = LOC[b]
            if k == 'es': k, r0 = 'v', TMP + 8*t; post.append((i, r0))
            elif k == 'ls': k, r0 = 'v', 24 + 8*i
            else: r0 = i
            for c in range(4):
                if m == 'o': a(f'ds_read_b64_tr_b16 {k}[{r0+2*c}:{r0+2*c+1}], v{vTR} offset:{(ci%5)*4096 + c*1024 + t*32}')
                else: a(f'ds_read_b64_tr_b16 {k}[{r0+2*c}:{r0+2*c+1}], v{vTR1 if t else vTR0} offset:{(ci%5)*4096 + c*1024}')
        a('s_waitcnt lgkmcnt(0)')
        for i, r0 in post:
            for h in range(2):
                va, off = ldsaddr(L_ES + i*8192 + h*1024)
                a(f'ds_write_b128 v{va}, v[{r0+4*h}:{r0+4*h+3}] offset:{off}')
        if post: a('s_waitcnt lgkmcnt(0)')
    a('s_barrier')
    stamp(a, cfg, 1)
    if cfg.x_stop:
        stamp(a, cfg, 2); stamp(a, cfg, 3); return
    a(f's_lshl_b32 s{sT}, s{sW}, 11\ns_add_u32 s{sM0K}, s{sT}, {L_KX}')
    for l in kxdma: a(l)
    a(f's_mov_b32 s{sS}, 0\ns_mov_b32 s{sKXB}, {L_KX}\ns_xor_b32 m0, m0, {L_KX ^ (2*L_KX)}\ns_mov_b32 s15, -0x1000')
    for i in range(7):
        for h in range(2):
            va, off = ldsaddr(L_LS + i*8192 + h*1024)
            a(f'ds_write_b128 v{va}, v[{24+8*i+4*h}:{24+8*i+4*h+3}] offset:{off}')
    a('s_waitcnt vmcnt(2) lgkmcnt(0)')
    for l in stage_reads('es', range(10)): a(l)
    for i in range(16): a(f'v_mov_b32 v{AV+i}, 0')
    stamp(a, cfg, 2)
    if cfg.stamps: a('s_memtime s[92:93]')
    if cfg.prof:
        for i in range(12): a(f's_mov_b32 s{68+i}, 0')
    a('s_waitcnt lgkmcnt(0)')
    a('s_cmp_lg_u64 s[80:81], 0\ns_cbranch_scc1 L_cs_step')
    a('s_branch L_cs_step' if cfg.force_slow else 's_branch L_cf_step')
    for pre, sc in (('L_cf', ''), ('L_cs', ' sc1')):
        step_loop(a, cfg, pre, sc, kxdma, vxld)
    a('L_c_last:')
    for l in stage_reads('es', range(10))[cfg.es3:]: a(l)
    a('L_c_lp:')
    for z in range(2): a(f'buffer_load_dwordx4 v[{F0+4*z}:{F0+4*z+3}], v{vMem}, {S(sWS)}, s{sMEM} offen offset:{1024*z} sc1')
    a(f's_waitcnt vmcnt(0)\nv_max_u32 v0, v{F0}, v{F0+4}\nv_cmp_eq_u32 vcc, -1, v0\ns_cbranch_vccz L_c_lok')
    a(f's_add_u32 s{sSPIN}, s{sSPIN}, 1\ns_cmp_lt_u32 s{sSPIN}, 0x400000\ns_cbranch_scc1 L_c_lp\ns_branch L_end')
    a('L_c_lok:')
    a(f'buffer_store_dwordx4 v[{PUB}:{PUB+3}], v{vL16}, {S(sWS)}, s{sPUB} offen sc1\ns_add_u32 s{sPUB}, s{sPUB}, 0x8000')
    for z in range(2): a(f'ds_write_b128 v{vMem}, v[{F0+4*z}:{F0+4*z+3}] offset:{L_MEM+1024*z}')
    for i in range(8): a(f'v_mov_b32_dpp v{F0R+i}, v{F0+i} row_ror:8 row_mask:0xf bank_mask:0xf')
    a('s_waitcnt lgkmcnt(2)')
    for b in PORD[:6]:
        if b[0] != 'q': a(smf(b))
    a('s_waitcnt lgkmcnt(0)\ns_barrier')
    for f, (sl, rho) in enumerate(OTH):
        if f % 2 == 0: a(f'v_xor_b32 v0, {(sl//2)*2048 + rho*128}, v{vMem}')
        a(f'ds_read_b128 v[{FO+4*f}:{FO+4*f+3}], v0 offset:{L_MEM + (sl%2)*1024}')
    for b in PORD[6:12]:
        if b[0] != 'q': a(smf(b))
    for f, (sl, rho) in enumerate(OTH):
        a(f's_waitcnt lgkmcnt({11-f})'); a(smf(('k', rho, sl))); a(smf(('v', rho, sl)))
    for l in KPK + [CANON] + VPK: a(l)
    a(f'buffer_store_dwordx4 v[{PUB}:{PUB+3}], v{vL16}, {S(sWS)}, s{sPUB} offen sc1')
    a('L_c_done:')
    stamp(a, cfg, 3)
    if cfg.stamps: a('s_memtime s[94:95]')
    if cfg.prof:
        a(f's_lshl_b32 s{sT}, s{sIDX}, 2\ns_add_u32 s{sT}, s{sT}, s{sW}\ns_lshl_b32 s{sT}, s{sT}, 6\ns_add_u32 s{sT}, s{sT}, {TS+0x8000:#x}\nv_mov_b32 v25, 0')
        for i in range(12):
            a(f'v_mov_b32 v24, s{68+i}\nbuffer_store_dword v24, v25, {S(sWS)}, s{sT} offen offset:{4*i}')

def step_loop(a, cfg, pre, sc, kxdma, vxld):
    cnt = [0]
    PAIRS = list(range(16, 42, 2)) + list(range(68, 80, 2))
    def ts(trace_only=False):
        if (cfg.prof and not trace_only) or cfg.trace:
            p = PAIRS[cnt[0]]
            a(f's_memtime s[{p}:{p+1}]'); cnt[0] += 1
    DPP = 'row_mask:0xf bank_mask:0xf'
    LO, HI = 'row_mask:0xf bank_mask:0x3', 'row_mask:0xf bank_mask:0xc'
    idn = 'quad_perm:[0,1,2,3]'
    ESR = stage_reads('es', range(10))
    def warm(n):
        for i in range(n): a('v_mov_b32 v0, v0\ns_nop 1')
    def count(i):
        if cfg.prof: a(f's_add_u32 s{78+i}, s{78+i}, 63')
    def bound(back):
        a(f's_add_u32 s{sSPIN}, s{sSPIN}, 1\ns_cmp_lt_u32 s{sSPIN}, 0x400000\ns_cbranch_scc1 {back}\ns_branch L_end')
    def ld2(r, va, so): return f'buffer_load_dwordx4 v[{r}:{r+3}], v{va}, {S(sWS)}, s{so} offen sc1\nbuffer_load_dwordx4 v[{r+4}:{r+7}], v{va}, {S(sWS)}, s{so} offen offset:1024 sc1'
    pmA, pmB = ld2(F0, vMem, sMEM), ld2(F0R, 0, sMEM)
    RLB = 96
    assert cfg.es3 <= 18
    ppA, ppB = ld2(RL, vL16, sRED), ld2(RLB, vL16, sRED)
    def chk_mem(r): return f'v_cmp_eq_u32 vcc, -1, v{r}\nv_cmp_eq_u32 s[50:51], -1, v{r+4}\ns_or_b64 vcc, vcc, s[50:51]'
    def red(r): return f'v_smfmac_f32_16x16x64_bf16 v[{RDA}:{RDA+3}], v[{SEL}:{SEL+3}], v[{r}:{r+7}], v{vIdx}'
    def chk_part(r): return f'{red(r)}\nv_bitop3_b32 v0, v{r}, v{r+4}, s{sTAG} bitop3:0x7e\nv_and_b32 v0, 1, v0\nv_cmp_ne_u32 vcc, 0, v0'
    zr = f's_nop 3\nv_mov_b64 v[{RDA}:{RDA+1}], 0\nv_mov_b64 v[{RDA+2}:{RDA+3}], 0'
    def mld(z, rho): return f'buffer_load_dwordx4 v[{(F0R if rho else F0)+4*z}:{(F0R if rho else F0)+4*z+3}], v{0 if rho else vMem}, {S(sWS)}, s{sMEM} offen offset:{1024*z} sc1'
    PM_ = [smf(b) for b in PORD]
    def masked(l):
        if cfg.mask: a('s_mov_b64 exec, vcc')
        a(l)
        if cfg.mask: a('s_mov_b64 exec, -1')
    def twin(z, src, dst):
        for i in range(4): a(f'v_mov_b32_dpp v{dst+4*z+i}, v{src+4*z+i} row_ror:8 {DPP}')
    def wr(z, rho): a(f'ds_write_b128 v{0 if rho else vMem}, v[{(F0R if rho else F0)+4*z}:{(F0R if rho else F0)+4*z+3}] offset:{L_MEM+1024*z}')
    a.label(f'{pre}_pm0_loop')
    masked(pmB); count(0)
    a('s_waitcnt vmcnt(2)'); a(chk_mem(F0)); a(f's_cbranch_scc1 {pre}_pm0_b')
    wr(0, 0); wr(1, 0)
    a(f's_branch {pre}_pm0_go')
    a.label(f'{pre}_pm0_retry')
    a('s_mov_b64 vcc, -1')
    a.label(f'{pre}_pm0_b')
    masked(pmA); count(0)
    a('s_waitcnt vmcnt(2)'); a(chk_mem(F0R)); a(f's_cbranch_scc0 {pre}_pm0_bok')
    bound(f'{pre}_pm0_loop')
    a.label(f'{pre}_pm0_bok')
    wr(0, 1); wr(1, 1); twin(0, F0R, F0); twin(1, F0R, F0)
    a.label(f'{pre}_pm0_go')
    for m in PM_[:3]: a(m)
    a(f's_branch {pre}_pm1_join')
    a.label(f'{pre}_pm1_retry')
    masked(mld(1, 0)); count(0)
    a(f's_waitcnt vmcnt(1)\nv_cmp_eq_u32 vcc, -1, v{F0R+4}\ns_cbranch_vccnz {pre}_pm1_again')
    wr(1, 1); twin(1, F0R, F0)
    a(f's_nop 0\ns_branch {pre}_pm1_join')
    a.label(f'{pre}_pm1_again')
    masked(mld(1, 1)); count(0); a(f's_waitcnt vmcnt(1)\nv_cmp_eq_u32 vcc, -1, v{F0+4}\ns_cbranch_vccnz {pre}_pm1_more')
    wr(1, 0); a(f's_branch {pre}_pm1_join')
    a.label(f'{pre}_pm1_more')
    bound(f'{pre}_pm1_retry')
    a.label(pre + '_pp_retry')
    masked(ppA); count(1); a(zr)
    if cfg.dual1:
        a('s_waitcnt vmcnt(2)'); a(chk_part(RLB))
        a(f's_cbranch_vccz {pre}_pp_join')
        masked(ppB); count(1); a(zr)
    bound(pre + '_pp')
    a.label(pre + '_special')
    a(f's_waitcnt vmcnt(0)\ns_cmp_eq_u32 s{sS}, 63\ns_cbranch_scc1 L_c_last')
    a(f'v_bfe_u32 v{F0+1}, v{vL16}, 2, 5\nbuffer_load_dword v{F0}, v{F0+1}, {S(sDBG)}, 0 offen sc1\ns_add_u32 s{sT2}, s{sS}, 1\ns_waitcnt vmcnt(0)')
    groups(a, pre + '_gw', F0, f's{sT2}')

    a.label(pre + '_step')
    ts()
    a(f'v_xor_b32 v0, 128, v{vMem}')
    a(mld(0, 0))
    for _ in range(cfg.sp2): a('s_nop 3')
    a(mld(1, 0))
    a('s_waitcnt vmcnt(4)')
    for l in ESR[cfg.es3:]: a(l)
    for _ in range(cfg.sp3): a('s_nop 3')
    a(mld(0, 1)); a(mld(1, 1))
    warm(cfg.wm2)
    a(f's_waitcnt vmcnt(3) lgkmcnt(0)\nds_write_b128 v{vMem}, v[{F0}:{F0+3}] offset:{L_MEM}')
    a(f'v_cmp_eq_u32 vcc, -1, v{F0}\ns_cbranch_vccnz {pre}_pm0_retry')
    for m in PM_[:3]: a(m)
    a(f's_waitcnt vmcnt(2)\nds_write_b128 v{vMem}, v[{F0+4}:{F0+7}] offset:{L_MEM+1024}')
    a(f'v_cmp_eq_u32 vcc, -1, v{F0+4}\ns_cbranch_vccnz {pre}_pm1_retry')
    a.label(pre + '_pm1_join')
    ts()
    a(PM_[3]); a(f'v_xor_b32 v0, 2048, v{vMem}'); a(PM_[4]); a(PM_[5])
    a('s_waitcnt lgkmcnt(0)\ns_barrier')
    ts()
    R = []
    for f, (sl, rho) in enumerate(OTH):
        if f and f % 2 == 0: R.append(f'v_xor_b32 v0, {(sl//2)*2048 + rho*128}, v{vMem}')
        R.append(f'ds_read_b128 v[{FO+4*f}:{FO+4*f+3}], v0 offset:{L_MEM + (sl%2)*1024}')
    kxr = [f'v_add_u32 v0, s{sKXB}, v{vL16}'] + [f'ds_read_b128 v[{KXF+4*(2*u+T)}:{KXF+4*(2*u+T)+3}], v0 offset:{(T*4+u)*1024}' for u in range(4) for T in range(2)]
    pub = f'buffer_store_dwordx4 v[{PUB}:{PUB+3}], v{vL16}, {S(sWS)}, s{sPUB} offen sc1'
    side = ([] if cfg.x_nokv else [vxld[0], vxld[1], kxdma[1], kxdma[2]]) + ([] if cfg.x_nopub else [pub])
    fill = R + kxr
    for j, l in enumerate(side): fill.insert(cfg.vpos + j*cfg.vgap, l)
    for _ in range(2): a(fill.pop(0))
    a('s_waitcnt vmcnt(0)')
    issued = 2
    for i in range(6, len(PORD)):
        m, rho, sl = PORD[i]
        waited = False
        if sl >= 2:
            f = OTH.index((sl, rho))
            if m == 'q' and f % 2 == 0:
                assert f + 1 < issued
                a(f's_waitcnt lgkmcnt({min(15, issued - f - 2)})')
        a(PM_[i])
        if i == 11 or i == 23: ts()
        if fill:
            l = fill.pop(0); a(l)
            if l.startswith('ds_read'): issued += 1
    ts()
    HM = [smf(b) for b in HELD]
    h1, h2 = cfg.h1, cfg.h2
    assert not fill
    a(HM[0]); a('s_barrier'); a(HM[1]); a('s_nop 0'); assert cfg.bar2
    for m in HM[2:h1]: a(m); a('s_nop 0')
    a(f'v_cvt_pk_bf16_f32 v{AQ+3}, v{AQ+2}, v{AQ+3}\nv_cvt_pk_bf16_f32 v{AQ+2}, v{AQ}, v{AQ+1}')
    a(KPK[0]); a(KPK[1])
    a(f'ds_write_b128 v{vKw}, v[{AQ+2}:{AQ+5}] offset:{L_Q}')
    for m in HM[h1:h2]: a(m)
    a('s_waitcnt lgkmcnt(0)\ns_barrier')
    ts()
    qr = [f'ds_read_b64_tr_b16 v[{QKF+4*u+2*t}:{QKF+4*u+2*t+1}], v{vTX} offset:{L_Q + u*1024 + t*512}' for u in range(4) for t in range(2)]
    weave(a, HM[h2:], qr, 2, lead=2)
    SXM = []
    for u in range(4):
        for T in range(2):
            d = SX1 if T else SX
            cc = '0' if u == 0 else f'v[{d}:{d+3}]'
            kb = KXF + 4*(2*u+T)
            SXM.append(f'v_mfma_f32_16x16x32_bf16 v[{d}:{d+3}], v[{kb}:{kb+3}], v[{QKF+4*u}:{QKF+4*u+3}], {cc}')
    SMM = []
    for u in range(4):
        cc = '0' if u == 0 else f'v[{SM}:{SM+3}]'
        SMM.append(f'v_mfma_f32_16x16x32_bf16 v[{SM}:{SM+3}], v[{QKF+4*u}:{QKF+4*u+3}], v[{QKF+4*u}:{QKF+4*u+3}], {cc}')
    LSR = stage_reads('ls', range(7))
    X = SX
    C = [f'v_mov_b32_dpp v{X+i}, v{SX1+i} row_ror:8 {HI}' for i in range(4)]
    a('s_waitcnt lgkmcnt(4)'); a(SXM[0]); a(f'v_mov_b32 v{PM+1}, 0'); a(f'v_mov_b32 v{PM+2}, 0'); a(SXM[1]); a(LSR[0]); a(CANON)
    a(SXM[2]); a(LSR[1]); a(SXM[3]); a(LSR[2]); a('s_waitcnt lgkmcnt(3)')
    a(SXM[4]); a(LSR[3]); a(VPK[0]); a(SXM[5]); a(LSR[4]); a(VPK[1]); a(SXM[6]); a(LSR[5]); a(VPK[2]); a(SXM[7]); a(LSR[6]); a(VPK[3])
    a(SMM[0]); a(VPK[4]); a(SMM[1]); a(VPK[5]); a(SMM[2]); a(LSR[7]); a(C[0]); a(SMM[3])
    ts()
    t0 = SX1
    MX, NM, LX, Y = 38, 39, 36, SM + 2
    ZO = [f'v_mov_b64 v[{OUT+i}:{OUT+i+1}], 0' for i in range(0, 16, 2)]
    a(C[1]); a(C[2]); a(C[3]); a(LSR[8])
    a(f'v_max3_f32 v{MX}, v{X}, v{X+1}, v{X+2}')
    a(ZO[0]); a(ZO[1]); a(LSR[9])
    a(f'v_mov_b32_dpp v{SM}, v{SM+1} row_ror:8 {HI}\nv_mov_b32_dpp v{SM+2}, v{SM+3} row_ror:8 {HI}')
    a(ZO[3]); a(ZO[4])
    a(f'v_permlane32_swap_b32 v{SM}, v{SM+2}')
    a(f'v_max3_f32 v{MX}, v{MX}, v{X+3}, v{Y}')
    a(ZO[5]); a(ZO[6])
    a(f'v_max_f32_dpp v{t0}, v{MX}, v{MX} row_ror:8 {DPP}\nv_max_f32_dpp v{t0+1}, v{MX}, v{MX} row_ror:8 {DPP}')
    a(ZO[7]); a(f'v_and_b32 v0, -9, v{vOw}')
    a(f'v_permlane32_swap_b32 v{t0}, v{t0+1}')
    a(f'v_max_f32 v{t0+2}, v{t0}, v{t0+1}\nv_max_f32 v{t0+3}, v{t0}, v{t0+1}')
    OA = 120
    a(f'v_xor_b32 v{OA+1}, 512, v0\nv_xor_b32 v{OA+2}, 1024, v0')
    a(f'v_permlane16_swap_b32 v{t0+2}, v{t0+3}')
    a(f'v_max_f32 v{t0}, v{t0+2}, v{t0+3}\nv_mul_f32 v{NM}, s{sNC}, v{t0}')
    E = (X, X+1, X+2, X+3, Y)
    for r in E: a(f'v_fma_f32 v{r}, v{r}, s{sC}, v{NM}')
    for r in E: a(f'v_exp_f32 v{r}, v{r}')
    a(f'v_cvt_pk_bf16_f32 v{PF}, v{X}, v{X+1}\nv_cvt_pk_bf16_f32 v{PF+1}, v{X+2}, v{X+3}')
    a(f'v_mov_b32_dpp v{t0}, v{Y} row_ror:8 {DPP}')
    a(f'v_mov_b32_dpp v{PF+2}, v{PF} row_ror:8 {DPP}\nv_mov_b32_dpp v{PF+3}, v{PF+1} row_ror:8 {DPP}')
    a(f'v_cvt_pk_bf16_f32 v{PM}, v{Y}, v{t0}\nv_cvt_pk_bf16_f32 v{PM+3}, v{Y}, v{t0}')
    a(f's_waitcnt vmcnt({(0 if cfg.x_nopub else 1) + 2})')
    a(f'v_mfma_f32_16x16x32_bf16 v[{ACC0}:{ACC0+3}], v[{VXF}:{VXF+3}], v[{PF}:{PF+3}], 0')
    a(f'v_add_f32 v{LX}, v{X}, v{X+1}\nv_add_f32 v{NM}, v{X+2}, v{X+3}')
    a(f'v_mfma_f32_16x16x32_bf16 v[{ACC1}:{ACC1+3}], v[{VXF+4}:{VXF+7}], v[{PF}:{PF+3}], 0')
    a(f'v_add_f32 v{LX}, v{LX}, v{Y}\nv_add_f32 v{LX}, v{LX}, v{NM}')
    a(f'v_mfma_f32_16x16x16_bf16 v[{ACC0}:{ACC0+3}], v[{PUB+2}:{PUB+3}], v[{PM}:{PM+1}], v[{ACC0}:{ACC0+3}]')
    a(LSR[10])
    a(f'v_add_f32_dpp v{t0}, v{LX}, v{LX} row_ror:8 {DPP}')
    a(f'v_add_f32_dpp v{t0+1}, v{LX}, v{LX} row_ror:8 {DPP}')
    a(f'v_mfma_f32_16x16x16_bf16 v[{ACC1}:{ACC1+3}], v[{PUB+2}:{PUB+3}], v[{PM+2}:{PM+3}], v[{ACC1}:{ACC1+3}]')
    a(LSR[11])
    a(f'v_permlane32_swap_b32 v{t0}, v{t0+1}')
    a(f'v_add_f32 v{t0+2}, v{t0}, v{t0+1}\nv_add_f32 v{t0+3}, v{t0}, v{t0+1}')
    a(LSR[12]); a(LSR[13])
    a(f'v_permlane16_swap_b32 v{t0+2}, v{t0+3}')
    a(f'v_add_f32 v{t0+3}, v{t0+2}, v{t0+3}\nv_rcp_f32 v{t0+3}, v{t0+3}')
    for i in range(4): a(f'v_mov_b32_dpp v{ACC0+i}, v{ACC1+i} {idn} {HI}')
    for i in range(4): a(f'v_mul_f32 v{ACC0+i}, v{ACC0+i}, v{t0+3}')
    OP = PF
    a(f'v_cvt_pk_bf16_f32 v{OP}, v{ACC0}, v{ACC0+1}\nv_cvt_pk_bf16_f32 v{OP+1}, v{ACC0+2}, v{ACC0+3}')
    ts()
    a(f'ds_write_b64 v{vOw}, v[{OP}:{OP+1}] offset:{L_O}')
    def om(b): return f'v_smfmac_f32_16x16x64_bf16 v[{OUT+4*b[1]}:{OUT+4*b[1]+3}], v[{OF+4*b[2]}:{OF+4*b[2]+3}], {B8(b)}, v{vIdx}'
    a(f'v_mov_b64 v[{OF}:{OF+1}], v[{OP}:{OP+1}]\nv_mov_b64 v[{OF+2}:{OF+3}], v[{OP}:{OP+1}]')
    a(f'v_xor_b32 v{OA+3}, 1536, v0')
    for i in range(2):
        a(f'v_mov_b32_dpp v{OF+i}, v{OP+i} row_ror:8 {HI}\nv_mov_b32_dpp v{OF+2+i}, v{OP+i} row_ror:8 {LO}')
    O = [om(b) for b in OORD]
    a(ZO[2]); a('s_nop 0')
    for i in range(cfg.own): a(O[i])
    a('s_waitcnt lgkmcnt(0)\ns_barrier')
    for sg in range(1, 4): a(f'ds_read_b128 v[{OF+4*sg}:{OF+4*sg+3}], v{OA+sg} offset:{L_O}')
    ts()
    def fin(x):
        A0 = OUT + 4*x
        return [f'v_cvt_pk_bf16_f32 v{A0}, v{A0}, v{A0+1}', f'v_cvt_pk_bf16_f32 v{A0+1}, v{A0+2}, v{A0+3}', f'v_bfi_b32 v{A0}, v{vTM}, s{sTAG}, v{A0}',
                f'buffer_store_dwordx2 v[{A0}:{A0+1}], v{vPst}, {S(sWS)}, s{(sPART, sP1, sPART2, sP3)[x]} offen{sc}']
    f = [fin(x) for x in range(4)]
    seq = []
    seq += O[cfg.own:4]
    seq += ['s_waitcnt lgkmcnt(2)', O[4], 's_waitcnt lgkmcnt(1)', O[5], 's_waitcnt lgkmcnt(0)', O[6]]
    if cfg.x4:
        def g(z):
            A0 = OUT + 8*z
            return [f'v_cvt_pk_bf16_f32 v{A0}, v{A0}, v{A0+1}', f'v_cvt_pk_bf16_f32 v{A0+1}, v{A0+2}, v{A0+3}', f'v_and_or_b32 v{A0}, v{A0}, -2, s{sTAG}',
                    f'v_cvt_pk_bf16_f32 v{A0+2}, v{A0+4}, v{A0+5}', f'v_cvt_pk_bf16_f32 v{A0+3}, v{A0+6}, v{A0+7}',
                    f'buffer_store_dwordx4 v[{A0}:{A0+3}], v{vPst}, {S(sWS)}, s{sPART2 if z else sPART} offen{sc}']
        g0, g1 = g(0), g(1)
        seq += [O[7], 's_nop 0', O[8], 's_nop 0', O[9], 's_nop 0', O[10], 's_nop 0', O[11], g0[0], O[12], g0[1], g0[2], O[13], g0[3], g0[4], O[14], g0[5], O[15], 's_nop 0'] + g1[:3]
        f[3] = g1[3:]
    elif cfg.osch == 0:
        seq += [O[7], 's_nop 1', O[8], 's_nop 1', O[9], 's_nop 0', f[0][0], O[10], f[0][1], f[0][2], f[0][3], O[11], 's_nop 0', O[12], f[1][0], 's_nop 0']
        seq += [O[13], f[1][1], f[1][2], f[1][3], O[14], 's_nop 0', O[15]] + f[2]
    else:
        seq += [O[7], 's_nop 0', O[8], 's_nop 0', O[9], 's_nop 0', O[10], 's_nop 0', O[11], f[0][0], O[12], f[0][1], O[13], f[0][2], O[14], f[0][3], O[15]] + f[1] + f[2]
    seq += [f'v_mov_b64 v[{RDA}:{RDA+1}], 0', f'v_mov_b64 v[{RDA+2}:{RDA+3}], 0', f'v_mov_b32 v{RDA+4}, -1', f's_cmp_lt_u32 s{sW}, {cfg.wsplit}'] + f[3]
    for l in seq: a(l)
    ts()
    a(f's_mov_b32 s{sSPIN}, 0')
    for _ in range(cfg.pd0): a('s_nop 3')
    a(f's_cbranch_scc1 {pre}_e1')
    for l in ESR[:cfg.es1]: a(l)
    for _ in range(cfg.pd1): a('s_nop 3')
    a.label(pre + '_e1')
    if cfg.x_ack: a('s_waitcnt vmcnt(0)')
    ts(True)
    a(ppA)
    a(f's_cbranch_scc0 {pre}_e2')
    for l in ESR[:cfg.es1]: a(l)
    a.label(pre + '_e2')
    a(f's_xor_b32 s{sT}, s{sMST}, 0x2000\ns_xor_b32 s{sMEM}, s{sMEM}, 0x2000\ns_add_u32 s{sS}, s{sS}, 1\ns_add_u32 s{sPUB}, s{sPUB}, s15\ns_mov_b32 s15, 0x8000')
    a(kxdma[3]); a(vxld[2]); a(f's_xor_b32 m0, m0, {L_KX ^ (2*L_KX)}\ns_xor_b32 s{sKXB}, s{sKXB}, {L_KX ^ (2*L_KX)}')
    if cfg.dual1:
        for _ in range(cfg.sp1): a('s_nop 3')
        a(ppB)
    for l in ESR[cfg.es1:cfg.es2]: a(l)
    for i in range(0, 12, 2): a(f'v_mov_b64 v[{AV+i}:{AV+i+1}], 0')
    warm(cfg.wm1)
    a.label(pre + '_pp')
    a(f's_waitcnt vmcnt({2 if cfg.dual1 else 0})')
    a(chk_part(RL)); a(f's_cbranch_vccnz {pre}_pp_retry')
    a.label(pre + '_pp_join')
    ts()
    a(f's_xor_b32 s{sTAG}, s{sTAG}, 1')
    for r in (4, 8):
        for i in range(2): a(f'v_add_f32_dpp v{RDA+i}, v{RDA+i}, v{RDA+i} row_ror:{r} {DPP}')
    a(f's_mov_b32 exec_lo, 0x000f000f\ns_mov_b32 exec_hi, 0x000f000f')
    a(f'v_cvt_pk_bf16_f32 v{RDA}, v{RDA}, v{RDA+1}\nv_min_u32 v{RDA}, -2, v{RDA}')
    a(f'buffer_store_dword v{RDA}, v{vMst}, {S(sWS)}, s{sT} offen{sc}')
    a(f'buffer_store_dword v{RDA+4}, v{vMst}, {S(sWS)}, s{sMST} offen{sc}')
    a(f's_mov_b64 exec, -1\ns_mov_b32 s{sMST}, s{sT}')
    ts(True)
    for l in ESR[cfg.es2:cfg.es3]: a(l)
    if cfg.prof or cfg.trace: a('s_waitcnt lgkmcnt(0)')
    if cfg.prof:
        for i in range(10):
            a(f's_sub_u32 s{sT}, s{20+2*i}, s{18+2*i}\ns_add_u32 s{68+i}, s{68+i}, s{sT}')
    if cfg.trace:
        a(f's_sub_u32 s{sT2}, s{sS}, {cfg.trace}\ns_cmp_gt_u32 s{sT2}, 1\ns_cbranch_scc1 {pre}_notr')
        a(f's_lshl_b32 s{sT}, s{sIDX}, 2\ns_add_u32 s{sT}, s{sT}, s{sW}\ns_lshl_b32 s{sT}, s{sT}, 1\ns_add_u32 s{sT}, s{sT}, s{sT2}\ns_lshl_b32 s{sT}, s{sT}, 6\ns_add_u32 s{sT}, s{sT}, {TS+0x8000:#x}')
        for i in range(cnt[0]): a(f'v_writelane_b32 v0, s{PAIRS[i]}, {i}')
        a('v_writelane_b32 v0, s96, 14\nv_writelane_b32 v0, s98, 15')
        a(f'v_lshrrev_b32 v{MA01}, 2, v{vL16}\ns_mov_b64 exec, 0xffff\nbuffer_store_dword v0, v{MA01}, {S(sWS)}, s{sT} offen\ns_mov_b64 exec, -1')
        a.label(pre + '_notr')
        a(f's_cmp_lg_u32 s{sS}, {cfg.trace-4}\ns_cbranch_scc1 {pre}_nocal')
        a('s_memrealtime s[100:101]\ns_waitcnt lgkmcnt(0)')
        a.label(pre + '_cal')
        a(f's_memrealtime s[96:97]\ns_memtime s[98:99]\ns_waitcnt lgkmcnt(0)\ns_cmp_eq_u32 s96, s100\ns_cbranch_scc1 {pre}_cal')
        a.label(pre + '_nocal')
    if cfg.bar2: a('s_barrier')
    for _ in range(cfg.pd2): a('s_nop 3')
    a(f's_cmp_lg_u32 s{sS}, s{sLIM}')
    a.flush()
    a(f's_cbranch_scc1 {pre}_step\ns_branch {pre}_special')
```

```python
import sys, os
sys.path.insert(0, os.path.dirname(__file__))
from asmlib import Asm, vr

NAME = 'concat_heads__sliding_local_dilated__memory_aug_recurrent_mem_tr__prompt'
QX, KX, VX, KVM, FCH = 0, 0x2000, 0x4000, 0x6000, 0x7000
OX = 0x4000000
PART, MEMS, FLG = 0x5000000, 0x5080000, 0x5100000
WS_BYTES = 0x10000000
LDS_BYTES = 163840
sWS, sDBG = 4, 8
sR1, sR2, sR3 = 12, 44, 48
sXCD, sIDX, sW = 42, 43, 3
P = lambda i: 16 + 2 * i

class Cfg:
    roles = 'pcao'
    stamps = False
    x4 = 0
    own = 3
    pubpos = 0
    pfd = 0
    x_ack = 0
    mask = 1
    wsplit = 0
    dbgts = 0
    dbgmap = {'c': [(0, 9), (2, 10), (3, 11)], 'w': [(0, 12), (3, 13), (5, 14)], 'o': [(3, 15)]}
    fsh = 7
    sl1 = 2
    sl2 = 1
    warm = 1
    cord = 1
    need0 = 192
    x_only = -1
    x_stop = 0
    dual1 = 1
    sp4 = 7
    swz = 0
    pd0 = 0
    sp3 = 4
    h1 = 3
    h2 = 8
    kdpos = 0
    hint = 0
    hpos = 8
    ppos = (16, 20, 30)
    bar2 = 1
    np1 = 1
    np2 = 1
    sp1 = 2
    sp2 = 4
    trace = 0
    clk = 0
    x_nokv = 0
    x_nopub = 0
    x_nopf = 1
    vpos = 2
    osch = 0
    vgap = 3
    x_pfplain = 0
    x_kvplain = 0
    wm1 = 0
    wm2 = 0
    es1 = 12
    es2 = 16
    es3 = 16
    pd1 = 0
    pd2 = 4
    prof = 0
    force_slow = 0
    x_nostore = 0
    x_nodma = 0
    x_plain = 0

def srd(a, d, base, size):
    a(f's_mov_b32 s{d}, s{base}\ns_and_b32 s{d+1}, s{base+1}, 0xffff\ns_mov_b32 s{d+2}, {size:#x}\ns_mov_b32 s{d+3}, 0x20000')

def S(d): return f's[{d}:{d+3}]'

TS = 0x5180000
def stamp(a, cfg, i):
    if cfg.stamps:
        a(f's_memrealtime s[{84+2*i}:{85+2*i}]')
def dump_stamps(a, cfg, n, role):
    if not cfg.stamps: return
    l = a.newlabel('L_ts')
    a(f's_waitcnt lgkmcnt(0)\ns_cmp_lg_u32 s{sW}, 0\ns_cbranch_scc1 {l}')
    a(f's_lshl_b32 s80, s2, 6\ns_add_u32 s80, s80, {TS:#x}\nv_mov_b32 v1, 0')
    for i in range(n):
        a(f'v_mov_b32 v2, s{84+2*i}\nbuffer_store_dword v2, v1, {S(sWS)}, s80 offen offset:{4*i}')
    if cfg.dbgts:
        a('s_mov_b64 exec, 1')
        a(f's_not_b32 s81, s84\nv_mov_b32 v2, s81\nbuffer_atomic_umax v2, v1, {S(sDBG)}, 0 offen offset:32')
        for slot, word in cfg.dbgmap[role]:
            a(f'v_mov_b32 v2, s{84+2*slot}\nbuffer_atomic_umax v2, v1, {S(sDBG)}, 0 offen offset:{4*word}')
    a.label(l)

def prologue(a):
    a('s_cmp_ge_u32 s2, 256\ns_cbranch_scc1 L_end')
    a('s_load_dwordx16 s[16:31], s[0:1], 0\ns_load_dwordx8 s[32:39], s[0:1], 64\ns_load_dwordx2 s[40:41], s[0:1], 96')
    a(f's_and_b32 s{sXCD}, s2, 7\ns_lshr_b32 s{sIDX}, s2, 3')
    a(f'v_lshrrev_b32 v1, 6, v0\nv_and_b32 v0, 63, v0\nv_readfirstlane_b32 s{sW}, v1')
    a('s_waitcnt lgkmcnt(0)')
    srd(a, sWS, P(12), WS_BYTES)
    srd(a, sDBG, P(11), 256)
    a(f's_cmp_eq_u32 s{sXCD}, 0\ns_cbranch_scc1 L_chain')
    a(f's_cmp_eq_u32 s{sXCD}, 1\ns_cbranch_scc1 L_apart')

def role_proj(a, cfg):
    vL16, vSRC, vTR, vX, vRD, vZ = 1, 2, 3, 4, 5, 6
    XB = 16
    ACC = 48
    PK = 64
    XV, RB, RD = 72, 80, 84
    sJ, sWH, sPAR, sT, sT2, sI, sXO, sSLOT, sRSLOT, sOUT, sG = 52, 53, 54, 55, 56, 57, 58, 59, 60, 61, 62
    stamp(a, cfg, 0)
    a(f's_sub_u32 s{sJ}, s{sXCD}, 2\ns_lshr_b32 s{sWH}, s{sJ}, 1\ns_and_b32 s{sPAR}, s{sJ}, 1')
    a(f's_cmp_eq_u32 s{sWH}, 0\ns_cselect_b32 s64, s{P(6)}, s{P(7)}\ns_cselect_b32 s65, s{P(6)+1}, s{P(7)+1}')
    a(f's_mov_b32 s{sOUT}, {VX:#x}\ns_cselect_b32 s{sOUT}, {KX:#x}, s{sOUT}')
    a(f's_cmp_eq_u32 s{sWH}, 2\ns_cselect_b32 s64, s{P(5)}, s64\ns_cselect_b32 s65, s{P(5)+1}, s65\ns_cselect_b32 s{sOUT}, {QX:#x}, s{sOUT}')
    srd(a, sR1, 64, 512 * 8192)
    srd(a, sR2, P(3), 2048 * 1024)
    a(f'v_lshlrev_b32 v{vL16}, 4, v0')
    a(f'v_mov_b32 v{vZ}, 0')
    a(f's_lshl_b32 s{sT2}, s{sJ}, 12\ns_add_u32 s{sT2}, s{sT2}, {FLG+4096:#x}\ns_lshl_b32 s63, s{sIDX}, {cfg.fsh}\ns_add_u32 s{sT2}, s{sT2}, s63')
    a(f's_cmp_lg_u32 s{sW}, 0\ns_cbranch_scc1 L_pz2')
    a(f'buffer_store_dword v{vZ}, v{vZ}, {S(sWS)}, s{sT2} offen sc1')
    a('L_pz2:')
    a(f'v_lshrrev_b32 v8, 4, v0\nv_lshlrev_b32 v8, 3, v8\nv_bfe_u32 v9, v0, 2, 2\nv_add_u32 v8, v8, v9\nv_lshlrev_b32 v8, 13, v8')
    a(f'v_and_b32 v9, 3, v0\nv_lshlrev_b32 v9, 4, v9\nv_add_u32 v{vSRC}, v8, v9')
    a(f'v_lshrrev_b32 v8, 2, v0\nv_lshlrev_b32 v8, 6, v8\nv_and_b32 v9, 3, v0\nv_lshlrev_b32 v9, 3, v9\nv_add_u32 v8, v8, v9')
    a(f's_lshl_b32 s{sT}, s{sW}, 15\nv_add_u32 v{vTR}, s{sT}, v8')
    a(f's_lshl_b32 s{sT}, s{sW}, 3\ns_and_b32 s{sT2}, s{sT}, 15\ns_lshl_b32 s{sT}, s{sT}, 10')
    for i in range(8):
        a(f's_add_u32 s63, s{sT2}, {i}\nv_xor_b32 v8, s63, v0\nv_lshlrev_b32 v8, 4, v8')
        a(f's_add_u32 s63, s{sT}, {(i//4)*4096}\nv_add_u32 v{XV+i}, s63, v8')
    for uu in range(4):
        a(f'v_lshrrev_b32 v8, 4, v0\nv_or_b32 v8, {4*uu}, v8\nv_and_b32 v9, 15, v0\nv_xor_b32 v8, v8, v9\nv_lshlrev_b32 v8, 4, v8')
        a(f'v_lshlrev_b32 v9, 10, v9\nv_add_u32 v{RB+uu}, v8, v9')
    a(f's_lshl_b32 s{sT}, s{sIDX}, 8\ns_lshl_b32 s{sT2}, s{sW}, 6\ns_add_u32 s{sT}, s{sT}, s{sT2}')
    a(f's_lshl_b32 m0, s{sW}, 15')
    for ch in range(8):
        for c in range(4):
            a(f'buffer_load_dwordx4 v{vSRC}, {S(sR1)}, s{sT} offen lds')
            step = (4 if c % 2 == 0 else 28) * 8192
            a(f's_add_u32 s{sT}, s{sT}, {step:#x}\ns_add_u32 m0, m0, 1024')
    def xdma(only=None):
        for i in range(8):
            if only is not None and i != only: continue
            if i == 0: a(f's_lshl_b32 s{sT}, s{sW}, 13\ns_add_u32 m0, s{sSLOT}, s{sT}')
            a(f'buffer_load_dwordx4 v{XV+i}, {S(sR2)}, s{sXO} offen offset:{1024*(i%4)} lds')
            if i == 3: a('s_add_u32 m0, m0, 4096')
        if only is not None and only != 7: return
        a(f's_add_u32 s{sXO}, s{sXO}, 0x10000\ns_min_u32 s{sXO}, s{sXO}, 0x1f8000\ns_add_u32 s{sSLOT}, s{sSLOT}, 0x8000')
        a(f's_cmp_eq_u32 s{sSLOT}, 0x28000\ns_cselect_b32 s{sSLOT}, 0, s{sSLOT}')
    a(f's_lshl_b32 s{sXO}, s{sPAR}, 15\ns_mov_b32 s{sSLOT}, 0x20000\ns_mov_b32 s{sRSLOT}, 0x20000')
    xdma()
    for ch in range(8):
        a(f's_waitcnt vmcnt({8 + 4*(7-ch)})')
        for c in range(4):
            for t in range(2):
                u = 2 * ch + (c >> 1)
                r = (t * 16 + u) * 4 + 2 * (c & 1)
                a(f'ds_read_b64_tr_b16 a[{r}:{r+1}], v{vTR} offset:{ch*4096 + c*1024 + t*32}')
    a('s_waitcnt lgkmcnt(0)\ns_barrier')
    stamp(a, cfg, 1)
    xdma(); xdma()
    for i in range(4): a(f'v_mov_b32 v{PK+i}, -1')
    a(f's_lshl_b32 s{sT}, s{sIDX}, 6\ns_add_u32 s{sT}, s{sT}, s{sJ}\ns_lshl_b32 s{sT}, s{sT}, 15\ns_lshl_b32 s{sT2}, s{sW}, 10\ns_add_u32 s{sT}, s{sT}, s{sT2}\ns_add_u32 s{sT}, s{sT}, {KVM:#x}')
    for r in range(11):
        if r == 10: a(f's_cmp_ge_u32 s{sJ}, 4\ns_cselect_b32 s{sT2}, 0x30000, 0\ns_sub_u32 s{sT}, s{sT}, s{sT2}')
        a(f'buffer_store_dwordx4 v[{PK}:{PK+3}], v{vL16}, {S(sWS)}, s{sT} offen sc1\ns_add_u32 s{sT}, s{sT}, 0x30000')
    a(f's_lshl_b32 s{sT}, s{sPAR}, 15\ns_add_u32 s{sOUT}, s{sOUT}, s{sT}\ns_lshl_b32 s{sT}, s{sIDX}, 21\ns_add_u32 s{sOUT}, s{sOUT}, s{sT}')
    a(f's_cmp_eq_u32 s{sWH}, 1\ns_cselect_b32 s{sT2}, 11, 10\ns_lshl_b32 s{sT}, s{sW}, s{sT2}\ns_add_u32 s{sOUT}, s{sOUT}, s{sT}')
    a(f's_mov_b32 s{sI}, 0\ns_mov_b32 s{sG}, 0\nv_mov_b32 v7, 1')
    a(f's_cmp_eq_u32 s{sWH}, 1\ns_cbranch_scc1 L_pv_loop')
    for isv in (0, 1):
        lab = 'L_pv_loop' if isv else 'L_pk_loop'
        a.label(lab)
        a(f's_cmp_lt_u32 s{sI}, 3\ns_cbranch_scc1 {lab}_w0')
        a(f's_waitcnt vmcnt(22)\ns_branch {lab}_w1')
        a(f'{lab}_w0:\ns_waitcnt vmcnt(16)')
        a(f'{lab}_w1:\ns_barrier')
        for uu in range(4): a(f'v_add_u32 v{RD+uu}, s{sRSLOT}, v{RB+uu}')
        def rd(u):
            for T in range(2):
                b = XB + ((u % 4) * 2 + T) * 4
                a(f'ds_read_b128 v[{b}:{b+3}], v{RD+u%4} offset:{T*16384+(u//4)*256}')
        for u in range(4): rd(u)
        a(f's_and_b32 s{sT}, s{sI}, 3\ns_cmp_lg_u32 s{sT}, 3\ns_cbranch_scc1 {lab}_nf')
        a(f's_cmp_lt_u32 s{sI}, 7\ns_cbranch_scc1 {lab}_nf')
        a(f's_cmp_lg_u32 s{sW}, 0\ns_cbranch_scc1 {lab}_nf2')
        a(f's_mov_b64 exec, 1\nbuffer_atomic_add v7, v{vZ}, {S(sDBG)}, s{sG} offen sc1\ns_mov_b64 exec, -1')
        a(f'{lab}_nf2:\ns_add_u32 s{sG}, s{sG}, 4')
        a(f'{lab}_nf:')
        for u in range(16):
            a(f's_waitcnt lgkmcnt({min(6, 2*(15-u))})')
            for T in range(2):
                for t in range(2):
                    d = ACC + (t * 2 + T) * 4
                    x = XB + ((u % 4) * 2 + T) * 4
                    w = (t * 16 + u) * 4
                    c = '0' if u == 0 else f'v[{d}:{d+3}]'
                    if isv: a(f'v_mfma_f32_16x16x32_bf16 v[{d}:{d+3}], v[{x}:{x+3}], a[{w}:{w+3}], {c}')
                    else:   a(f'v_mfma_f32_16x16x32_bf16 v[{d}:{d+3}], a[{w}:{w+3}], v[{x}:{x+3}], {c}')
            if u + 4 < 16: rd(u + 4)
            if u % 2 == 0 and not cfg.x_nodma: xdma(u // 2)
        a(f's_add_u32 s{sRSLOT}, s{sRSLOT}, 0x8000\ns_cmp_eq_u32 s{sRSLOT}, 0x28000\ns_cselect_b32 s{sRSLOT}, 0, s{sRSLOT}')
        for f in range(2):
            for hlf in range(2):
                d = ACC + ((f * 2 + (hlf ^ f)) if isv else (hlf * 2 + f)) * 4
                a(f'v_cvt_pk_bf16_f32 v{PK+f*4+hlf*2}, v{d}, v{d+1}\nv_cvt_pk_bf16_f32 v{PK+f*4+hlf*2+1}, v{d+2}, v{d+3}')
            off = f * 1024 if isv else 0
            if cfg.x_nostore: continue
            sc = '' if cfg.x_plain else ' sc1'
            if not isv and f == 1:
                a(f's_add_u32 s{sT}, s{sOUT}, 4096')
                a(f'buffer_store_dwordx4 v[{PK+4}:{PK+7}], v{vL16}, {S(sWS)}, s{sT} offen{sc}')
            else:
                a(f'buffer_store_dwordx4 v[{PK+f*4}:{PK+f*4+3}], v{vL16}, {S(sWS)}, s{sOUT} offen offset:{off}{sc}')
        a(f's_add_u32 s{sOUT}, s{sOUT}, 0x10000\ns_add_u32 s{sI}, s{sI}, 1\ns_cmp_lt_u32 s{sI}, 32')
        a.flush()
        a(f's_cbranch_scc1 {lab}')
        if not isv: a('s_branch L_p_done')
    a('L_p_done:')
    stamp(a, cfg, 2)
    a('s_waitcnt vmcnt(0)\ns_barrier')
    stamp(a, cfg, 3)
    a(f's_cmp_lg_u32 s{sW}, 0\ns_cbranch_scc1 L_p_fl')
    a(f's_mov_b64 exec, 1\nbuffer_atomic_add v7, v{vZ}, {S(sDBG)}, s{sG} offen sc1\ns_mov_b64 exec, -1')
    a('L_p_fl:')

def build(cfg):
    a = Asm()
    hdr = open(os.path.join(os.path.dirname(__file__), '..', 'cdna_kernels', NAME + '.s.ref')).read().split('\n')
    for l in hdr:
        if l.startswith('; @launch'): break
        a.raw(l)
    a.raw(f'; @launch grid=(256,1,1) block=(256,1,1) lds={LDS_BYTES}')
    a.raw('.amdgcn_target "amdgcn-amd-amdhsa--gfx950"\n.text')
    a.raw(f'.globl {NAME}_kernel\n.p2align 8\n.type {NAME}_kernel,@function\n{NAME}_kernel:')
    prologue(a)
    if cfg.x_only >= 0: a(f's_cmp_gt_u32 s{sXCD}, {cfg.x_only}\ns_cbranch_scc1 L_end')
    role_proj(a, cfg)
    if 'a' in cfg.roles:
        from role_att import role_att
        role_att(a, cfg)
    dump_stamps(a, cfg, 8, 'w')
    a('s_endpgm')
    a.label('L_chain')
    if 'c' in cfg.roles:
        from role_chain import role_chain
        role_chain(a, cfg)
        dump_stamps(a, cfg, 8, 'c')
    a('s_endpgm')
    a.label('L_apart')
    if 'o' in cfg.roles:
        from role_apart import role_apart
        role_apart(a, cfg)
        dump_stamps(a, cfg, 8, 'o')
    a.label('L_end')
    a('s_endpgm')
    a.raw(f'''.section .rodata,"a"
.p2align 6
.amdhsa_kernel {NAME}_kernel
  .amdhsa_next_free_vgpr 512
  .amdhsa_next_free_sgpr 102
  .amdhsa_accum_offset 256
  .amdhsa_group_segment_fixed_size 0
  .amdhsa_kernarg_size 104
  .amdhsa_user_sgpr_count 2
  .amdhsa_user_sgpr_kernarg_segment_ptr 1
  .amdhsa_system_sgpr_workgroup_id_x 1
.end_amdhsa_kernel''')
    return a.text()

if __name__ == '__main__':
    sys.modules['gen'] = sys.modules['__main__']
    cfg = Cfg()
    out = None
    for arg in sys.argv[1:]:
        if arg.startswith('roles='): cfg.roles = arg[6:]
        elif arg.startswith('out='): out = arg[4:]
        elif '=' in arg:
            k, v = arg.split('='); setattr(cfg, k, tuple(int(x) for x in v.split(',')) if k == 'ppos' else int(v))
    out = out or os.path.join(os.path.dirname(__file__), '..', 'cdna_kernels', NAME + '.s')
    open(out, 'w').write(build(cfg))
    print('wrote', out)
```

```python
from gen import *
import struct, math
def f2u(x): return struct.unpack('<I', struct.pack('<f', x))[0]

def role_apart(a, cfg):
    a.comment('---- sliding-window dilated attention block (64 rows)')
    stamp(a, cfg, 0)
    vL16, vS1, vS2, vTRb, vTR, vNEG, vOut, vT = 1, 2, 3, 4, 5, 6, 7, 8
    RB = 12
    XF = 16
    WF = 56
    AQ, AK, AV = 72, 104, 144
    SC, PK, OC, TT = 16, 24, 28, 32
    OFR = 184
    sT, sT2, sNX, sSL, sRS, sKB, sRB, sC, sNC, sB0 = range(52, 62)
    MK = 62
    sX, sWq, sWo, sOut = 12, 16, 20, 24
    RING = 81920
    args_ready(a)
    touch(a, cfg)
    srd(a, sX, P(0), 2048*1024)
    a('s_mov_b32 s78, s18\ns_mov_b32 s79, s19\ns_mov_b32 s80, s20\ns_mov_b32 s81, s21')
    srd(a, sWq, 78, 512*3072); srd(a, sWo, 80, 512*1024)
    a(f'v_lshlrev_b32 v{vL16}, 4, v0')
    if cfg.warm:
        if cfg.warm > 1:
            for pi in (5, 6)[:cfg.warm-1]:
                srd(a, 44, P(pi), 4096*1024)
                a(f'v_lshlrev_b32 v{vS1}, 7, v0\ns_lshl_b32 s{sT}, s{sIDX}, 17\ns_lshl_b32 s{sT2}, s{sW}, 15\ns_add_u32 s{sT}, s{sT}, s{sT2}')
                for i in range(4):
                    a(f'buffer_load_dword v{248+i}, v{vS1}, s[44:47], s{sT} offen\ns_add_u32 s{sT}, s{sT}, 8192')
        srd(a, 28, P(8), 4096*1024)
        a(f'v_lshlrev_b32 v{vS1}, 7, v0\ns_lshl_b32 s{sT}, s{sIDX}, 17\ns_lshl_b32 s{sT2}, s{sW}, 15\ns_add_u32 s{sT}, s{sT}, s{sT2}')
        for i in range(4):
            a(f'buffer_load_dword v{248+i}, v{vS1}, s[28:31], s{sT} offen\ns_add_u32 s{sT}, s{sT}, 8192')
    srd(a, sOut, P(10), 2048*2048)
    a(f's_lshl_b32 s{sB0}, s{sIDX}, 16')
    for q in range(4):
        a(f's_add_u32 s{sT}, s{sW}, {4*q}\nv_xor_b32 v{XF+q}, s{sT}, v0\nv_lshlrev_b32 v{XF+q}, 4, v{XF+q}')
    for tile in range(5):
        if tile == 0: a(f's_sub_u32 s{sT2}, s{sB0}, 16384\ns_max_i32 s{sT2}, s{sT2}, 0')
        else: a(f's_add_u32 s{sT2}, s{sB0}, {(tile-1)*16384}')
        a(f's_lshl_b32 s{sT}, s{sW}, 10\ns_add_u32 s{sT2}, s{sT2}, s{sT}\ns_add_u32 m0, s{sT}, {tile*16384}')
        for q in range(4):
            a(f'buffer_load_dwordx4 v{XF+q}, {S(sX)}, s{sT2} offen lds')
            if q < 3: a(f's_add_u32 s{sT2}, s{sT2}, 4096\ns_add_u32 m0, m0, 4096')
    g, r, pc, n = vT, vT+1, vT+2, vT+3
    a(f'v_lshrrev_b32 v{g}, 4, v0\nv_bfe_u32 v{r}, v0, 2, 2\nv_and_b32 v{pc}, 3, v0\nv_and_b32 v{n}, 15, v0')
    a(f'v_lshl_add_u32 v{vS1}, v{g}, 3, v{r}\nv_mul_u32_u24 v{vS1}, 3072, v{vS1}\nv_lshl_add_u32 v{vS1}, v{pc}, 4, v{vS1}')
    a(f'v_lshl_add_u32 v{vS2}, v{g}, 2, v{r}\nv_lshlrev_b32 v{vS2}, 10, v{vS2}\nv_lshl_add_u32 v{vS2}, v{pc}, 4, v{vS2}')
    a(f'v_lshrrev_b32 v{vTRb}, 2, v0\nv_lshlrev_b32 v{vTRb}, 6, v{vTRb}\nv_lshl_add_u32 v{vTRb}, v{pc}, 3, v{vTRb}')
    a(f's_mul_i32 s{sRB}, s{sW}, 20480\ns_add_u32 s{sRB}, s{sRB}, {RING}\nv_add_u32 v{vTRb}, s{sRB}, v{vTRb}')
    for uu in range(4):
        a(f'v_or_b32 v{RB+uu}, {4*uu}, v{g}\nv_xor_b32 v{RB+uu}, v{RB+uu}, v{n}\nv_lshlrev_b32 v{RB+uu}, 4, v{RB+uu}\nv_lshl_add_u32 v{RB+uu}, v{n}, 10, v{RB+uu}')
    a(f'v_mov_b32 v{vNEG}, 0xff800000')
    a(f'v_lshlrev_b32 v{vOut}, 11, v{n}\nv_lshl_add_u32 v{vOut}, v{g}, 3, v{vOut}')
    a(f'v_lshlrev_b32 v{r}, 2, v{g}\nv_sub_u32 v{r}, v{n}, v{r}')
    for t in range(2):
        for i in range(4):
            m = MK + 2*(4*t+i)
            a(f'v_add_u32 v{pc}, {16*(1-t)-i}, v{r}\nv_and_b32 v{pc}, -15, v{pc}\nv_cmp_eq_u32 s[{m}:{m+1}], 0, v{pc}')
    a(f's_cmp_eq_u32 s{sIDX}, 0')
    for i in range(4): a(f's_cselect_b64 s[{44+2*i}:{45+2*i}], 0, s[{MK+2*i}:{MK+2*i+1}]')
    c = 0.25 * math.log2(math.e)
    a(f's_mov_b32 s{sC}, {f2u(c):#x}\ns_mov_b32 s{sNC}, {f2u(-c):#x}')
    def issue(srcv, sr, off, rows, rs):
        a(f's_add_u32 m0, s{sRB}, s{sSL}\ns_add_u32 s{sT}, s{sNX}, {off}')
        for cidx in range(4):
            if cidx: a(f's_add_u32 s{sT}, s{sT}, {(rows[cidx]-rows[cidx-1])*rs}\ns_add_u32 m0, m0, 1024')
            a(f'buffer_load_dwordx4 v{srcv}, {S(sr)}, s{sT} offen lds')
        a(f's_add_u32 s{sSL}, s{sSL}, 4096\ns_cmp_eq_u32 s{sSL}, 20480\ns_cselect_b32 s{sSL}, 0, s{sSL}')
    ROWS1, ROWS2 = [0, 4, 32, 36], [0, 16, 32, 48]
    def wread():
        a(f'v_add_u32 v{vTR}, s{sRS}, v{vTRb}')
        a(f's_add_u32 s{sRS}, s{sRS}, 4096\ns_cmp_eq_u32 s{sRS}, 20480\ns_cselect_b32 s{sRS}, 0, s{sRS}')
        for cidx in range(4):
            for t in range(2):
                rr = WF + 4*(2*(cidx >> 1) + t) + 2*(cidx & 1)
                a(f'ds_read_b64_tr_b16 v[{rr}:{rr+1}], v{vTR} offset:{cidx*1024 + t*32}')
    a(f's_lshl_b32 s{sNX}, s{sW}, 8\ns_mov_b32 s{sSL}, 0\ns_mov_b32 s{sRS}, 0')
    for m in range(3): issue(vS1, sWq, m*1024, ROWS1, 3072)
    a('s_waitcnt vmcnt(12)\ns_barrier')
    for hp in range(4):
        for i in range(0, 112, 2): a(f'v_mov_b64 v[{AQ+i}:{AQ+i+1}], 0')
        a(f's_mov_b32 s{sKB}, 0')
        lab = f'L_x_kb{hp}'
        a.label(lab)
        for half in range(2):
            a(f's_add_u32 s{sNX}, s{sNX}, {64*3072}')
            if half == 1:
                nxt = min(hp + 1, 3) * 64
                a(f's_lshl_b32 s{sT}, s{sW}, 8\ns_add_u32 s{sT}, s{sT}, {nxt}\ns_cmp_eq_u32 s{sKB}, 768\ns_cselect_b32 s{sNX}, s{sT}, s{sNX}')
            for ks in range(2):
                a(f'v_add_u32 v{vT}, s{sKB}, v{RB+2*half+ks}')
                for tile in range(4):
                    x = XF + 4*(5*ks + tile)
                    a(f'ds_read_b128 v[{x}:{x+3}], v{vT} offset:{tile*16384}')
                x = XF + 4*(5*ks + 4)
                a(f'v_add_u32 v{vT}, 0x10000, v{vT}\nds_read_b128 v[{x}:{x+3}], v{vT}')
            for m in range(3):
                a('s_waitcnt vmcnt(8)')
                wread()
                issue(vS1, sWq, m*1024, ROWS1, 3072)
                a('s_waitcnt lgkmcnt(0)')
                for ks in range(2):
                    for t in range(2):
                        w = WF + 4*(2*ks + t)
                        for tile in range(5):
                            if m == 0 and tile == 0: continue
                            x = XF + 4*(5*ks + tile)
                            d = (AQ + 4*(4*t + tile - 1)) if m == 0 else ((AK if m == 1 else AV) + 4*(5*t + tile))
                            if m < 2: a(f'v_mfma_f32_16x16x32_bf16 v[{d}:{d+3}], v[{w}:{w+3}], v[{x}:{x+3}], v[{d}:{d+3}]')
                            else:     a(f'v_mfma_f32_16x16x32_bf16 v[{d}:{d+3}], v[{x}:{x+3}], v[{w}:{w+3}], v[{d}:{d+3}]')
        a(f's_add_u32 s{sKB}, s{sKB}, 256\ns_cmp_lt_u32 s{sKB}, 1024\ns_cbranch_scc1 {lab}')
        a.flush(); a('s_nop 7')
        for base, nt in ((AQ, 8), (AK, 10), (AV, 10)):
            for tl in range(nt):
                a(f'v_cvt_pk_bf16_f32 v{base+2*tl}, v{base+4*tl}, v{base+4*tl+1}\nv_cvt_pk_bf16_f32 v{base+2*tl+1}, v{base+4*tl+2}, v{base+4*tl+3}')
        for t in range(2):
            for R in range(1, 5):
                q = AQ + 2*(4*t + R - 1)
                for tt in range(2):
                    k = AK + 2*(5*t + R - 1 + tt)
                    a(f'v_mfma_f32_16x16x16_bf16 v[{SC+4*tt}:{SC+4*tt+3}], v[{k}:{k+1}], v[{q}:{q+1}], 0')
                for x in range(8):
                    m = (44 + 2*x) if (R == 1 and x < 4) else MK + 2*x
                    a(f'v_cndmask_b32 v{SC+x}, v{vNEG}, v{SC+x}, s[{m}:{m+1}]')
                MX, t0 = TT, TT + 2
                def allg(op, src):
                    a(f'v_mov_b32 v{t0}, v{src}\nv_mov_b32 v{t0+1}, v{src}\nv_permlane32_swap_b32 v{t0}, v{t0+1}')
                    a(f'{op} v{t0+2}, v{t0}, v{t0+1}\n{op} v{t0+3}, v{t0}, v{t0+1}\nv_permlane16_swap_b32 v{t0+2}, v{t0+3}\n{op} v{t0}, v{t0+2}, v{t0+3}')
                a(f'v_max3_f32 v{MX}, v{SC}, v{SC+1}, v{SC+2}\nv_max3_f32 v{MX}, v{MX}, v{SC+3}, v{SC+4}\nv_max3_f32 v{MX}, v{MX}, v{SC+5}, v{SC+6}\nv_max_f32 v{MX}, v{MX}, v{SC+7}')
                allg('v_max_f32', MX)
                a(f'v_mul_f32 v{MX}, s{sNC}, v{t0}')
                for x in range(8): a(f'v_fma_f32 v{SC+x}, v{SC+x}, s{sC}, v{MX}')
                for x in range(8): a(f'v_exp_f32 v{SC+x}, v{SC+x}')
                for x in range(4): a(f'v_cvt_pk_bf16_f32 v{PK+x}, v{SC+2*x}, v{SC+2*x+1}')
                vv = AV + 2*(5*t + R - 1)
                a(f'v_add_f32 v{MX}, v{SC}, v{SC+1}\nv_add_f32 v{MX}, v{MX}, v{SC+2}')
                a(f'v_mfma_f32_16x16x32_bf16 v[{OC}:{OC+3}], v[{vv}:{vv+3}], v[{PK}:{PK+3}], 0')
                for x in range(3, 8): a(f'v_add_f32 v{MX}, v{MX}, v{SC+x}')
                allg('v_add_f32', MX)
                a(f'v_rcp_f32 v{t0}, v{t0}')
                for x in range(4): a(f'v_mul_f32 v{OC+x}, v{OC+x}, v{t0}')
                o = OFR + 4*(4*hp + R - 1) + 2*t
                a(f'v_cvt_pk_bf16_f32 v{o}, v{OC}, v{OC+1}\nv_cvt_pk_bf16_f32 v{o+1}, v{OC+2}, v{OC+3}')
    stamp(a, cfg, 1)
    a('s_waitcnt vmcnt(0)\ns_barrier')
    a(f's_lshl_b32 s{sNX}, s{sW}, 8\ns_mov_b32 s{sSL}, 0\ns_mov_b32 s{sRS}, 0')
    for cp in range(4): issue(vS2, sWo, cp*64, ROWS2, 1024)
    a(f's_lshl_b32 s{sT}, s{sW}, 14\nv_add_u32 v{vT}, s{sT}, v{vL16}')
    for f in range(16): a(f'ds_write_b128 v{vT}, v[{OFR+4*f}:{OFR+4*f+3}] offset:{f*1024}')
    OA = 72
    for i in range(0, 128, 2): a(f'v_mov_b64 v[{OA+i}:{OA+i+1}], 0') if OA + i < OFR else None
    a('s_waitcnt lgkmcnt(0)\ns_barrier')
    for i in range(OFR - OA, 128, 2): a(f'v_mov_b64 v[{OA+i}:{OA+i+1}], 0')
    a(f's_mov_b32 s{sKB}, 0')
    a('L_x_o:')
    a(f's_add_u32 s{sNX}, s{sNX}, 0x10000\ns_and_b32 s{sNX}, s{sNX}, 0x7ffff')
    a(f'v_add_u32 v{vT}, s{sKB}, v{vL16}')
    for f in range(8): a(f'ds_read_b128 v[{XF+4*f}:{XF+4*f+3}], v{vT} offset:{f*1024}')
    for cp in range(4):
        a('s_waitcnt vmcnt(12)')
        wread()
        issue(vS2, sWo, cp*64, ROWS2, 1024)
        a('s_waitcnt lgkmcnt(0)')
        for ks in range(2):
            for t in range(2):
                w = WF + 4*(2*ks + t)
                for R in range(4):
                    x = XF + 4*(4*ks + R); d = OA + 4*(4*(2*cp + t) + R)
                    a(f'v_mfma_f32_16x16x32_bf16 v[{d}:{d+3}], v[{w}:{w+3}], v[{x}:{x+3}], v[{d}:{d+3}]')
    a(f's_add_u32 s{sKB}, s{sKB}, 8192\ns_cmp_lt_u32 s{sKB}, 0x10000\ns_cbranch_scc1 L_x_o')
    a.flush(); a('s_nop 7')
    a(f's_lshl_b32 s{sT}, s{sIDX}, 17\ns_lshl_b32 s{sT2}, s{sW}, 8\ns_add_u32 s{sT}, s{sT}, s{sT2}')
    for R in range(4):
        for ct in range(8):
            d = OA + 4*(4*ct + R)
            a(f'v_cvt_pk_bf16_f32 v{d}, v{d}, v{d+1}\nv_cvt_pk_bf16_f32 v{d+1}, v{d+2}, v{d+3}')
            a(f'buffer_store_dwordx2 v[{d}:{d+1}], v{vOut}, {S(sOut)}, s{sT} offen offset:{ct*32}{cfg.OS}')
        a(f's_add_u32 s{sT}, s{sT}, 0x8000')
    a('s_waitcnt vmcnt(0)')
    stamp(a, cfg, 3)
```

```python
from gen import *
import struct, math
def f2u(x): return struct.unpack('<I', struct.pack('<f', x))[0]

def spin(a, name, srd, soff, target, vtmp, vaddr, scnt, sleep=1):
    a(f's_cmp_lg_u32 s{sW}, 0\ns_cbranch_scc1 {name}_ok')
    a(f's_mov_b32 s{scnt}, 0')
    a.label(name)
    a(f'buffer_load_dword v{vtmp}, v{vaddr}, {S(srd)}, {soff} offen sc1\ns_waitcnt vmcnt(0)')
    a(f'v_cmp_gt_u32 vcc, {target}, v{vtmp}\ns_cbranch_vccz {name}_ok')
    a(f's_sleep {sleep}\ns_add_u32 s{scnt}, s{scnt}, 1\ns_cmp_lt_u32 s{scnt}, 0x200000\ns_cbranch_scc1 {name}')
    a.label(name + '_ok')
    a('s_barrier')

def role_att(a, cfg):
    a.comment('---- attention of the segment rows + output projection')
    vL16, vZ, vONE = 1, 6, 7
    vL8, vKa, vKb, vKr, vOut, vNEG, vRW, vRR, vT = 2, 3, 4, 5, 8, 9, 10, 11, 12
    QF, KF, VF, PB, KM = 16, 32, 64, 80, 96
    vVr = 88
    S0, S1, SMm = 112, 116, 120
    PP, PD, AC, OPK, TT = 124, 130, 136, 152, 160
    OB = 128
    OA = 112
    sJ = 52
    sT, sT2, sS, sB, sTq, sEH, sGD, sNEED, sCNT, sFC, sFA, sC, sNC, sO = range(53, 67)
    MK = 68
    DPP = 'row_mask:0xf bank_mask:0xf'
    srd(a, sR1, P(8), 4096*1024)
    srd(a, sR2, P(10), 2048*2048)
    vWS = 90
    a(f'v_lshrrev_b32 v{vWS}, 2, v0\nv_lshlrev_b32 v{vWS}, 10, v{vWS}\nv_and_b32 v{vT+1}, 3, v0\nv_lshl_add_u32 v{vWS}, v{vT+1}, 4, v{vWS}')
    a(f's_lshl_b32 s{sO}, s{sW}, 20\ns_and_b32 s{sT2}, s{sIDX}, 15\ns_lshl_b32 s{sT2}, s{sT2}, 6\ns_add_u32 s{sO}, s{sO}, s{sT2}')
    def wo_issue():
        a(f's_lshl_b32 m0, s{sW}, 15')
        for i in range(32):
            a(f'buffer_load_dwordx4 v{vWS}, {S(sR1)}, s{sO} offen lds')
            a(f's_add_u32 s{sO}, s{sO}, 0x4000\ns_add_u32 m0, m0, 1024')
    def wo_read(ps):
        for i in range(32):
            if i % 8 == 0: a(f's_waitcnt vmcnt({24 - i})')
            for ct in range(2):
                r = 128*ct + 64*ps + 2*i
                a(f'ds_read_b64_tr_b16 a[{r}:{r+1}], v{vL8} offset:{i*1024 + ct*32}')
        a('s_waitcnt lgkmcnt(0)')
    wo_issue()
    a(f's_lshl_b32 s{sT}, s{sW}, 15\nv_lshrrev_b32 v{vL8}, 2, v0\nv_lshlrev_b32 v{vL8}, 6, v{vL8}\nv_lshl_add_u32 v{vL8}, v{vT+1}, 3, v{vL8}\nv_add_u32 v{vL8}, s{sT}, v{vL8}')
    a(f's_and_b32 s{sTq}, s{sW}, 1\ns_lshr_b32 s{sEH}, s{sW}, 1')
    n, g, b4, b5 = vT+1, vT+2, vT+3, 112
    a(f'v_and_b32 v{n}, 15, v0\nv_lshrrev_b32 v{g}, 4, v0\nv_bfe_u32 v{b4}, v0, 4, 1\nv_bfe_u32 v{b5}, v0, 5, 1')
    PRIV = 131072
    a(f'v_lshlrev_b32 v{vKa}, 4, v{n}\nv_lshl_add_u32 v{vKa}, v{b5}, 8, v{vKa}\nv_lshl_add_u32 v{vKa}, v{b4}, 3, v{vKa}')
    a(f's_lshl_b32 s{sT}, s{sW}, 9\ns_add_u32 s{sT}, s{sT}, {PRIV}\nv_add_u32 v{vKa}, s{sT}, v{vKa}')
    a(f'v_lshlrev_b32 v113, 3, v0\ns_add_u32 s{sT}, s{sT}, 2048\nv_add_u32 v{vKb}, s{sT}, v113')
    a(f's_lshl_b32 s{sT}, s{sEH}, 10\ns_add_u32 s{sT}, s{sT}, {PRIV+2048}\nv_add_u32 v{vVr}, s{sT}, v113')
    a(f'v_lshrrev_b32 v113, 2, v0\nv_lshlrev_b32 v113, 4, v113\nv_and_b32 v114, 1, v0\nv_lshl_add_u32 v113, v114, 3, v113\nv_add_u32 v{vKr}, {PRIV}, v113')
    a(f'v_lshlrev_b32 v{vOut}, 11, v{n}\nv_lshl_add_u32 v{vOut}, v{g}, 3, v{vOut}')
    a(f's_lshl_b32 s{sT}, s{sW}, 10\ns_add_u32 s{sT}, s{sT}, {PRIV+8192}\nv_add_u32 v{vRW}, s{sT}, v{vL16}')
    a(f's_lshl_b32 s{sT}, s{sTq}, 12\ns_add_u32 s{sT}, s{sT}, {PRIV+8192}\nv_add_u32 v{vRR}, s{sT}, v{vL16}')
    sc = 128 ** -0.5
    a(f'v_mov_b32 v{vNEG}, {f2u(-1e9/sc):#x}')
    a(f's_lshl_b32 s{sT}, s{sTq}, 4\nv_lshlrev_b32 v113, 2, v{g}\nv_sub_u32 v113, v{n}, v113\nv_add_u32 v113, s{sT}, v113')
    for Tk in range(2):
        for i in range(4):
            m = MK + 2*(4*Tk+i)
            a(f'v_cmp_gt_i32 s[{m}:{m+1}], {16*Tk+i}, v113')
    c = sc * math.log2(math.e)
    a(f's_mov_b32 s{sC}, {f2u(c):#x}\ns_mov_b32 s{sNC}, {f2u(-c):#x}')
    a(f's_lshl_b32 s{sT}, s{sJ}, 12\ns_add_u32 s{sFA}, s{sT}, {FLG+4096:#x}')
    a(f's_mov_b32 s{sS}, s{sJ}\ns_mov_b32 s{sGD}, -1\ns_mov_b32 s{sNEED}, 1\nv_and_b32 v{vONE}, 31, v0\nv_lshlrev_b32 v{vONE}, {cfg.fsh}, v{vONE}')
    wo_read(0); wo_issue(); wo_read(1)
    stamp(a, cfg, 4)
    spin(a, 'L_a_iw', sDBG, 0, 192, vT, vZ, sCNT, 8)
    a(f'v_min_u32 v113, 5, v0\nv_lshlrev_b32 v113, 7, v113\ns_lshl_b32 s{sB}, s{sIDX}, 21\ns_add_u32 s{sB}, s{sB}, {FPR:#x}')
    spin(a, 'L_a_gw', sWS, f's{sB}', 32, vT, 113, sCNT, 4)
    a('L_a_loop:')
    a(f's_lshl_b32 s{sB}, s{sIDX}, 6\ns_add_u32 s{sB}, s{sB}, s{sS}\ns_lshl_b32 s{sB}, s{sB}, 15')
    a(f's_lshl_b32 s{sT}, s{sTq}, 12\ns_add_u32 s{sT}, s{sT}, s{sB}')
    for u in range(4): a(f'buffer_load_dwordx4 v[{QF+4*u}:{QF+4*u+3}], v{vL16}, {S(sWS)}, s{sT} offen offset:{u*1024} sc1')
    for Tk in range(2):
        a(f's_add_u32 s{sT}, s{sB}, {KX + Tk*4096:#x}')
        for u in range(4): a(f'buffer_load_dwordx4 v[{KF+16*Tk+4*u}:{KF+16*Tk+4*u+3}], v{vL16}, {S(sWS)}, s{sT} offen offset:{u*1024} sc1')
    a(f's_lshl_b32 s{sT}, s{sEH}, 12\ns_add_u32 s{sT}, s{sT}, s{sB}\ns_add_u32 s{sT}, s{sT}, {VX:#x}')
    for u in range(4): a(f'buffer_load_dwordx4 v[{VF+4*u}:{VF+4*u+3}], v{vL16}, {S(sWS)}, s{sT} offen offset:{u*1024} sc1')
    a('s_waitcnt vmcnt(4)')
    for u in range(4):
        for Tk, d in ((0, S0), (1, S1)):
            cc = '0' if u == 0 else f'v[{d}:{d+3}]'
            a(f'v_mfma_f32_16x16x32_bf16 v[{d}:{d+3}], v[{KF+16*Tk+4*u}:{KF+16*Tk+4*u+3}], v[{QF+4*u}:{QF+4*u+3}], {cc}')
    for x in range(8):
        a(f'v_cndmask_b32 v{S0+x}, v{S0+x}, v{vNEG}, s[{MK+2*x}:{MK+2*x+1}]')
    MX = TT
    a(f'v_max3_f32 v{MX}, v{S0}, v{S0+1}, v{S0+2}\nv_max3_f32 v{MX}, v{MX}, v{S0+3}, v{S0+4}\nv_max3_f32 v{MX}, v{MX}, v{S0+5}, v{S0+6}\nv_max_f32 v{MX}, v{MX}, v{S0+7}')
    a(f'v_mov_b32 v{PD+1}, 0\nv_mov_b32 v{PD+2}, 0')
    a(f's_lshl_b32 s{sT}, s{sW}, 10\ns_add_u32 s{sO}, s{sB}, s{sT}\ns_add_u32 s{sO}, s{sO}, {KVM:#x}\ns_mov_b32 s{sCNT}, 0')
    a('L_a_cw:')
    a(f'buffer_load_dwordx4 v[{PB}:{PB+3}], v{vL16}, {S(sWS)}, s{sO} offen sc1\ns_waitcnt vmcnt(0)')
    a(f'v_cmp_eq_u32 vcc, -1, v{PB}\ns_cbranch_vccz L_a_cw_ok')
    a(f's_sleep {cfg.sl1}\ns_add_u32 s{sCNT}, s{sCNT}, 1\ns_cmp_lt_u32 s{sCNT}, 0x200000\ns_cbranch_scc1 L_a_cw')
    a('L_a_cw_ok:')
    stamp(a, cfg, 1)
    a(f'ds_write_b64 v{vKa}, v[{PB}:{PB+1}]\nds_write_b64 v{vKb}, v[{PB+2}:{PB+3}]\ns_waitcnt lgkmcnt(0)\ns_barrier')
    for p in range(2): a(f'ds_read_b64 v[{PB+4*p+2}:{PB+4*p+3}], v{vVr} offset:{p*512}')
    for u in range(4):
        for t in range(2):
            a(f'ds_read_b64_tr_b16 v[{KM+4*u+2*t}:{KM+4*u+2*t+1}], v{vKr} offset:{u*512 + t*256}')
    for u in range(4):
        a(f's_waitcnt lgkmcnt({6-2*u})')
        cc = '0' if u == 0 else f'v[{SMm}:{SMm+3}]'
        a(f'v_mfma_f32_16x16x32_bf16 v[{SMm}:{SMm+3}], v[{KM+4*u}:{KM+4*u+3}], v[{QF+4*u}:{QF+4*u+3}], {cc}')
    for i in range(2): a(f'v_mov_b32_dpp v{SMm+i}, v{SMm+2+i} quad_perm:[0,1,2,3] row_mask:0xc bank_mask:0xf')
    t0 = TT + 2
    def allg(op, src):
        a(f'v_mov_b32 v{t0}, v{src}\nv_mov_b32 v{t0+1}, v{src}\nv_permlane32_swap_b32 v{t0}, v{t0+1}')
        a(f'{op} v{t0+2}, v{t0}, v{t0+1}\n{op} v{t0+3}, v{t0}, v{t0+1}\nv_permlane16_swap_b32 v{t0+2}, v{t0+3}\n{op} v{t0}, v{t0+2}, v{t0+3}')
    a(f'v_max3_f32 v{MX}, v{MX}, v{SMm}, v{SMm+1}')
    allg('v_max_f32', MX)
    a(f'v_mul_f32 v{MX}, s{sNC}, v{t0}')
    for x in range(10): a(f'v_fma_f32 v{S0+x}, v{S0+x}, s{sC}, v{MX}')
    for x in range(10): a(f'v_exp_f32 v{S0+x}, v{S0+x}')
    for i, x in enumerate((0, 2, 4, 6, 0, 2)): a(f'v_cvt_pk_bf16_f32 v{PP+i}, v{S0+x}, v{S0+x+1}')
    a(f'v_cvt_pk_bf16_f32 v{PD}, v{SMm}, v{SMm+1}\nv_cvt_pk_bf16_f32 v{PD+3}, v{SMm+1}, v{SMm}')
    for tau in range(4):
        pb = PP + 2*(tau & 1)
        a(f'v_mfma_f32_16x16x32_bf16 v[{AC+4*tau}:{AC+4*tau+3}], v[{VF+4*tau}:{VF+4*tau+3}], v[{pb}:{pb+3}], 0')
    for tau in range(4):
        vb = PB + 4*(tau >> 1) + 2; pd = PD + 2*(tau & 1)
        a(f'v_mfma_f32_16x16x16_bf16 v[{AC+4*tau}:{AC+4*tau+3}], v[{vb}:{vb+1}], v[{pd}:{pd+1}], v[{AC+4*tau}:{AC+4*tau+3}]')
    a(f'v_add_f32 v{MX}, v{S0}, v{S0+1}')
    for x in range(2, 10): a(f'v_add_f32 v{MX}, v{MX}, v{S0+x}')
    allg('v_add_f32', MX)
    a(f'v_rcp_f32 v{t0}, v{t0}')
    for x in range(16): a(f'v_mul_f32 v{AC+x}, v{AC+x}, v{t0}')
    for x in range(8): a(f'v_cvt_pk_bf16_f32 v{OPK+x}, v{AC+2*x}, v{AC+2*x+1}')
    a(f's_lshl_b32 s{sT}, s{sTq}, 12\ns_lshl_b32 s{sT2}, s{sEH}, 11\ns_add_u32 s{sT}, s{sT}, s{sT2}\ns_add_u32 s{sT}, s{sT}, {OX:#x}')
    a(f's_lshl_b32 s{sT2}, s{sS}, 5\ns_add_u32 s{sT2}, s{sT2}, s{sIDX}\ns_lshl_b32 s{sT2}, s{sT2}, 13\ns_add_u32 s{sT}, s{sT}, s{sT2}')
    for uu in range(2): a(f'buffer_store_dwordx4 v[{OPK+4*uu}:{OPK+4*uu+3}], v{vL16}, {S(sWS)}, s{sT} offen offset:{uu*1024} sc1')
    stamp(a, cfg, 2)
    a('s_waitcnt vmcnt(0)\ns_barrier')
    stamp(a, cfg, 4)
    a(f's_cmp_lg_u32 s{sW}, 0\ns_cbranch_scc1 L_a_nf')
    a(f'v_mov_b32 v{vT}, s{sNEED}\ns_lshl_b32 s{sT}, s{sIDX}, {cfg.fsh}\ns_add_u32 s{sT}, s{sT}, s{sFA}')
    a(f's_mov_b64 exec, 1\nbuffer_store_dword v{vT}, v{vZ}, {S(sWS)}, s{sT} offen sc1\ns_mov_b64 exec, -1')
    a('L_a_nf:')
    spin(a, 'L_a_ow', sWS, f's{sFA}', f's{sNEED}', vT, vONE, sCNT, cfg.sl2)
    stamp(a, cfg, 6)
    a(f's_lshl_b32 s{sO}, s{sS}, 18\ns_lshl_b32 s{sT}, s{sW}, 16\ns_add_u32 s{sO}, s{sO}, s{sT}\ns_add_u32 s{sO}, s{sO}, {OX:#x}')
    a(f's_lshr_b32 s{sT}, s{sIDX}, 4\ns_lshl_b32 s{sT}, s{sT}, 12\ns_add_u32 s{sO}, s{sO}, s{sT}')
    for f in range(32):
        r = OB + 4*f
        a(f'buffer_load_dwordx4 v[{r}:{r+3}], v{vL16}, {S(sWS)}, s{sO} offen offset:{(f%4)*1024} sc1')
        if f % 4 == 3: a(f's_add_u32 s{sO}, s{sO}, 8192')
    for f in range(32):
        if f % 2 == 0: a(f's_waitcnt vmcnt({30 - f})')
        for ct in range(2):
            r = OB + 4*f; wv = 128*ct + 4*f; d = OA + 8*ct + 4*(f & 1)
            cc = '0' if f < 2 else f'v[{d}:{d+3}]'
            a(f'v_mfma_f32_16x16x32_bf16 v[{d}:{d+3}], a[{wv}:{wv+3}], v[{r}:{r+3}], {cc}')
    stamp(a, cfg, 7)
    for T in range(2):
        for i in range(4): a(f'v_add_f32 v{OA+8*T+i}, v{OA+8*T+i}, v{OA+8*T+4+i}')
        a(f'ds_write_b128 v{vRW}, v[{OA+8*T}:{OA+8*T+3}] offset:{T*4096}')
    a('s_waitcnt lgkmcnt(0)\ns_barrier')
    a(f's_cmp_ge_u32 s{sW}, 2\ns_cbranch_scc1 L_a_ns')
    for w in range(4): a(f'ds_read_b128 v[{OB+4*w}:{OB+4*w+3}], v{vRR} offset:{w*1024}')
    a(f's_lshl_b32 s{sT}, s{sS}, 16\ns_lshr_b32 s{sT2}, s{sIDX}, 4\ns_lshl_b32 s{sT2}, s{sT2}, 15\ns_add_u32 s{sT}, s{sT}, s{sT2}\ns_and_b32 s{sT2}, s{sIDX}, 15\ns_lshl_b32 s{sT2}, s{sT2}, 6\ns_add_u32 s{sT}, s{sT}, s{sT2}')
    a(f's_lshl_b32 s{sT2}, s{sTq}, 5\ns_add_u32 s{sT}, s{sT}, s{sT2}')
    a('s_waitcnt lgkmcnt(0)')
    for i in range(4): a(f'v_add_f32 v{OB+i}, v{OB+i}, v{OB+4+i}\nv_add_f32 v{OB+8+i}, v{OB+8+i}, v{OB+12+i}')
    for i in range(4): a(f'v_add_f32 v{OB+i}, v{OB+i}, v{OB+8+i}')
    a(f'v_cvt_pk_bf16_f32 v{OB}, v{OB}, v{OB+1}\nv_cvt_pk_bf16_f32 v{OB+1}, v{OB+2}, v{OB+3}')
    a(f'buffer_store_dwordx2 v[{OB}:{OB+1}], v{vOut}, {S(sR2)}, s{sT} offen offset:1024{cfg.OS}')
    a('L_a_ns:')
    a(f's_add_u32 s{sNEED}, s{sNEED}, 1\ns_add_u32 s{sS}, s{sS}, 6\ns_cmp_lt_u32 s{sS}, 64')
    a.flush()
    a('s_cbranch_scc1 L_a_loop')
    stamp(a, cfg, 5)
```

```python
from gen import *
import struct, math

def f2u(x): return struct.unpack('<I', struct.pack('<f', x))[0]

L_MEM, L_KX, L_Q, L_O, L_LS, L_ES = 0, 8192, 0, 4096, 24576, 81920
vL16, vTX, vMem, vMH1, vMH2, vKw, vTM, vOw, vPst, vMst, vIdx, SEL, VXF = 1, 2, 3, 4, 5, 6, 7, 8, 9, 10, 11, 12, 16
ES0 = 24
F0, F0R = 104, 112
AV, AK, AQ, PUB = 120, 124, 128, 132
FO = 24
KXF, QKF = 72, 104
SX, SX1, SM = 24, 28, 32
ACC0, ACC1, PF, PM = 96, 100, 124, 128
OUT, OF, LS0 = 104, 24, 40
RL, RDA = 112, 104
MA01 = F0
L_DUM = 23552
sT, sT2, sS, sMEM, sPART, sPART2, sRED, sMST, sKX, sVX, sPUB, sFL, sC, sNC, sSPIN, sG = range(52, 68)
sTAG, sLIM, sM0K, sKXB = 82, 83, 13, 14
sP1, sP3 = 48, 49
HINT = MEMS + 0x8000

OORD = [('o',x,0) for x in range(4)] + [('o',x,sg) for x in range(4) for sg in range(1,4)]
OTH = [(2*pr + h, rho) for pr in range(1, 4) for rho in range(2) for h in range(2)]
PORD = [(m,rho,sl) for rho in range(2) for sl in range(2) for m in 'qkv']
PORD += [(m,rho,sl) for (sl,rho) in OTH for m in 'qk']
HELD = [('v',rho,sl) for (sl,rho) in OTH]
def blocks():
    loc = {}
    for i, b in enumerate(PORD[:10]): loc[b] = ('es', i)
    for i, b in enumerate(OORD[-7:]): loc[b] = ('ls', i)
    n = 0
    for b in PORD + HELD + OORD:
        if b in loc: continue
        loc[b] = ('a', 8*n) if n < 32 else ('v', 136 + 8*(n-32)); n += 1
    assert n == 47
    return loc
LOC = blocks()
def breg(b):
    k, i = LOC[b]
    if k == 'es': return 'v', ES0 + 8*i
    if k == 'ls': return 'v', LS0 + 8*i
    return k, i
def B8(b):
    k, i = breg(b); return f'{k}[{i}:{i+7}]'
def ldsaddr(off):
    if off < 65536 - 8192: return vMem, off
    if off < 65536: return vMem, off
    if off < 131072: return vMH1, off - 65536
    return vMH2, off - 131072
def ma(rho, slot):
    b = (F0R if rho else F0) + 4*slot if slot < 2 else FO + 4*OTH.index((slot, rho))
    return b
def smf(b):
    m, rho, slot = b
    acc = {'q': AQ, 'k': AK, 'v': AV}[m]
    f = ma(rho, slot)
    return f'v_smfmac_f32_16x16x64_bf16 v[{acc}:{acc+3}], v[{f}:{f+3}], {B8(b)}, v{vIdx}'
def stage_reads(kind, idxs):
    out = []
    for i in idxs:
        base, r0 = (L_ES, ES0) if kind == 'es' else (L_LS, LS0)
        for h in range(2):
            va, off = ldsaddr(base + i*8192 + h*1024)
            out.append(f'ds_read_b128 v[{r0+8*i+4*h}:{r0+8*i+4*h+3}], v{va} offset:{off}')
    return out
def weave(a, M, F, per=2, lead=0):
    F = list(F)
    for _ in range(lead):
        if F: a(F.pop(0))
    for m in M:
        a(m)
        for _ in range(per):
            if F: a(F.pop(0))
    for f in F: a(f)

def poll(a, name, issue, check, cnt=0):
    a(f's_mov_b32 s{sSPIN}, 0')
    a.label(name)
    for l in issue: a(l)
    a(f's_waitcnt vmcnt({cnt})')
    for l in check: a(l)
    a(f's_cbranch_vccz {name}_ok')
    a(f's_add_u32 s{sSPIN}, s{sSPIN}, 1\ns_cmp_lt_u32 s{sSPIN}, 0x200000\ns_cbranch_scc1 {name}')
    a('s_branch L_end')
    a.label(name + '_ok')

def wait_word(a, name, srd, soff, target, v=0, sleep=2):
    a(f's_mov_b32 s{sSPIN}, 0\nv_mov_b32 v{v+1}, 0')
    a.label(name)
    a(f'buffer_load_dword v{v}, v{v+1}, {S(srd)}, {soff} offen sc1\ns_waitcnt vmcnt(0)')
    a(f'v_readfirstlane_b32 s{sT2}, v{v}')
    a(f's_cmp_ge_u32 s{sT2}, {target}\ns_cbranch_scc1 {name}_ok')
    a(f's_sleep {sleep}\ns_add_u32 s{sSPIN}, s{sSPIN}, 1\ns_cmp_lt_u32 s{sSPIN}, 0x400000\ns_cbranch_scc1 {name}')
    a('s_branch L_end')
    a.label(name + '_ok')

VT = 36
KPK = [f'v_cvt_pk_bf16_f32 v{PUB}, v{AK}, v{AK+1}', f'v_cvt_pk_bf16_f32 v{PUB+1}, v{AK+2}, v{AK+3}']
CANON = f'v_min_u32 v{PUB}, -2, v{PUB}'

def progress(a, name, v, need_s):
    a(f's_mov_b32 s{sSPIN}, 0')
    a.label(name)
    a(f'v_readlane_b32 s{sT}, v{v}, 0\nv_readlane_b32 s{sLIM}, v{v}, 1\ns_min_u32 s{sT}, s{sT}, s{sLIM}')
    a(f'v_readlane_b32 s{sLIM}, v{v}, 2\ns_min_u32 s{sT}, s{sT}, s{sLIM}\nv_readlane_b32 s{sLIM}, v{v}, 3\ns_min_u32 s{sT}, s{sT}, s{sLIM}\ns_lshl_b32 s{sT}, s{sT}, 1')
    a(f's_cmp_gt_u32 s{sT}, {need_s}\ns_cbranch_scc1 {name}_ok')
    a(f's_sleep 2\nbuffer_load_dword v{v}, v{v+1}, {S(sWS)}, s{sFL} offen sc1\ns_waitcnt vmcnt(0)')
    a(f's_add_u32 s{sSPIN}, s{sSPIN}, 1\ns_cmp_lt_u32 s{sSPIN}, 0x400000\ns_cbranch_scc1 {name}\ns_branch L_end')
    a.label(name + '_ok')
    a(f's_and_b32 s{sLIM}, s{sT}, -8\ns_cmp_gt_u32 s{sLIM}, {need_s}\ns_cselect_b32 s{sLIM}, s{sLIM}, s{sT}')
    a(f's_cmp_lt_u32 {need_s}, 16\ns_cselect_b32 s{sSPIN}, 16, 64\ns_cmp_eq_u32 s{sT}, 64\ns_cselect_b32 s{sSPIN}, 64, s{sSPIN}\ns_min_u32 s{sLIM}, s{sLIM}, s{sSPIN}')
    a(f's_sub_u32 s{sLIM}, s{sLIM}, 1\ns_mov_b32 s{sSPIN}, 0')
VPK = [f'v_cvt_pk_bf16_f32 v{PUB+2}, v{AV}, v{AV+1}', f'v_cvt_pk_bf16_f32 v{VT}, v{AV+2}, v{AV+3}',
       f'v_cvt_pk_bf16_f32 v{VT+1}, v{AV+1}, v{AV}', f'v_cvt_pk_bf16_f32 v{PUB+3}, v{AV+3}, v{AV+2}',
       f'v_permlane32_swap_b32 v{PUB+2}, v{VT}', f'v_permlane32_swap_b32 v{VT+1}, v{PUB+3}']
RARE_AT = 34

def role_chain(a, cfg):
    a.comment('---- chain head')
    stamp(a, cfg, 0)
    assert not cfg.x4
    vS1, vS2, vTR, vTQ = 96, 97, 98, 100
    T = 110
    a(f'v_lshlrev_b32 v{vL16}, 4, v0\nv_and_b32 v{vTM}, 1, v0\nv_xor_b32 v{vTM}, 1, v{vTM}')
    a(f's_lshl_b32 s{sT}, s{sW}, 11\nv_add_u32 v{vMem}, s{sT}, v{vL16}')
    a(f'v_add_u32 v{vMH1}, 0x10000, v{vMem}\nv_add_u32 v{vMH2}, 0x20000, v{vMem}')
    a(f'v_and_b32 v{T}, 7, v0\nv_lshlrev_b32 v{T}, 4, v{T}')
    a(f'v_bfe_u32 v{T+1}, v0, 5, 1\nv_bfe_u32 v{T+2}, v0, 4, 1\nv_bfe_u32 v{T+3}, v0, 2, 1\nv_bfe_u32 v{T+4}, v0, 3, 1')
    a(f'v_lshl_add_u32 v{vS1}, v{T+1}, 15, v{T}\nv_lshl_add_u32 v{vS1}, v{T+4}, 13, v{vS1}\nv_lshl_add_u32 v{vS1}, v{T+2}, 16, v{vS1}')
    a(f'v_lshl_add_u32 v{vS2}, v{T+2}, 14, v{T}\nv_lshl_add_u32 v{vS2}, v{T+1}, 12, v{vS2}\nv_lshl_add_u32 v{vS2}, v{T+4}, 10, v{vS2}')
    a(f'v_and_b32 v{T+5}, 3, v0\nv_lshlrev_b32 v{T+5}, 3, v{T+5}\nv_lshrrev_b32 v{T+6}, 4, v0')
    a(f's_mul_i32 s{sG}, s{sW}, 20480')
    a(f'v_lshl_add_u32 v{vTR}, v{T+6}, 8, v{T+5}\nv_lshl_add_u32 v{vTR}, v{T+3}, 7, v{vTR}\nv_lshl_add_u32 v{vTR}, v{T+4}, 6, v{vTR}\nv_add_u32 v{vTR}, s{sG}, v{vTR}')
    a(f'v_lshrrev_b32 v{T+6}, 2, v0\nv_lshl_add_u32 v{T+5}, v{T+6}, 7, v{T+5}\nv_lshl_add_u32 v{T+5}, v{T+4}, 5, v{T+5}')
    a(f's_and_b32 s{sT}, s{sW}, 1\ns_lshl_b32 s{sT}, s{sT}, 6\nv_add_u32 v{T+5}, s{sT}, v{T+5}\nv_xor_b32 v{T+6}, 256, v{T+5}')
    a(f's_xor_b32 s{sT}, s{sW}, 1\ns_mul_i32 s{sT}, s{sT}, 20480')
    a(f'v_add_u32 v{vTQ}, s{sG}, v{T+5}\nv_add_u32 v{vTQ+1}, s{sG}, v{T+6}\nv_add_u32 v{vTQ+2}, s{sT}, v{T+5}\nv_add_u32 v{vTQ+3}, s{sT}, v{T+6}')
    sQ, sK, sV, sO = 68, 72, 76, sR1
    srd(a, sQ, P(5), 512*8192); srd(a, sK, P(6), 512*8192); srd(a, sV, P(7), 512*8192); srd(a, sO, P(8), 4096*1024)
    chunks = [(m, (sg, ch)) for m in 'qkv' for sg in (0, 1, 4, 5) for ch in range(2)] + [('o', (sg, z)) for sg in range(4) for z in range(2)]
    ops = []
    def waitfor(tag):
        last = max(i for i, t in enumerate(ops) if t == tag)
        a(f's_waitcnt vmcnt({len(ops) - 1 - last})')
    sB1, sB2, s2W = 96, 97, 98
    a(f's_lshl_b32 s{sB1}, s{sIDX}, 8\ns_lshr_b32 s{sT}, s{sW}, 1\ns_lshl_b32 s{sT}, s{sT}, 7\ns_add_u32 s{sB1}, s{sB1}, s{sT}')
    a(f's_lshl_b32 s{sB2}, s{sIDX}, 17\ns_lshl_b32 s{sT}, s{sW}, 8\ns_add_u32 s{sB2}, s{sB2}, s{sT}')
    a(f's_lshl_b32 s{s2W}, s{sW}, 1')
    def issue(ci):
        m, x = chunks[ci]
        a(f's_add_u32 m0, s{sG}, {(ci % 5) * 4096}')
        if m != 'o':
            a(f's_xor_b32 s{sT}, s{s2W}, {x[0]}\ns_lshl_b32 s{sT}, s{sT}, 19\ns_add_u32 s{sT}, s{sT}, s{sB1}')
            if x[1]: a(f's_add_u32 s{sT}, s{sT}, {32*8192}')
            rows = [2*(c>>1) + 16*(c&1) for c in range(4)]; rs = 8192; vs = vS1; sr = {'q': sQ, 'k': sK, 'v': sV}[m]
        else:
            sg, z = x
            a(f's_xor_b32 s{sT}, s{sW}, {sg}\ns_lshl_b32 s{sT}, s{sT}, 15\ns_add_u32 s{sT}, s{sT}, s{sB2}')
            if z: a(f's_add_u32 s{sT}, s{sT}, 128')
            rows = [8*(c>>1) + 2*(c&1) for c in range(4)]; rs = 1024; vs = vS2; sr = sO
        for c in range(4):
            if c: a(f's_add_u32 s{sT}, s{sT}, {((rows[c]-rows[c-1])*rs) & 0xffffffff:#x}\ns_add_u32 m0, m0, 1024')
            a(f'buffer_load_dwordx4 v{vs}, {S(sr)}, s{sT} offen lds'); ops.append(ci)
    for ci in range(cfg.depth): issue(ci)
    a(f'v_and_b32 v{T}, 15, v0\nv_lshrrev_b32 v{T+1}, 4, v0')
    a(f's_lshl_b32 s{sT}, s{sW}, 10')
    a(f'v_bfe_u32 v{T+3}, v0, 4, 1\nv_bfe_u32 v{T+4}, v0, 5, 1')
    a(f'v_bfe_u32 v{T+2}, v0, 2, 1\nv_xor_b32 v{T+2}, v{T+2}, v{T+3}\nv_lshlrev_b32 v{T+2}, 4, v{T+2}')
    a(f'v_lshl_add_u32 v{vKw}, v{T}, 5, v{T+2}\nv_lshl_add_u32 v{vKw}, v{T+4}, 9, v{vKw}\nv_add_u32 v{vKw}, s{sT}, v{vKw}')
    a(f'v_and_b32 v{T+2}, 1, v0\nv_xor_b32 v{T+2}, v{T+2}, v{T+3}\nv_lshlrev_b32 v{T+2}, 4, v{T+2}\nv_bfe_u32 v{T+5}, v0, 1, 1\nv_lshl_add_u32 v{T+2}, v{T+5}, 3, v{T+2}')
    a(f'v_lshrrev_b32 v{T+5}, 2, v0\nv_lshl_add_u32 v{vTX}, v{T+5}, 5, v{T+2}')
    a(f'v_and_b32 v{T+5}, 7, v0\nv_bfe_u32 v{T+6}, v0, 3, 1\nv_lshlrev_b32 v{vOw}, 7, v{T+1}\nv_lshl_add_u32 v{vOw}, v{T+5}, 4, v{vOw}\nv_lshl_add_u32 v{vOw}, v{T+6}, 3, v{vOw}')
    a(f's_lshl_b32 s{sT}, s{sW}, 9\nv_add_u32 v{vOw}, s{sT}, v{vOw}')
    if cfg.x4: a(f'v_and_b32 v{T+5}, 3, v0\nv_lshlrev_b32 v{T+5}, 1, v{T+5}\nv_bfe_u32 v{T+6}, v0, 2, 2')
    a(f'v_lshlrev_b32 v{vPst}, 3, v{T+5}\nv_lshl_add_u32 v{vPst}, v{T+3}, 11, v{vPst}\nv_lshl_add_u32 v{vPst}, v{T+6}, 12, v{vPst}\nv_lshl_add_u32 v{vPst}, v{T+4}, 14, v{vPst}')
    a(f's_lshl_b32 s{sT}, s{sW}, 16\ns_lshl_b32 s{sT2}, s{sIDX}, 6\ns_add_u32 s{sT}, s{sT}, s{sT2}\nv_add_u32 v{vPst}, s{sT}, v{vPst}')
    a(f'v_and_b32 v{T+6}, 3, v0\nv_lshlrev_b32 v{vMst}, 2, v{T+6}\nv_lshl_add_u32 v{vMst}, v{T+1}, 4, v{vMst}')
    a(f'v_mov_b32 v{vIdx}, 0x4444\nv_mov_b32 v{T+7}, 0xeeee\nv_cmp_lt_u32 vcc, 7, v{T}\nv_cndmask_b32 v{vIdx}, v{vIdx}, v{T+7}, vcc')
    a(f'v_bfe_u32 v{T+7}, v0, 2, 1\nv_lshlrev_b32 v{T+7}, 4, v{T+7}\nv_mov_b32 v{T+8}, 0x3f80\nv_lshlrev_b32 v{T+7}, v{T+7}, v{T+8}')
    a(f'v_cmp_eq_u32 vcc, 0, v{T+6}\nv_cndmask_b32 v{SEL}, 0, v{T+7}, vcc\nv_cndmask_b32 v{SEL+2}, 0, v{T+7}, vcc')
    a(f'v_cmp_eq_u32 vcc, 1, v{T+6}\nv_cndmask_b32 v{SEL+1}, 0, v{T+7}, vcc\nv_cndmask_b32 v{SEL+3}, 0, v{T+7}, vcc')
    a(f's_lshr_b32 s{sT}, s{sIDX}, 3\ns_lshl_b32 s{sT}, s{sT}, 5\ns_and_b32 s{sT2}, s{sIDX}, 4\ns_lshl_b32 s{sT2}, s{sT2}, 1\ns_add_u32 s{sT}, s{sT}, s{sT2}')
    a(f's_and_b32 s{sT2}, s{sIDX}, 3\ns_add_u32 s{sT}, s{sT}, s{sT2}\ns_and_b32 s{sT2}, s{sW}, 2\ns_lshl_b32 s{sT2}, s{sT2}, 3\ns_add_u32 s{sT}, s{sT}, s{sT2}')
    a(f's_and_b32 s{sT2}, s{sW}, 1\ns_lshl_b32 s{sT2}, s{sT2}, 2\ns_add_u32 s{sT}, s{sT}, s{sT2}')
    a(f's_lshl_b32 s{sRED}, s{sT}, 11\ns_add_u32 s{sRED}, s{sRED}, {PART:#x}\ns_lshl_b32 s{sMST}, s{sT}, 6\ns_add_u32 s{sMST}, s{sMST}, {MEMS:#x}')
    a(f's_mov_b32 s{sMEM}, {MEMS:#x}\ns_mov_b32 s{sPART}, {PART:#x}\ns_mov_b32 s{sPART2}, {PART+0x8000:#x}\ns_mov_b32 s{sP1}, {PART+0x2000:#x}\ns_mov_b32 s{sP3}, {PART+0xa000:#x}')
    srd(a, sR2, P(4), 8192)
    U = 80
    for i in range(4): a(f'v_mov_b32 v{U+4+i}, -1')
    if cfg.x4:
        a(f's_lshr_b32 s{sT2}, s{sT}, 3\ns_lshl_b32 s{sT2}, s{sT2}, 6\ns_bfe_u32 s{sS}, s{sT}, 0x20001\ns_lshl_b32 s{sS}, s{sS}, 3\ns_add_u32 s{sT2}, s{sT2}, s{sS}')
        a(f's_and_b32 s{sS}, s{sT}, 1\ns_lshl_b32 s{sS}, s{sS}, 12\ns_add_u32 s{sT2}, s{sT2}, s{sS}')
        a(f'v_lshlrev_b32 v{T+7}, 1, v{T+6}\nv_lshl_add_u32 v{T+7}, v{T+1}, 10, v{T+7}')
        a(f'buffer_load_ushort v{U}, v{T+7}, {S(sR2)}, s{sT2} offen\nbuffer_load_ushort v{U+1}, v{T+7}, {S(sR2)}, s{sT2} offen offset:32'); ops.extend(['m0', 'm0'])
        for so in (sPART, sPART2):
            a(f'buffer_store_dwordx4 v[{U+4}:{U+7}], v{vPst}, {S(sWS)}, s{so} offen sc1'); ops.append('i')
    else:
        a(f's_lshr_b32 s{sT2}, s{sT}, 1\ns_lshl_b32 s{sT2}, s{sT2}, 4\ns_and_b32 s{sS}, s{sT}, 1\ns_lshl_b32 s{sS}, s{sS}, 12\ns_add_u32 s{sT2}, s{sT2}, s{sS}')
        a(f'v_lshlrev_b32 v{T+7}, 2, v{T+6}\nv_lshl_add_u32 v{T+7}, v{T+1}, 10, v{T+7}')
        a(f'buffer_load_dword v{U}, v{T+7}, {S(sR2)}, s{sT2} offen'); ops.append('m0')
        for so in (sPART, sP1, sPART2, sP3):
            a(f'buffer_store_dwordx2 v[{U+4}:{U+5}], v{vPst}, {S(sWS)}, s{so} offen sc1'); ops.append('i')
    c = (128 ** -0.5) * math.log2(math.e)
    a(f's_mov_b32 s{sC}, {f2u(c):#x}\ns_mov_b32 s{sNC}, {f2u(-c):#x}')
    a(f's_lshl_b32 s{sT}, s{sIDX}, 21\ns_add_u32 s{sFL}, s{sT}, {FPR:#x}')
    a(f's_add_u32 s{sKX}, s{sT}, {KX:#x}\ns_add_u32 s{sVX}, s{sT}, {VX:#x}\ns_add_u32 s{sPUB}, s{sT}, {KVM+0x1000:#x}')
    a(f's_lshl_b32 s{sT}, s{sW}, 10\ns_add_u32 s{sPUB}, s{sPUB}, s{sT}')
    a(f's_mov_b32 s{sTAG}, 0')
    kxdma = [f's_mov_b32 m0, s{sM0K}',
             f'buffer_load_dwordx4 v{vMem}, {S(sWS)}, s{sKX} offen sc1 lds',
             f'buffer_load_dwordx4 v{vMem}, {S(sWS)}, s{sKX} offen offset:1024 sc1 lds',
             f's_add_u32 s{sKX}, s{sKX}, 0x8000']
    vxld = [f'buffer_load_dwordx4 v[{VXF}:{VXF+3}], v{vMem}, {S(sWS)}, s{sVX} offen sc1',
            f'buffer_load_dwordx4 v[{VXF+4}:{VXF+7}], v{vMem}, {S(sWS)}, s{sVX} offen offset:1024 sc1',
            f's_add_u32 s{sVX}, s{sVX}, 0x8000']
    def init_mem():
        waitfor('m0')
        if cfg.x4: a(f'v_lshl_or_b32 v{U}, v{U+1}, 16, v{U}')
        a(f'v_min_u32 v{U}, -2, v{U}')
        a(f's_mov_b32 exec_lo, 0x000f000f\ns_mov_b32 exec_hi, 0x000f000f')
        a(f'buffer_store_dword v{U}, v{vMst}, {S(sWS)}, s{sMST} offen sc1')
        a(f's_add_u32 s{sS}, s{sMST}, 0x2000\nbuffer_store_dword v{U+4}, v{vMst}, {S(sWS)}, s{sS} offen sc1')
        a('s_mov_b64 exec, -1'); ops.extend(['i', 'i'])
    def publish_id():
        waitfor('i'); a('s_barrier')
        a(f's_getreg_b32 s{sT}, hwreg(HW_REG_XCC_ID)\ns_and_b32 s{sT}, s{sT}, 0xf\ns_add_u32 s{sT}, s{sT}, 1')
        a(f's_lshl_b32 s{sT2}, s{sIDX}, 2\nv_mov_b32 v{U}, s{sT}\nv_mov_b32 v{U+1}, 0')
        a(f's_cmp_lg_u32 s{sW}, 0\ns_cbranch_scc1 L_c_noid')
        a(f's_mov_b64 exec, 1\nbuffer_store_dword v{U}, v{U+1}, {S(sDBG)}, s{sT2} offen offset:128 sc1\ns_mov_b64 exec, -1')
        a('L_c_noid:')
    idld = f'buffer_load_dword v{U+2}, v{U+3}, {S(sDBG)}, 0 offen sc1'
    def ask():
        a(f'v_lshrrev_b32 v{U+3}, 2, v{vL16}\nv_add_u32 v{U+3}, 128, v{U+3}\nv_mov_b32 v{U+10}, 1\ns_mov_b32 exec_lo, 0\nv_mov_b32 v{U+3}, 0\nv_mov_b32 v{U+10}, 192\ns_mov_b32 exec_lo, -1')
        a(idld); ops.append('q')
    def answer():
        waitfor('q')
        a(f's_mov_b32 s{sSPIN}, 0')
        a('L_c_ids:')
        a(f'v_cmp_gt_u32 vcc, v{U+10}, v{U+2}\ns_cbranch_vccz L_c_ids_ok')
        a(f's_sleep 2\n{idld}\ns_waitcnt vmcnt(0)')
        a(f's_add_u32 s{sSPIN}, s{sSPIN}, 1\ns_cmp_lt_u32 s{sSPIN}, 0x400000\ns_cbranch_scc1 L_c_ids\ns_branch L_end')
        a('L_c_ids_ok:')
        a(f'v_readfirstlane_b32 s{sT}, v{U+2}')
        a(f'v_cmp_ne_u32 s[80:81], s{sT}, v{U+2}')
        a(f'v_bfe_u32 v{U+9}, v{vL16}, 4, 2\nv_lshlrev_b32 v{U+9}, 7, v{U+9}\nbuffer_load_dword v{U+8}, v{U+9}, {S(sWS)}, s{sFL} offen sc1'); ops.append('p')
        if cfg.touch:
            a(f's_xor_b32 s{sT}, s{sMEM}, 0x2000')
            for va, so in ((vL16, sRED), (vMem, sMEM), (vMem, sT)):
                for z in range(2):
                    a(f'buffer_load_dwordx4 v[92:95], v{va}, {S(sWS)}, s{so} offen offset:{1024*z} sc1'); ops.append('t')
    def answer2():
        waitfor('p')
        progress(a, 'L_c_g0', U+8, 0)
        a(f'v_lshlrev_b32 v{U+3}, 2, v{vL16}\nbuffer_load_dword v{U+8}, v{U+3}, {S(sWS)}, s{sKX} offen sc1\nbuffer_load_dword v{U+8}, v{U+3}, {S(sWS)}, s{sKX} offen offset:4032 sc1')
        a(f'buffer_load_dword v{U+8}, v{U+3}, {S(sWS)}, s{sVX} offen sc1\nbuffer_load_dword v{U+8}, v{U+3}, {S(sWS)}, s{sVX} offen offset:4032 sc1')
        a(f'v_mov_b32 v105, v{U+9}\nbuffer_load_dword v104, v105, {S(sWS)}, s{sFL} offen sc1')
        ops.extend(['x'] * 5)
    TMP = 112
    n = len(chunks)
    for ci in range(n):
        m, x = chunks[ci]
        waitfor(ci)
        if ci <= 24: a('s_barrier')
        if ci + cfg.depth < n: issue(ci + cfg.depth)
        if ci == 2: init_mem()
        if ci == 8: publish_id()
        if ci == n - 12: ask()
        if ci == n - 7: answer()
        if ci == n - 2: answer2()
        post = []
        if m != 'o':
            sg, ch = x
            parts = [((m, rho, sg ^ (2*pt)), vTQ + 2*pt + rho, [(2*ch + c1, c1*2048) for c1 in range(2)]) for pt in range(2) for rho in range(2)]
        else:
            parts = [(('o', 2*x[1]+t, x[0]), vTR, [(c, c*1024 + t*32) for c in range(4)]) for t in range(2)]
        for t, (b, va, cl) in enumerate(parts):
            k, i = LOC[b]
            if k == 'es': k, r0 = 'v', TMP + 4*t - 4*x[1]; post.append((i, TMP + 4*t))
            elif k == 'ls': k, r0 = 'v', 24 + 8*i
            else: r0 = i
            for c, off in cl:
                a(f'ds_read_b64_tr_b16 {k}[{r0+2*c}:{r0+2*c+1}], v{va} offset:{(ci%5)*4096 + off}')
        a('s_waitcnt lgkmcnt(0)')
        for i, r0 in post:
            va, off = ldsaddr(L_ES + i*8192 + x[1]*1024)
            a(f'ds_write_b128 v{va}, v[{r0}:{r0+3}] offset:{off}')
        if post: a('s_waitcnt lgkmcnt(0)')
    a('s_barrier')
    stamp(a, cfg, 1)
    if cfg.x_stop:
        stamp(a, cfg, 2); stamp(a, cfg, 3); return
    a(f's_lshl_b32 s{sT}, s{sW}, 11\ns_add_u32 s{sM0K}, s{sT}, {L_KX}')
    for l in kxdma: a(l)
    a('s_mov_b32 s46, 0x000f000f\ns_mov_b32 s47, 0x000f000f')
    a(f's_mov_b32 s{sS}, 0\ns_mov_b32 s{sKXB}, {L_KX}\ns_xor_b32 m0, m0, {L_KX ^ (2*L_KX)}\ns_mov_b32 s15, -0x1000')
    for i in range(7):
        for h in range(2):
            va, off = ldsaddr(L_LS + i*8192 + h*1024)
            a(f'ds_write_b128 v{va}, v[{24+8*i+4*h}:{24+8*i+4*h+3}] offset:{off}')
    a('s_waitcnt vmcnt(2) lgkmcnt(0)')
    progress(a, 'L_c_g1', 104, cfg.need1)
    for l in stage_reads('es', range(10)): a(l)
    for i in range(16): a(f'v_mov_b32 v{AV+i}, 0')
    stamp(a, cfg, 2)
    if cfg.stamps: a('s_memtime s[92:93]')
    if cfg.prof:
        for i in range(12): a(f's_mov_b32 s{68+i}, 0')
    a('s_waitcnt lgkmcnt(0)')
    a('s_cmp_lg_u32 s80, 0\ns_cbranch_scc1 L_cs_step')
    a('s_branch L_cs_step' if cfg.force_slow else 's_branch L_cf_step')
    for pre, sc in (('L_cf', ''), ('L_cs', ' sc1')):
        step_loop(a, cfg, pre, sc, kxdma, vxld)
    a('L_c_last:')
    for l in stage_reads('es', range(10))[cfg.es3:]: a(l)
    for i in range(0, 12, 2): a(f'v_mov_b64 v[{AV+i}:{AV+i+1}], 0')
    a('L_c_lp:')
    for z in range(2): a(f'buffer_load_dwordx4 v[{F0+4*z}:{F0+4*z+3}], v{vMem}, {S(sWS)}, s{sMEM} offen offset:{1024*z} sc1')
    a(f's_waitcnt vmcnt(0)\nv_max_u32 v0, v{F0}, v{F0+4}\nv_cmp_eq_u32 vcc, -1, v0\ns_cbranch_vccz L_c_lok')
    a(f's_add_u32 s{sSPIN}, s{sSPIN}, 1\ns_cmp_lt_u32 s{sSPIN}, 0x400000\ns_cbranch_scc1 L_c_lp\ns_branch L_end')
    a('L_c_lok:')
    a(f'buffer_store_dwordx4 v[{PUB}:{PUB+3}], v{vL16}, {S(sWS)}, s{sPUB} offen sc1\ns_add_u32 s{sPUB}, s{sPUB}, 0x8000')
    for z in range(2): a(f'ds_write_b128 v{vMem}, v[{F0+4*z}:{F0+4*z+3}] offset:{L_MEM+1024*z}')
    for i in range(8): a(f'v_mov_b32_dpp v{F0R+i}, v{F0+i} row_ror:8 row_mask:0xf bank_mask:0xf')
    a('s_waitcnt lgkmcnt(2)')
    for b in PORD[:6]:
        if b[0] != 'q': a(smf(b))
    a('s_waitcnt lgkmcnt(0)\ns_barrier')
    for f, (sl, rho) in enumerate(OTH):
        if f % 2 == 0: a(f'v_xor_b32 v0, {(sl//2)*2048 + rho*128}, v{vMem}')
        a(f'ds_read_b128 v[{FO+4*f}:{FO+4*f+3}], v0 offset:{L_MEM + (sl%2)*1024}')
    for b in PORD[6:12]:
        if b[0] != 'q': a(smf(b))
    for f, (sl, rho) in enumerate(OTH):
        a(f's_waitcnt lgkmcnt({11-f})'); a(smf(('k', rho, sl))); a(smf(('v', rho, sl)))
    for l in KPK + [CANON] + VPK: a(l)
    a(f'buffer_store_dwordx4 v[{PUB}:{PUB+3}], v{vL16}, {S(sWS)}, s{sPUB} offen sc1')
    a('L_c_done:')
    if cfg.steplog >= 0:
        a(f's_lshl_b32 s{sT}, s{sIDX}, 2\ns_add_u32 s{sT}, s{sT}, s{sW}\ns_lshl_b32 s{sT}, s{sT}, 7\ns_add_u32 s{sT}, s{sT}, {TS+0x8000:#x}\nv_mov_b32 v25, 0')
        for i in range(26):
            a(f'v_mov_b32 v24, s{16+i}\nbuffer_store_dword v24, v25, {S(sWS)}, s{sT} offen offset:{4*i}')
    stamp(a, cfg, 3)
    if cfg.stamps: a('s_memtime s[94:95]')
    if cfg.prof:
        a(f's_lshl_b32 s{sT}, s{sIDX}, 2\ns_add_u32 s{sT}, s{sT}, s{sW}\ns_lshl_b32 s{sT}, s{sT}, 6\ns_add_u32 s{sT}, s{sT}, {TS+0x8000:#x}\nv_mov_b32 v25, 0')
        for i in range(12):
            a(f'v_mov_b32 v24, s{68+i}\nbuffer_store_dword v24, v25, {S(sWS)}, s{sT} offen offset:{4*i}')

def step_loop(a, cfg, pre, sc, kxdma, vxld):
    cnt = [0]
    PAIRS = list(range(16, 42, 2)) + list(range(68, 80, 2))
    def ts(trace_only=False):
        if (cfg.prof and not trace_only) or cfg.trace:
            p = PAIRS[cnt[0]]
            a(f's_memtime s[{p}:{p+1}]'); cnt[0] += 1
    DPP = 'row_mask:0xf bank_mask:0xf'
    LO, HI = 'row_mask:0xf bank_mask:0x3', 'row_mask:0xf bank_mask:0xc'
    idn = 'quad_perm:[0,1,2,3]'
    ESR = stage_reads('es', range(10))
    def warm(n):
        for i in range(n): a(f'v_mov_b32 v{vIdx}, v{vIdx}\ns_nop 1')
    def count(i):
        if cfg.prof: a(f's_add_u32 s{78+i}, s{78+i}, 63')
    def bound(back):
        a(f's_add_u32 s{sSPIN}, s{sSPIN}, 1\ns_cmp_lt_u32 s{sSPIN}, 0x400000\ns_cbranch_scc1 {back}\ns_branch L_end')
    def ld2(r, va, so): return f'buffer_load_dwordx4 v[{r}:{r+3}], v{va}, {S(sWS)}, s{so} offen sc1\nbuffer_load_dwordx4 v[{r+4}:{r+7}], v{va}, {S(sWS)}, s{so} offen offset:1024 sc1'
    pmA, pmB = ld2(F0, vMem, sMEM), ld2(F0R, 0, sMEM)
    RLB = 96
    assert cfg.es5 <= 18
    ppA, ppB = ld2(RL, vL16, sRED), ld2(RLB, vL16, sRED)
    def chk_mem(r): return f'v_cmp_eq_u32 vcc, -1, v{r}\nv_cmp_eq_u32 s[50:51], -1, v{r+4}\ns_or_b64 vcc, vcc, s[50:51]'
    def red(r): return f'v_smfmac_f32_16x16x64_bf16 v[{RDA}:{RDA+3}], v[{SEL}:{SEL+3}], v[{r}:{r+7}], v{vIdx}'
    def chk_part(r): return f'{red(r)}\nv_bitop3_b32 v0, v{r}, v{r+4}, s{sTAG} bitop3:0x7e\nv_and_b32 v0, 1, v0\nv_cmp_ne_u32 vcc, 0, v0'
    zr = f's_nop 3\nv_mov_b64 v[{RDA}:{RDA+1}], 0\nv_mov_b64 v[{RDA+2}:{RDA+3}], 0'
    def mld(z, rho): return f'buffer_load_dwordx4 v[{(F0R if rho else F0)+4*z}:{(F0R if rho else F0)+4*z+3}], v{0 if rho else vMem}, {S(sWS)}, s{sMEM} offen offset:{1024*z} sc1'
    PM_ = [smf(b) for b in PORD]
    NS = cfg.spos
    def masked(l):
        if cfg.mask: a('s_mov_b64 exec, vcc')
        a(l)
        if cfg.mask: a('s_mov_b64 exec, -1')
    def twin(z, src, dst):
        for i in range(4): a(f'v_mov_b32_dpp v{dst+4*z+i}, v{src+4*z+i} row_ror:8 {DPP}')
    def wr(z, rho): a(f'ds_write_b128 v{0 if rho else vMem}, v[{(F0R if rho else F0)+4*z}:{(F0R if rho else F0)+4*z+3}] offset:{L_MEM+1024*z}')
    a.label(f'{pre}_pm0_loop')
    masked(pmB); count(0)
    a('s_waitcnt vmcnt(2)'); a(chk_mem(F0)); a(f's_cbranch_scc1 {pre}_pm0_b')
    wr(0, 0); wr(1, 0)
    if NS: a('s_waitcnt vmcnt(0)')
    a(f's_branch {pre}_pm0_go')
    a.label(f'{pre}_pm0_retry')
    if NS:
        a(f's_waitcnt vmcnt({NS})'); a(chk_mem(F0R)); a(f's_cbranch_scc0 {pre}_pm0_bok2')
    a('s_mov_b64 vcc, -1')
    a.label(f'{pre}_pm0_b')
    masked(pmA); count(0)
    a('s_waitcnt vmcnt(2)'); a(chk_mem(F0R)); a(f's_cbranch_scc0 {pre}_pm0_bok')
    bound(f'{pre}_pm0_loop')
    a.label(f'{pre}_pm0_bok')
    if NS: a('s_waitcnt vmcnt(0)')
    a.label(f'{pre}_pm0_bok2')
    wr(0, 1); wr(1, 1); twin(0, F0R, F0); twin(1, F0R, F0)
    a.label(f'{pre}_pm0_go')
    for m in PM_[:3]: a(m)
    a(f's_branch {pre}_pm1_join')
    a.label(f'{pre}_pm1_first')
    if NS:
        a(f's_waitcnt vmcnt({NS})\nv_cmp_eq_u32 s[50:51], -1, v{F0R+4}\ns_cmp_eq_u64 s[50:51], 0\ns_cbranch_scc1 {pre}_pm1_tw')
    a.label(f'{pre}_pm1_retry')
    masked(mld(1, 0)); count(0)
    a(f's_waitcnt vmcnt(1)\nv_cmp_eq_u32 vcc, -1, v{F0R+4}\ns_cbranch_vccnz {pre}_pm1_again')
    if NS: a('s_waitcnt vmcnt(0)')
    a.label(f'{pre}_pm1_tw')
    wr(1, 1); twin(1, F0R, F0)
    a(f's_nop 0\ns_branch {pre}_pm1_join')
    a.label(f'{pre}_pm1_again')
    masked(mld(1, 1)); count(0); a(f's_waitcnt vmcnt(1)\nv_cmp_eq_u32 vcc, -1, v{F0+4}\ns_cbranch_vccnz {pre}_pm1_more')
    wr(1, 0)
    if NS: a('s_waitcnt vmcnt(0)')
    a(f's_branch {pre}_pm1_join')
    a.label(f'{pre}_pm1_more')
    bound(f'{pre}_pm1_retry')
    a.label(pre + '_pp_retry')
    masked(ppA); count(1); a(zr)
    if cfg.dual1:
        a('s_waitcnt vmcnt(2)'); a(chk_part(RLB))
        a(f's_cbranch_vccz {pre}_pp_join')
        masked(ppB); count(1); a(zr)
    bound(pre + '_pp')
    a.label(pre + '_special')
    a(f's_waitcnt vmcnt(0)\ns_cmp_eq_u32 s{sS}, 63\ns_cbranch_scc1 L_c_last')
    a(f'v_bfe_u32 v{F0+1}, v{vL16}, 4, 2\nv_lshlrev_b32 v{F0+1}, 7, v{F0+1}\nbuffer_load_dword v{F0}, v{F0+1}, {S(sWS)}, s{sFL} offen sc1\ns_add_u32 s{sT2}, s{sS}, 1\ns_waitcnt vmcnt(0)')
    progress(a, pre + '_gw', F0, f's{sT2}')

    a.label(pre + '_step')
    ts()
    a(f'v_xor_b32 v0, 128, v{vMem}')
    ZA = [f'v_mov_b64 v[{AV+i}:{AV+i+1}], 0' for i in range(0, 12, 2)]
    for l in ESR[cfg.es3:cfg.es4]: a(l)
    if cfg.lw & 1: a('s_waitcnt lgkmcnt(0)')
    a(mld(0, 0))
    for l in ESR[cfg.es4:cfg.es5]: a(l)
    if cfg.lw & 2: a('s_waitcnt lgkmcnt(0)')
    if cfg.zpos == 1:
        for l in ZA: a(l)
    for _ in range(cfg.sp2): a('s_nop 3')
    a(mld(1, 0))
    a('s_waitcnt vmcnt(4)')
    for l in ESR[cfg.es5:]: a(l)
    if cfg.lw & 4: a('s_waitcnt lgkmcnt(0)')
    if cfg.zpos == 2:
        for l in ZA: a(l)
    for _ in range(cfg.sp3): a('s_nop 3')
    a(mld(0, 1)); a(mld(1, 1))
    for l in [vxld[0], vxld[1], kxdma[1], kxdma[2]][:NS]: a(l)
    warm(cfg.wm2)
    a(f's_waitcnt vmcnt({3+NS}) lgkmcnt({min(8, 20 - cfg.es3) if cfg.lazy else 0})\nds_write_b128 v{vMem}, v[{F0}:{F0+3}] offset:{L_MEM}')
    a(f'v_cmp_eq_u32 vcc, -1, v{F0}\ns_cbranch_vccnz {pre}_pm0_retry')
    for m in PM_[:3]: a(m)
    a(f's_waitcnt vmcnt({2+NS})\nds_write_b128 v{vMem}, v[{F0+4}:{F0+7}] offset:{L_MEM+1024}')
    a(f'v_cmp_eq_u32 vcc, -1, v{F0+4}\ns_cbranch_vccnz {pre}_pm1_first')
    a.label(pre + '_pm1_join')
    ts()
    a(PM_[3]); a(f'v_xor_b32 v0, 2048, v{vMem}'); a(PM_[4]); a(PM_[5])
    a('s_waitcnt lgkmcnt(0)\ns_barrier')
    ts()
    R = []
    for f, (sl, rho) in enumerate(OTH):
        if f and f % 2 == 0: R.append(f'v_xor_b32 v0, {(sl//2)*2048 + rho*128}, v{vMem}')
        R.append(f'ds_read_b128 v[{FO+4*f}:{FO+4*f+3}], v0 offset:{L_MEM + (sl%2)*1024}')
    kxr = [f'v_add_u32 v0, s{sKXB}, v{vL16}'] + [f'ds_read_b128 v[{KXF+4*(2*u+T)}:{KXF+4*(2*u+T)+3}], v0 offset:{(T*4+u)*1024}' for u in range(4) for T in range(2)]
    pub = f'buffer_store_dwordx4 v[{PUB}:{PUB+3}], v{vL16}, {S(sWS)}, s{sPUB} offen sc1'
    side = ([] if cfg.x_nokv else [vxld[0], vxld[1], kxdma[1], kxdma[2]][NS:]) + ([] if cfg.x_nopub else [pub])
    fill = R + kxr
    for j, l in enumerate(side): fill.insert(cfg.vpos + j*cfg.vgap, l)
    for _ in range(2): a(fill.pop(0))
    a(f's_waitcnt vmcnt({NS})')
    issued = 2
    for i in range(6, len(PORD)):
        m, rho, sl = PORD[i]
        waited = False
        if sl >= 2:
            f = OTH.index((sl, rho))
            if m == 'q' and f % 2 == 0:
                assert f + 1 < issued
                a(f's_waitcnt lgkmcnt({min(15, issued - f - 2)})')
        a(PM_[i])
        if i == 11 or i == 23: ts()
        if fill:
            l = fill.pop(0); a(l)
            if l.startswith('ds_read'): issued += 1
    ts()
    HM = [smf(b) for b in HELD]
    h1, h2 = cfg.h1, cfg.h2
    assert not fill
    a(HM[0]); a('s_barrier'); a(HM[1]); a('s_nop 0'); assert cfg.bar2
    for m in HM[2:h1]: a(m); a('s_nop 0')
    a(f'v_cvt_pk_bf16_f32 v{AQ+3}, v{AQ+2}, v{AQ+3}\nv_cvt_pk_bf16_f32 v{AQ+2}, v{AQ}, v{AQ+1}')
    a(KPK[0]); a(KPK[1])
    a(f'ds_write_b128 v{vKw}, v[{AQ+2}:{AQ+5}] offset:{L_Q}')
    for m in HM[h1:h2]: a(m)
    a('s_waitcnt lgkmcnt(0)\ns_barrier')
    ts()
    qr = [f'ds_read_b64_tr_b16 v[{QKF+4*u+2*t}:{QKF+4*u+2*t+1}], v{vTX} offset:{L_Q + u*1024 + t*512}' for u in range(4) for t in range(2)]
    weave(a, HM[h2:], qr, 2, lead=2)
    SXM = []
    for u in range(4):
        for T in range(2):
            d = SX1 if T else SX
            cc = '0' if u == 0 else f'v[{d}:{d+3}]'
            kb = KXF + 4*(2*u+T)
            SXM.append(f'v_mfma_f32_16x16x32_bf16 v[{d}:{d+3}], v[{kb}:{kb+3}], v[{QKF+4*u}:{QKF+4*u+3}], {cc}')
    SMM = []
    for u in range(4):
        cc = '0' if u == 0 else f'v[{SM}:{SM+3}]'
        SMM.append(f'v_mfma_f32_16x16x32_bf16 v[{SM}:{SM+3}], v[{QKF+4*u}:{QKF+4*u+3}], v[{QKF+4*u}:{QKF+4*u+3}], {cc}')
    LSR = stage_reads('ls', range(7))
    X = SX
    C = [f'v_mov_b32_dpp v{X+i}, v{SX1+i} row_ror:8 {HI}' for i in range(4)]
    a('s_waitcnt lgkmcnt(4)'); a(SXM[0]); a(f'v_mov_b32 v{PM+1}, 0'); a(f'v_mov_b32 v{PM+2}, 0'); a(SXM[1]); a(LSR[0]); a(CANON)
    a(SXM[2]); a(LSR[1]); a(SXM[3]); a(LSR[2]); a('s_waitcnt lgkmcnt(3)')
    a(SXM[4]); a(LSR[3]); a(VPK[0]); a(SXM[5]); a(LSR[4]); a(VPK[1]); a(SXM[6]); a(LSR[5]); a(VPK[2]); a(SXM[7]); a(LSR[6]); a(VPK[3])
    a(SMM[0]); a(VPK[4]); a(SMM[1]); a(VPK[5]); a(SMM[2]); a(LSR[7]); a(C[0]); a(SMM[3])
    ts()
    t0 = SX1
    MX, NM, LX, Y = 38, 39, 36, SM + 2
    ZO = [f'v_mov_b64 v[{OUT+i}:{OUT+i+1}], 0' for i in range(0, 16, 2)]
    a(C[1]); a(C[2]); a(C[3]); a(LSR[8])
    a(f'v_max3_f32 v{MX}, v{X}, v{X+1}, v{X+2}')
    a(ZO[0]); a(ZO[1]); a(LSR[9])
    a(f'v_mov_b32_dpp v{SM}, v{SM+1} row_ror:8 {HI}\nv_mov_b32_dpp v{SM+2}, v{SM+3} row_ror:8 {HI}')
    a(ZO[3]); a(ZO[4])
    a(f'v_permlane32_swap_b32 v{SM}, v{SM+2}')
    a(f'v_max3_f32 v{MX}, v{MX}, v{X+3}, v{Y}')
    a(ZO[5]); a(ZO[6])
    a(f'v_max_f32_dpp v{t0}, v{MX}, v{MX} row_ror:8 {DPP}\nv_max_f32_dpp v{t0+1}, v{MX}, v{MX} row_ror:8 {DPP}')
    a(ZO[7]); a(f'v_and_b32 v0, -9, v{vOw}')
    a(f'v_permlane32_swap_b32 v{t0}, v{t0+1}')
    a(f'v_max_f32 v{t0+2}, v{t0}, v{t0+1}\nv_max_f32 v{t0+3}, v{t0}, v{t0+1}')
    OA = 120
    a(f'v_xor_b32 v{OA+1}, 512, v0\nv_xor_b32 v{OA+2}, 1024, v0')
    a(f'v_permlane16_swap_b32 v{t0+2}, v{t0+3}')
    a(f'v_max_f32 v{t0}, v{t0+2}, v{t0+3}\nv_mul_f32 v{NM}, s{sNC}, v{t0}')
    E = (X, X+1, X+2, X+3, Y)
    for r in E: a(f'v_fma_f32 v{r}, v{r}, s{sC}, v{NM}')
    for r in E: a(f'v_exp_f32 v{r}, v{r}')
    a(f'v_cvt_pk_bf16_f32 v{PF}, v{X}, v{X+1}\nv_cvt_pk_bf16_f32 v{PF+1}, v{X+2}, v{X+3}')
    a(f'v_mov_b32_dpp v{t0}, v{Y} row_ror:8 {DPP}')
    a(f'v_mov_b32_dpp v{PF+2}, v{PF} row_ror:8 {DPP}\nv_mov_b32_dpp v{PF+3}, v{PF+1} row_ror:8 {DPP}')
    a(f'v_cvt_pk_bf16_f32 v{PM}, v{Y}, v{t0}\nv_cvt_pk_bf16_f32 v{PM+3}, v{Y}, v{t0}')
    a(f's_waitcnt vmcnt({(0 if cfg.x_nopub else 1) + 2})')
    a(f'v_mfma_f32_16x16x32_bf16 v[{ACC0}:{ACC0+3}], v[{VXF}:{VXF+3}], v[{PF}:{PF+3}], 0')
    a(f'v_add_f32 v{LX}, v{X}, v{X+1}\nv_add_f32 v{NM}, v{X+2}, v{X+3}')
    a(f'v_mfma_f32_16x16x32_bf16 v[{ACC1}:{ACC1+3}], v[{VXF+4}:{VXF+7}], v[{PF}:{PF+3}], 0')
    a(f'v_add_f32 v{LX}, v{LX}, v{Y}\nv_add_f32 v{LX}, v{LX}, v{NM}')
    a(f'v_mfma_f32_16x16x16_bf16 v[{ACC0}:{ACC0+3}], v[{PUB+2}:{PUB+3}], v[{PM}:{PM+1}], v[{ACC0}:{ACC0+3}]')
    a(LSR[10])
    a(f'v_add_f32_dpp v{t0}, v{LX}, v{LX} row_ror:8 {DPP}')
    a(f'v_add_f32_dpp v{t0+1}, v{LX}, v{LX} row_ror:8 {DPP}')
    a(f'v_mfma_f32_16x16x16_bf16 v[{ACC1}:{ACC1+3}], v[{PUB+2}:{PUB+3}], v[{PM+2}:{PM+3}], v[{ACC1}:{ACC1+3}]')
    a(LSR[11])
    a(f'v_permlane32_swap_b32 v{t0}, v{t0+1}')
    a(f'v_add_f32 v{t0+2}, v{t0}, v{t0+1}\nv_add_f32 v{t0+3}, v{t0}, v{t0+1}')
    a(LSR[12]); a(LSR[13])
    a(f'v_permlane16_swap_b32 v{t0+2}, v{t0+3}')
    a(f'v_add_f32 v{t0+3}, v{t0+2}, v{t0+3}\nv_rcp_f32 v{t0+3}, v{t0+3}')
    for i in range(4): a(f'v_mov_b32_dpp v{ACC0+i}, v{ACC1+i} {idn} {HI}')
    for i in range(4): a(f'v_mul_f32 v{ACC0+i}, v{ACC0+i}, v{t0+3}')
    OP = PF
    a(f'v_cvt_pk_bf16_f32 v{OP}, v{ACC0}, v{ACC0+1}\nv_cvt_pk_bf16_f32 v{OP+1}, v{ACC0+2}, v{ACC0+3}')
    ts()
    a(f'ds_write_b64 v{vOw}, v[{OP}:{OP+1}] offset:{L_O}')
    def om(b): return f'v_smfmac_f32_16x16x64_bf16 v[{OUT+4*b[1]}:{OUT+4*b[1]+3}], v[{OF+4*b[2]}:{OF+4*b[2]+3}], {B8(b)}, v{vIdx}'
    a(f'v_mov_b64 v[{OF}:{OF+1}], v[{OP}:{OP+1}]\nv_mov_b64 v[{OF+2}:{OF+3}], v[{OP}:{OP+1}]')
    a(f'v_xor_b32 v{OA+3}, 1536, v0')
    for i in range(2):
        a(f'v_mov_b32_dpp v{OF+i}, v{OP+i} row_ror:8 {HI}\nv_mov_b32_dpp v{OF+2+i}, v{OP+i} row_ror:8 {LO}')
    O = [om(b) for b in OORD]
    a(ZO[2]); a('s_nop 0')
    for i in range(cfg.own): a(O[i])
    a('s_waitcnt lgkmcnt(0)\ns_barrier')
    for sg in range(1, 4): a(f'ds_read_b128 v[{OF+4*sg}:{OF+4*sg+3}], v{OA+sg} offset:{L_O}')
    ts()
    def fin(x):
        A0 = OUT + 4*x
        return [f'v_cvt_pk_bf16_f32 v{A0}, v{A0}, v{A0+1}', f'v_cvt_pk_bf16_f32 v{A0+1}, v{A0+2}, v{A0+3}', f'v_bfi_b32 v{A0}, v{vTM}, s{sTAG}, v{A0}',
                f'buffer_store_dwordx2 v[{A0}:{A0+1}], v{vPst}, {S(sWS)}, s{(sPART, sP1, sPART2, sP3)[x]} offen{sc}']
    f = [fin(x) for x in range(4)]
    seq = []
    seq += O[cfg.own:4]
    seq += ['s_waitcnt lgkmcnt(2)', O[4], 's_waitcnt lgkmcnt(1)', O[5], 's_waitcnt lgkmcnt(0)', O[6]]
    if cfg.x4:
        def g(z):
            A0 = OUT + 8*z
            return [f'v_cvt_pk_bf16_f32 v{A0}, v{A0}, v{A0+1}', f'v_cvt_pk_bf16_f32 v{A0+1}, v{A0+2}, v{A0+3}', f'v_and_or_b32 v{A0}, v{A0}, -2, s{sTAG}',
                    f'v_cvt_pk_bf16_f32 v{A0+2}, v{A0+4}, v{A0+5}', f'v_cvt_pk_bf16_f32 v{A0+3}, v{A0+6}, v{A0+7}',
                    f'buffer_store_dwordx4 v[{A0}:{A0+3}], v{vPst}, {S(sWS)}, s{sPART2 if z else sPART} offen{sc}']
        g0, g1 = g(0), g(1)
        seq += [O[7], 's_nop 0', O[8], 's_nop 0', O[9], 's_nop 0', O[10], 's_nop 0', O[11], g0[0], O[12], g0[1], g0[2], O[13], g0[3], g0[4], O[14], g0[5], O[15], 's_nop 0'] + g1[:3]
        f[3] = g1[3:]
    elif cfg.osch == 0:
        seq += [O[7], 's_nop 1', O[8], 's_nop 1', O[9], 's_nop 0', f[0][0], O[10], f[0][1], f[0][2], f[0][3], O[11], 's_nop 0', O[12], f[1][0], 's_nop 0']
        seq += [O[13], f[1][1], f[1][2], f[1][3], O[14], 's_nop 0', O[15]] + f[2]
    else:
        seq += [O[7], 's_nop 0', O[8], 's_nop 0', O[9], 's_nop 0', O[10], 's_nop 0', O[11], f[0][0], O[12], f[0][1], O[13], f[0][2], O[14], f[0][3], O[15]] + f[1] + f[2]
    seq += [f'v_mov_b64 v[{RDA}:{RDA+1}], 0', f'v_mov_b64 v[{RDA+2}:{RDA+3}], 0', f'v_mov_b32 v{RDA+4}, -1', f's_cmp_lt_u32 s{sW}, {cfg.wsplit}' if cfg.wsplit else f's_mov_b32 s{sSPIN}, 0'] + f[3]
    for l in seq: a(l)
    ts()
    if cfg.wsplit: a(f's_mov_b32 s{sSPIN}, 0')
    for _ in range(cfg.pd0): a('s_nop 3')
    if cfg.wsplit: a(f's_cbranch_scc1 {pre}_e1')
    for l in ESR[:cfg.es1]: a(l)
    if cfg.lw & 16: a('s_waitcnt lgkmcnt(0)')
    for _ in range(cfg.pd1): a('s_nop 3')
    a.label(pre + '_e1')
    if cfg.x_ack: a('s_waitcnt vmcnt(0)')
    ts(True)
    a(ppA)
    if cfg.wsplit:
        a(f's_cbranch_scc0 {pre}_e2')
        for l in ESR[:cfg.es1]: a(l)
        a.label(pre + '_e2')
    a(f's_xor_b32 s{sT}, s{sMST}, 0x2000\ns_xor_b32 s{sMEM}, s{sMEM}, 0x2000\ns_add_u32 s{sS}, s{sS}, 1\ns_add_u32 s{sPUB}, s{sPUB}, s15\ns_mov_b32 s15, 0x8000')
    a(kxdma[3]); a(vxld[2]); a(f's_xor_b32 m0, m0, {L_KX ^ (2*L_KX)}\ns_xor_b32 s{sKXB}, s{sKXB}, {L_KX ^ (2*L_KX)}')
    for l in ESR[cfg.es1:cfg.es2]: a(l)
    if cfg.lw & 8: a('s_waitcnt lgkmcnt(0)')
    if cfg.dual1:
        for _ in range(cfg.sp1): a('s_nop 3')
        a(ppB)
    if cfg.zpos == 0:
        for l in ZA: a(l)
    warm(cfg.wm1)
    a.label(pre + '_pp')
    a(f's_waitcnt vmcnt({2 if cfg.dual1 else 0})')
    a(chk_part(RL)); a(f's_cbranch_vccnz {pre}_pp_retry')
    a.label(pre + '_pp_join')
    ts()
    a(f's_xor_b32 s{sTAG}, s{sTAG}, 1')
    for r in (4, 8):
        for i in range(2): a(f'v_add_f32_dpp v{RDA+i}, v{RDA+i}, v{RDA+i} row_ror:{r} {DPP}')
    if cfg.xm == 1: a(f's_mov_b32 exec_lo, 0x000f000f\ns_mov_b32 exec_hi, 0x000f000f')
    if cfg.xm == 2: a('s_mov_b64 exec, s[46:47]')
    a(f'v_cvt_pk_bf16_f32 v{RDA}, v{RDA}, v{RDA+1}\nv_min_u32 v{RDA}, -2, v{RDA}')
    a(f'buffer_store_dword v{RDA}, v{vMst}, {S(sWS)}, s{sT} offen{sc}')
    a(f'buffer_store_dword v{RDA+4}, v{vMst}, {S(sWS)}, s{sMST} offen{sc}')
    a(f's_mov_b64 exec, -1\ns_mov_b32 s{sMST}, s{sT}')
    ts(True)
    for l in ESR[cfg.es2:cfg.es3]: a(l)
    if cfg.prof or cfg.trace: a('s_waitcnt lgkmcnt(0)')
    if cfg.prof:
        for i in range(10):
            a(f's_sub_u32 s{sT}, s{20+2*i}, s{18+2*i}\ns_add_u32 s{68+i}, s{68+i}, s{sT}')
    if cfg.trace:
        a(f's_sub_u32 s{sT2}, s{sS}, {cfg.trace}\ns_cmp_gt_u32 s{sT2}, 1\ns_cbranch_scc1 {pre}_notr')
        a(f's_lshl_b32 s{sT}, s{sIDX}, 2\ns_add_u32 s{sT}, s{sT}, s{sW}\ns_lshl_b32 s{sT}, s{sT}, 1\ns_add_u32 s{sT}, s{sT}, s{sT2}\ns_lshl_b32 s{sT}, s{sT}, 6\ns_add_u32 s{sT}, s{sT}, {TS+0x8000:#x}')
        for i in range(cnt[0]): a(f'v_writelane_b32 v0, s{PAIRS[i]}, {i}')
        a('v_writelane_b32 v0, s96, 14\nv_writelane_b32 v0, s98, 15')
        a(f'v_lshrrev_b32 v{MA01}, 2, v{vL16}\ns_mov_b64 exec, 0xffff\nbuffer_store_dword v0, v{MA01}, {S(sWS)}, s{sT} offen\ns_mov_b64 exec, -1')
        a.label(pre + '_notr')
        a(f's_cmp_lg_u32 s{sS}, {cfg.trace-4}\ns_cbranch_scc1 {pre}_nocal')
        a('s_memrealtime s[100:101]\ns_waitcnt lgkmcnt(0)')
        a.label(pre + '_cal')
        a(f's_memrealtime s[96:97]\ns_memtime s[98:99]\ns_waitcnt lgkmcnt(0)\ns_cmp_eq_u32 s96, s100\ns_cbranch_scc1 {pre}_cal')
        a.label(pre + '_nocal')
    if cfg.steplog >= 0:
        a(f's_memrealtime s[100:101]\ns_sub_u32 s{sT2}, s{sS}, {cfg.steplog}\ns_cmp_ge_u32 s{sT2}, 26\ns_cbranch_scc1 {pre}_nsl')
        a(f's_mov_b32 s99, m0\ns_mov_b32 m0, s{sT2}\ns_waitcnt lgkmcnt(0)\ns_movreld_b32 s16, s100\ns_mov_b32 m0, s99')
        a.label(pre + '_nsl')
    if cfg.bar2: a('s_barrier')
    for _ in range(cfg.pd2): a('s_nop 3')
    a(f's_cmp_lg_u32 s{sS}, s{sLIM}')
    a.flush()
    a(f's_cbranch_scc1 {pre}_step\ns_branch {pre}_special')
```

```python
import sys, os
sys.path.insert(0, os.path.dirname(__file__))
from asmlib import Asm, vr

NAME = 'concat_heads__sliding_local_dilated__memory_aug_recurrent_mem_tr__prompt'
QX, KX, VX, KVM, FPR = 0, 0x2000, 0x4000, 0x6000, 0xf000
OX = 0x4000000
PART, MEMS, FLG = 0x5000000, 0x5080000, 0x5100000
WS_BYTES = 0x10000000
LDS_BYTES = 163840
sWS, sDBG = 4, 8
sR1, sR2, sR3 = 12, 44, 48
sXCD, sIDX, sW = 42, 43, 3
P = lambda i: 16 + 2 * i

class Cfg:
    roles = 'pcao'
    stamps = False
    spos = 0
    lw = 15
    es4 = 15
    es5 = 16
    zpos = 0
    lazy = 1
    xm = 2
    touch = 1
    need1 = 7
    phalf = 1
    cwarm = 0
    steplog = -1
    depth = 4
    osc = 0
    x4 = 0
    own = 3
    pubpos = 0
    pfd = 0
    x_ack = 0
    mask = 1
    wsplit = 0
    dbgts = 0
    dbgmap = {'c': [(0, 9), (2, 10), (3, 11)], 'w': [(0, 12), (3, 13), (5, 14)], 'o': [(3, 15)]}
    fsh = 7
    sl1 = 2
    sl2 = 1
    warm = 1
    cord = 1
    need0 = 192
    x_only = -1
    x_stop = 0
    dual1 = 1
    sp4 = 7
    swz = 0
    pd0 = 0
    sp3 = 0
    h1 = 3
    h2 = 8
    kdpos = 0
    hint = 0
    hpos = 8
    ppos = (16, 20, 30)
    bar2 = 1
    np1 = 1
    np2 = 1
    sp1 = 0
    sp2 = 0
    trace = 0
    clk = 0
    x_nokv = 0
    x_nopub = 0
    x_nopf = 1
    vpos = 2
    osch = 0
    vgap = 3
    x_pfplain = 0
    x_kvplain = 0
    wm1 = 0
    wm2 = 0
    es1 = 12
    es2 = 14
    es3 = 14
    pd1 = 0
    pd2 = 0
    prof = 0
    force_slow = 0
    x_nostore = 0
    x_nodma = 0
    x_plain = 0

def srd(a, d, base, size):
    a(f's_mov_b32 s{d}, s{base}\ns_and_b32 s{d+1}, s{base+1}, 0xffff\ns_mov_b32 s{d+2}, {size:#x}\ns_mov_b32 s{d+3}, 0x20000')

def S(d): return f's[{d}:{d+3}]'

TS = 0x5180000
def stamp(a, cfg, i):
    if cfg.stamps:
        a(f's_memrealtime s[{84+2*i}:{85+2*i}]')
def dump_stamps(a, cfg, n, role):
    if not cfg.stamps: return
    l = a.newlabel('L_ts')
    a(f's_waitcnt lgkmcnt(0)\ns_cmp_lg_u32 s{sW}, 0\ns_cbranch_scc1 {l}')
    a(f's_lshl_b32 s80, s2, 6\ns_add_u32 s80, s80, {TS:#x}\nv_mov_b32 v1, 0')
    for i in range(n):
        a(f'v_mov_b32 v2, s{84+2*i}\nbuffer_store_dword v2, v1, {S(sWS)}, s80 offen offset:{4*i}')
    if cfg.dbgts:
        a('s_mov_b64 exec, 1')
        a(f's_not_b32 s81, s84\nv_mov_b32 v2, s81\nbuffer_atomic_umax v2, v1, {S(sDBG)}, 0 offen offset:32')
        for slot, word in cfg.dbgmap[role]:
            a(f'v_mov_b32 v2, s{84+2*slot}\nbuffer_atomic_umax v2, v1, {S(sDBG)}, 0 offen offset:{4*word}')
    a.label(l)

def prologue(a, cfg):
    a('s_cmp_ge_u32 s2, 256\ns_cbranch_scc1 L_end')
    a('s_load_dwordx16 s[16:31], s[0:1], 0\ns_load_dwordx8 s[32:39], s[0:1], 64\ns_load_dwordx2 s[40:41], s[0:1], 96')
    a(f's_and_b32 s{sXCD}, s2, 7\ns_lshr_b32 s{sIDX}, s2, 3')
    if cfg.cwarm:
        a('s_getpc_b64 s[44:45]')
        a.label('L_pc')
        a('s_and_b32 s45, s45, 0xffff')
        a.raw('  s_mov_b32 s46, L_code_end - L_pc')
        a('s_mov_b32 s47, 0x20000\nv_lshlrev_b32 v2, 7, v0\ns_mov_b32 s48, 0x8000\ns_mov_b32 s49, 0x10000')
        a('buffer_load_dword v253, v2, s[44:47], 0 offen')
        a('v_add_u32 v2, 0x8000, v2\nbuffer_load_dword v254, v2, s[44:47], 0 offen')
        a('v_add_u32 v2, 0x8000, v2\nbuffer_load_dword v255, v2, s[44:47], 0 offen')
    a(f'v_lshrrev_b32 v1, 6, v0\nv_and_b32 v0, 63, v0\nv_readfirstlane_b32 s{sW}, v1')
    a('s_waitcnt lgkmcnt(0)')
    srd(a, sWS, P(12), WS_BYTES)
    srd(a, sDBG, P(11), 256)
    a(f's_cmp_eq_u32 s{sXCD}, 0\ns_cbranch_scc1 L_chain')
    a(f's_cmp_eq_u32 s{sXCD}, 1\ns_cbranch_scc1 L_apart')

def role_proj(a, cfg):
    vL16, vSRC, vTR, vX, vRD, vZ = 1, 2, 3, 4, 5, 6
    XB = 16
    ACC = 48
    PK = 64
    XV, RB, RD = 72, 80, 84
    sJ, sWH, sPAR, sT, sT2, sI, sXO, sSLOT, sRSLOT, sOUT, sG = 52, 53, 54, 55, 56, 57, 58, 59, 60, 61, 62
    stamp(a, cfg, 0)
    a(f's_sub_u32 s{sJ}, s{sXCD}, 2\ns_lshr_b32 s{sWH}, s{sJ}, 1\ns_and_b32 s{sPAR}, s{sJ}, 1')
    a(f's_cmp_eq_u32 s{sWH}, 0\ns_cselect_b32 s64, s{P(6)}, s{P(7)}\ns_cselect_b32 s65, s{P(6)+1}, s{P(7)+1}')
    a(f's_mov_b32 s{sOUT}, {VX:#x}\ns_cselect_b32 s{sOUT}, {KX:#x}, s{sOUT}')
    a(f's_cmp_eq_u32 s{sWH}, 2\ns_cselect_b32 s64, s{P(5)}, s64\ns_cselect_b32 s65, s{P(5)+1}, s65\ns_cselect_b32 s{sOUT}, {QX:#x}, s{sOUT}')
    srd(a, sR1, 64, 512 * 8192)
    srd(a, sR2, P(3), 2048 * 1024)
    a(f'v_lshlrev_b32 v{vL16}, 4, v0')
    a(f'v_mov_b32 v{vZ}, 0\ns_lshl_b32 s{sG}, s{sIDX}, 21\ns_lshl_b32 s63, s{sJ}, 7\ns_add_u32 s{sG}, s{sG}, s63\ns_add_u32 s{sG}, s{sG}, {FPR:#x}')
    a(f's_lshl_b32 s{sT2}, s{sJ}, 12\ns_add_u32 s{sT2}, s{sT2}, {FLG+4096:#x}\ns_lshl_b32 s63, s{sIDX}, {cfg.fsh}\ns_add_u32 s{sT2}, s{sT2}, s63')
    a(f's_cmp_lg_u32 s{sW}, 0\ns_cbranch_scc1 L_pz2')
    a(f'buffer_store_dword v{vZ}, v{vZ}, {S(sWS)}, s{sT2} offen sc1\nbuffer_store_dword v{vZ}, v{vZ}, {S(sWS)}, s{sG} offen sc1')
    a('L_pz2:')
    a(f'v_lshrrev_b32 v8, 4, v0\ns_and_b32 s{sT}, s{sW}, 2\ns_lshl_b32 s{sT}, s{sT}, 1\nv_or_b32 v9, s{sT}, v8\nv_lshlrev_b32 v9, 1, v9')
    a(f'v_and_b32 v10, 15, v0\nv_xor_b32 v9, v9, v10\nv_lshlrev_b32 v9, 4, v9\nv_lshl_add_u32 v{vSRC}, v8, 13, v9')
    a(f's_lshl_b32 s{sT}, s{sIDX}, 8\ns_lshl_b32 s{sT2}, s{sW}, 15\ns_add_u32 s{sT}, s{sT}, s{sT2}\ns_lshl_b32 m0, s{sW}, 10')
    for k in range(32):
        a(f'buffer_load_dwordx4 v{vSRC}, {S(sR1)}, s{sT} offen lds')
        a(f's_add_u32 s{sT}, s{sT}, {16*8192:#x}\ns_add_u32 m0, m0, 4096')
    WT = 12
    a(f'v_bfe_u32 v9, v0, 2, 2\nv_lshl_add_u32 v10, v8, 3, v9\nv_lshlrev_b32 v10, 8, v10')
    a(f'v_and_b32 v8, 1, v8\nv_lshl_or_b32 v9, v8, 2, v9\nv_lshlrev_b32 v9, 1, v9')
    a(f'v_bfe_u32 v8, v0, 1, 1\ns_lshl_b32 s{sT}, s{sW}, 2\nv_or_b32 v8, s{sT}, v8\nv_xor_b32 v9, v9, v8\nv_lshl_add_u32 v10, v9, 4, v10')
    a(f'v_and_b32 v8, 1, v0\nv_lshl_add_u32 v{WT}, v8, 3, v10\nv_xor_b32 v{WT+2}, 32, v{WT}\nv_add_u32 v{WT+1}, 0x10000, v{WT}\nv_add_u32 v{WT+3}, 0x10000, v{WT+2}')
    a(f's_lshl_b32 s{sT}, s{sW}, 3\ns_and_b32 s{sT2}, s{sT}, 15\ns_lshl_b32 s{sT}, s{sT}, 10')
    for i in range(8):
        a(f's_add_u32 s63, s{sT2}, {i}\nv_xor_b32 v8, s63, v0\nv_lshlrev_b32 v8, 4, v8')
        a(f's_add_u32 s63, s{sT}, {(i//4)*4096}\nv_add_u32 v{XV+i}, s63, v8')
    for uu in range(4):
        a(f'v_lshrrev_b32 v8, 4, v0\nv_or_b32 v8, {4*uu}, v8\nv_and_b32 v9, 15, v0\nv_xor_b32 v8, v8, v9\nv_lshlrev_b32 v8, 4, v8')
        a(f'v_lshlrev_b32 v9, 10, v9\nv_add_u32 v{RB+uu}, v8, v9')
    def xdma(only=None):
        for i in range(8):
            if only is not None and i != only: continue
            if i == 0: a(f's_lshl_b32 s{sT}, s{sW}, 13\ns_add_u32 m0, s{sSLOT}, s{sT}')
            a(f'buffer_load_dwordx4 v{XV+i}, {S(sR2)}, s{sXO} offen offset:{1024*(i%4)} lds')
            if i == 3: a('s_add_u32 m0, m0, 4096')
        if only is not None and only != 7: return
        a(f's_add_u32 s{sXO}, s{sXO}, 0x10000\ns_min_u32 s{sXO}, s{sXO}, 0x1f8000\ns_add_u32 s{sSLOT}, s{sSLOT}, 0x8000')
        a(f's_cmp_eq_u32 s{sSLOT}, 0x28000\ns_cselect_b32 s{sSLOT}, 0, s{sSLOT}')
    a(f's_lshl_b32 s{sXO}, s{sPAR}, 15\ns_mov_b32 s{sSLOT}, 0x20000\ns_mov_b32 s{sRSLOT}, 0x20000')
    xdma()
    for st in range(4):
        a(f's_waitcnt vmcnt({8 + 8*(3-st)})\ns_barrier')
        for u in range(4*st, 4*st + 4):
            for c in range(2):
                for t in range(2):
                    r = (t * 16 + u) * 4 + 2 * c
                    a(f'ds_read_b64_tr_b16 a[{r}:{r+1}], v{WT + 2*t + u//8} offset:{(u%8)*8192 + c*1024}')
    a('s_waitcnt lgkmcnt(0)\ns_barrier')
    stamp(a, cfg, 1)
    xdma(); xdma()
    a(f's_lshl_b32 s{sT}, s{sPAR}, 15\ns_add_u32 s{sOUT}, s{sOUT}, s{sT}\ns_lshl_b32 s{sT}, s{sIDX}, 21\ns_add_u32 s{sOUT}, s{sOUT}, s{sT}')
    a(f's_cmp_eq_u32 s{sWH}, 1\ns_cselect_b32 s{sT2}, 11, 10\ns_lshl_b32 s{sT}, s{sW}, s{sT2}\ns_add_u32 s{sOUT}, s{sOUT}, s{sT}')
    sADV, sOUT2 = 63, 66
    ACCS = (ACC, 88)
    a(f's_mov_b32 s{sI}, 0\nv_mov_b32 v7, 1\ns_mov_b32 s{sADV}, 0')
    a(f's_cmp_eq_u32 s{sWH}, 1\ns_cselect_b32 s{sT}, 1, 4\ns_lshl_b32 s{sT}, s{sT}, 10\ns_add_u32 s{sOUT2}, s{sOUT}, s{sT}')
    def rd(u):
        return [f'ds_read_b128 v[{XB + ((u % 4) * 2 + T) * 4}:{XB + ((u % 4) * 2 + T) * 4 + 3}], v{RD+u%4} offset:{T*16384+((u%16)//4)*256}' for T in range(2)]
    def nextslot():
        return [f'v_add_u32 v{RD+uu}, s{sRSLOT}, v{RB+uu}' for uu in range(4)] + \
               [f's_add_u32 s{sRSLOT}, s{sRSLOT}, 0x8000\ns_cmp_eq_u32 s{sRSLOT}, 0x28000\ns_cselect_b32 s{sRSLOT}, 0, s{sRSLOT}']
    def epilogue(isv, acc):
        E = []
        for f in range(2):
            for hlf in range(2):
                d = acc + ((f * 2 + (hlf ^ f)) if isv else (hlf * 2 + f)) * 4
                E += [f'v_cvt_pk_bf16_f32 v{PK+f*4+hlf*2}, v{d}, v{d+1}', f'v_cvt_pk_bf16_f32 v{PK+f*4+hlf*2+1}, v{d+2}, v{d+3}']
            E.append(f'buffer_store_dwordx4 v[{PK+f*4}:{PK+f*4+3}], v{vL16}, {S(sWS)}, s{sOUT2 if f else sOUT} offen sc1')
        if isv: E[-1] += f'\nbuffer_store_dwordx4 v[12:15], v11, {S(sWS)}, s{sOUT} offen sc1'
        E.append(f's_add_u32 s{sOUT}, s{sOUT}, s{sADV}\ns_add_u32 s{sOUT2}, s{sOUT2}, s{sADV}\ns_mov_b32 s{sADV}, 0x10000')
        return E
    for i in range(4): a(f'v_mov_b32 v{12+i}, -1')
    a(f's_lshl_b32 s{sT}, s{sW}, 10\nv_subrev_u32 v11, s{sT}, v{vL16}\nv_add_u32 v11, {KVM - VX:#x}, v11')
    a('s_waitcnt vmcnt(16)\ns_barrier')
    a(f's_cmp_lg_u32 s{sW}, 0\ns_cbranch_scc1 L_p_ni')
    a(f's_mov_b64 exec, 1\nbuffer_atomic_add v7, v{vZ}, {S(sDBG)}, 0 offen sc1\ns_mov_b64 exec, -1')
    a('L_p_ni:')
    stamp(a, cfg, 4)
    for l in nextslot(): a(l)
    for u in range(4):
        for l in rd(u): a(l)
    a(f's_cmp_eq_u32 s{sWH}, 1\ns_cbranch_scc1 L_pv_loop')
    for isv in (0, 1):
        lab = 'L_pv_loop' if isv else 'L_pk_loop'
        a.label(lab)
        for half in range(2):
            acc = ACCS[half]
            E = epilogue(isv, ACCS[1 - half])
            for u in range(16):
                a('s_waitcnt lgkmcnt(6)')
                fill = []
                if 2 <= u <= 7: fill = E[2*(u-2):2*(u-2)+2]
                k = 0
                for T in range(2):
                    for t in range(2):
                        d = acc + (t * 2 + T) * 4
                        x = XB + ((u % 4) * 2 + T) * 4
                        w = (t * 16 + u) * 4
                        c = '0' if u == 0 else f'v[{d}:{d+3}]'
                        if isv: a(f'v_mfma_f32_16x16x32_bf16 v[{d}:{d+3}], v[{x}:{x+3}], a[{w}:{w+3}], {c}')
                        else:   a(f'v_mfma_f32_16x16x32_bf16 v[{d}:{d+3}], a[{w}:{w+3}], v[{x}:{x+3}], {c}')
                        if k == 0 and u % 2 == 0: xdma(u // 2)
                        if k == 0 and u == 12:
                            a('s_waitcnt vmcnt(13)\ns_barrier')
                            for l in nextslot(): a(l)
                        if k == 1: a(rd(u + 4)[0])
                        if k == 3: a(rd(u + 4)[1])
                        if k in (0, 2) and fill: a(fill.pop(0))
                        if k == 2 and u == 13 and half == cfg.phalf:
                            a(f's_cmp_lg_u32 s{sW}, 0\ns_cbranch_scc1 {lab}_nf')
                            a(f'v_mov_b32 v8, s{sI}\ns_mov_b64 exec, 1\nbuffer_store_dword v8, v{vZ}, {S(sWS)}, s{sG} offen sc1')
                            a('s_mov_b64 exec, -1')
                            a.label(f'{lab}_nf')
                        k += 1
        a(f's_add_u32 s{sI}, s{sI}, 2\ns_cmp_lt_u32 s{sI}, 32\ns_cbranch_scc1 {lab}')
        a.flush(); a('s_nop 7')
        for l in epilogue(isv, ACCS[1]): a(l)
        if not isv: a('s_branch L_p_done')
    a('L_p_done:')
    stamp(a, cfg, 2)
    a('s_waitcnt vmcnt(0) lgkmcnt(0)\ns_barrier')
    stamp(a, cfg, 3)
    a(f's_cmp_lg_u32 s{sW}, 0\ns_cbranch_scc1 L_p_fl')
    a(f'v_mov_b32 v8, 32\ns_mov_b64 exec, 1\nbuffer_store_dword v8, v{vZ}, {S(sWS)}, s{sG} offen sc1\ns_mov_b64 exec, -1')
    a('L_p_fl:')

def build(cfg):
    cfg.OS = ['', ' sc1', ' nt', ' sc0 sc1'][cfg.osc]
    a = Asm()
    hdr = open(os.path.join(os.path.dirname(__file__), '..', 'cdna_kernels', NAME + '.s.ref')).read().split('\n')
    for l in hdr:
        if l.startswith('; @launch'): break
        a.raw(l)
    a.raw(f'; @launch grid=(256,1,1) block=(256,1,1) lds={LDS_BYTES}')
    a.raw('.amdgcn_target "amdgcn-amd-amdhsa--gfx950"\n.text')
    a.raw(f'.globl {NAME}_kernel\n.p2align 8\n.type {NAME}_kernel,@function\n{NAME}_kernel:')
    prologue(a, cfg)
    if cfg.x_only >= 0: a(f's_cmp_gt_u32 s{sXCD}, {cfg.x_only}\ns_cbranch_scc1 L_end')
    role_proj(a, cfg)
    if 'a' in cfg.roles:
        from role_att import role_att
        role_att(a, cfg)
    dump_stamps(a, cfg, 8, 'w')
    a('s_endpgm')
    a.label('L_chain')
    if 'c' in cfg.roles:
        from role_chain import role_chain
        role_chain(a, cfg)
        dump_stamps(a, cfg, 8, 'c')
    a('s_endpgm')
    a.label('L_apart')
    if 'o' in cfg.roles:
        from role_apart import role_apart
        role_apart(a, cfg)
        dump_stamps(a, cfg, 8, 'o')
    a.label('L_end')
    a('s_endpgm')
    a.label('L_code_end')
    a.raw(f'''.section .rodata,"a"
.p2align 6
.amdhsa_kernel {NAME}_kernel
  .amdhsa_next_free_vgpr 512
  .amdhsa_next_free_sgpr 102
  .amdhsa_accum_offset 256
  .amdhsa_group_segment_fixed_size 0
  .amdhsa_kernarg_size 104
  .amdhsa_user_sgpr_count 2
  .amdhsa_user_sgpr_kernarg_segment_ptr 1
  .amdhsa_system_sgpr_workgroup_id_x 1
.end_amdhsa_kernel''')
    return a.text()

if __name__ == '__main__':
    sys.modules['gen'] = sys.modules['__main__']
    cfg = Cfg()
    out = None
    for arg in sys.argv[1:]:
        if arg.startswith('roles='): cfg.roles = arg[6:]
        elif arg.startswith('out='): out = arg[4:]
        elif '=' in arg:
            k, v = arg.split('='); setattr(cfg, k, tuple(int(x) for x in v.split(',')) if k == 'ppos' else int(v))
    out = out or os.path.join(os.path.dirname(__file__), '..', 'cdna_kernels', NAME + '.s')
    open(out, 'w').write(build(cfg))
    print('wrote', out)
```

```python
from gen import *
import struct, math

def f2u(x): return struct.unpack('<I', struct.pack('<f', x))[0]

L_MEM, L_KX, L_Q, L_O, L_LS, L_ES = 0, 8192, 0, 4096, 24576, 81920
vL16, vTX, vMem, vMH1, vMH2, vKw, vTM, vOw, vPst, vMst, vIdx, SEL, VXF = 1, 2, 3, 4, 5, 6, 7, 8, 9, 10, 11, 12, 16
ES0 = 24
F0, F0R = 104, 112
AV, AK, AQ, PUB = 120, 124, 128, 132
FO = 24
KXF, QKF = 72, 104
SX, SX1, SM = 24, 28, 32
ACC0, ACC1, PF, PM = 96, 100, 124, 128
OUT, OF, LS0 = 104, 24, 40
RL, RDA = 112, 104
MA01 = F0
L_DUM = 23552
sT, sT2, sS, sMEM, sPART, sPART2, sRED, sMST, sKX, sVX, sPUB, sFL, sC, sNC, sSPIN, sG = range(52, 68)
sTAG, sLIM, sM0K, sKXB = 82, 83, 13, 14
sP1, sP3 = 48, 49
HINT = MEMS + 0x8000

OORD = [('o',x,0) for x in range(4)] + [('o',x,sg) for x in range(4) for sg in range(1,4)]
OTH = [(2*pr + h, rho) for pr in range(1, 4) for rho in range(2) for h in range(2)]
PORD = [(m,rho,sl) for rho in range(2) for sl in range(2) for m in 'qkv']
PORD += [(m,rho,sl) for (sl,rho) in OTH for m in 'qk']
HELD = [('v',rho,sl) for (sl,rho) in OTH]
def blocks():
    loc = {}
    for i, b in enumerate(PORD[:10]): loc[b] = ('es', i)
    for i, b in enumerate(OORD[-7:]): loc[b] = ('ls', i)
    n = 0
    for b in PORD + HELD + OORD:
        if b in loc: continue
        loc[b] = ('a', 8*n) if n < 32 else ('v', 136 + 8*(n-32)); n += 1
    assert n == 47
    return loc
LOC = blocks()
def breg(b):
    k, i = LOC[b]
    if k == 'es': return 'v', ES0 + 8*i
    if k == 'ls': return 'v', LS0 + 8*i
    return k, i
def B8(b):
    k, i = breg(b); return f'{k}[{i}:{i+7}]'
def ldsaddr(off):
    if off < 65536 - 8192: return vMem, off
    if off < 65536: return vMem, off
    if off < 131072: return vMH1, off - 65536
    return vMH2, off - 131072
def ma(rho, slot):
    b = (F0R if rho else F0) + 4*slot if slot < 2 else FO + 4*OTH.index((slot, rho))
    return b
def smf(b):
    m, rho, slot = b
    acc = {'q': AQ, 'k': AK, 'v': AV}[m]
    f = ma(rho, slot)
    return f'v_smfmac_f32_16x16x64_bf16 v[{acc}:{acc+3}], v[{f}:{f+3}], {B8(b)}, v{vIdx}'
def stage_reads(kind, idxs):
    out = []
    for i in idxs:
        base, r0 = (L_ES, ES0) if kind == 'es' else (L_LS, LS0)
        for h in range(2):
            va, off = ldsaddr(base + i*8192 + h*1024)
            out.append(f'ds_read_b128 v[{r0+8*i+4*h}:{r0+8*i+4*h+3}], v{va} offset:{off}')
    return out
def weave(a, M, F, per=2, lead=0):
    F = list(F)
    for _ in range(lead):
        if F: a(F.pop(0))
    for m in M:
        a(m)
        for _ in range(per):
            if F: a(F.pop(0))
    for f in F: a(f)

def poll(a, name, issue, check, cnt=0):
    a(f's_mov_b32 s{sSPIN}, 0')
    a.label(name)
    for l in issue: a(l)
    a(f's_waitcnt vmcnt({cnt})')
    for l in check: a(l)
    a(f's_cbranch_vccz {name}_ok')
    a(f's_add_u32 s{sSPIN}, s{sSPIN}, 1\ns_cmp_lt_u32 s{sSPIN}, 0x200000\ns_cbranch_scc1 {name}')
    a('s_branch L_end')
    a.label(name + '_ok')

def wait_word(a, name, srd, soff, target, v=0, sleep=2):
    a(f's_mov_b32 s{sSPIN}, 0\nv_mov_b32 v{v+1}, 0')
    a.label(name)
    a(f'buffer_load_dword v{v}, v{v+1}, {S(srd)}, {soff} offen sc1\ns_waitcnt vmcnt(0)')
    a(f'v_readfirstlane_b32 s{sT2}, v{v}')
    a(f's_cmp_ge_u32 s{sT2}, {target}\ns_cbranch_scc1 {name}_ok')
    a(f's_sleep {sleep}\ns_add_u32 s{sSPIN}, s{sSPIN}, 1\ns_cmp_lt_u32 s{sSPIN}, 0x400000\ns_cbranch_scc1 {name}')
    a('s_branch L_end')
    a.label(name + '_ok')

VT = 36
KPK = [f'v_cvt_pk_bf16_f32 v{PUB}, v{AK}, v{AK+1}', f'v_cvt_pk_bf16_f32 v{PUB+1}, v{AK+2}, v{AK+3}']
CANON = f'v_min_u32 v{PUB}, -2, v{PUB}'

def progress(a, name, v, need_s):
    a(f's_mov_b32 s{sSPIN}, 0')
    a.label(name)
    a(f'v_readlane_b32 s{sT}, v{v}, 0\nv_readlane_b32 s{sLIM}, v{v}, 1\ns_min_u32 s{sT}, s{sT}, s{sLIM}')
    a(f'v_readlane_b32 s{sLIM}, v{v}, 2\ns_min_u32 s{sT}, s{sT}, s{sLIM}\nv_readlane_b32 s{sLIM}, v{v}, 3\ns_min_u32 s{sT}, s{sT}, s{sLIM}\ns_lshl_b32 s{sT}, s{sT}, 1')
    a(f's_cmp_gt_u32 s{sT}, {need_s}\ns_cbranch_scc1 {name}_ok')
    a(f's_sleep 2\nbuffer_load_dword v{v}, v{v+1}, {S(sWS)}, s{sFL} offen sc1\ns_waitcnt vmcnt(0)')
    a(f's_add_u32 s{sSPIN}, s{sSPIN}, 1\ns_cmp_lt_u32 s{sSPIN}, 0x400000\ns_cbranch_scc1 {name}\ns_branch L_end')
    a.label(name + '_ok')
    a(f's_and_b32 s{sLIM}, s{sT}, -8\ns_cmp_gt_u32 s{sLIM}, {need_s}\ns_cselect_b32 s{sLIM}, s{sLIM}, s{sT}\ns_sub_u32 s{sLIM}, s{sLIM}, 1\ns_mov_b32 s{sSPIN}, 0')
VPK = [f'v_cvt_pk_bf16_f32 v{PUB+2}, v{AV}, v{AV+1}', f'v_cvt_pk_bf16_f32 v{VT}, v{AV+2}, v{AV+3}',
       f'v_cvt_pk_bf16_f32 v{VT+1}, v{AV+1}, v{AV}', f'v_cvt_pk_bf16_f32 v{PUB+3}, v{AV+3}, v{AV+2}',
       f'v_permlane32_swap_b32 v{PUB+2}, v{VT}', f'v_permlane32_swap_b32 v{VT+1}, v{PUB+3}']
RARE_AT = 34

def role_chain(a, cfg):
    a.comment('---- chain head')
    stamp(a, cfg, 0)
    assert not cfg.x4
    vS1, vS2, vTR, vTQ = 96, 97, 98, 100
    T = 110
    a(f'v_lshlrev_b32 v{vL16}, 4, v0\nv_and_b32 v{vTM}, 1, v0\nv_xor_b32 v{vTM}, 1, v{vTM}')
    a(f's_lshl_b32 s{sT}, s{sW}, 11\nv_add_u32 v{vMem}, s{sT}, v{vL16}')
    a(f'v_add_u32 v{vMH1}, 0x10000, v{vMem}\nv_add_u32 v{vMH2}, 0x20000, v{vMem}')
    a(f'v_and_b32 v{T}, 7, v0\nv_lshlrev_b32 v{T}, 4, v{T}')
    a(f'v_bfe_u32 v{T+1}, v0, 5, 1\nv_bfe_u32 v{T+2}, v0, 4, 1\nv_bfe_u32 v{T+3}, v0, 2, 1\nv_bfe_u32 v{T+4}, v0, 3, 1')
    a(f'v_lshl_add_u32 v{vS1}, v{T+1}, 15, v{T}\nv_lshl_add_u32 v{vS1}, v{T+4}, 13, v{vS1}\nv_lshl_add_u32 v{vS1}, v{T+2}, 16, v{vS1}')
    a(f'v_lshl_add_u32 v{vS2}, v{T+2}, 14, v{T}\nv_lshl_add_u32 v{vS2}, v{T+1}, 12, v{vS2}\nv_lshl_add_u32 v{vS2}, v{T+4}, 10, v{vS2}')
    a(f'v_and_b32 v{T+5}, 3, v0\nv_lshlrev_b32 v{T+5}, 3, v{T+5}\nv_lshrrev_b32 v{T+6}, 4, v0')
    a(f's_mul_i32 s{sG}, s{sW}, 20480')
    a(f'v_lshl_add_u32 v{vTR}, v{T+6}, 8, v{T+5}\nv_lshl_add_u32 v{vTR}, v{T+3}, 7, v{vTR}\nv_lshl_add_u32 v{vTR}, v{T+4}, 6, v{vTR}\nv_add_u32 v{vTR}, s{sG}, v{vTR}')
    a(f'v_lshrrev_b32 v{T+6}, 2, v0\nv_lshl_add_u32 v{T+5}, v{T+6}, 7, v{T+5}\nv_lshl_add_u32 v{T+5}, v{T+4}, 5, v{T+5}')
    a(f's_and_b32 s{sT}, s{sW}, 1\ns_lshl_b32 s{sT}, s{sT}, 6\nv_add_u32 v{T+5}, s{sT}, v{T+5}\nv_xor_b32 v{T+6}, 256, v{T+5}')
    a(f's_xor_b32 s{sT}, s{sW}, 1\ns_mul_i32 s{sT}, s{sT}, 20480')
    a(f'v_add_u32 v{vTQ}, s{sG}, v{T+5}\nv_add_u32 v{vTQ+1}, s{sG}, v{T+6}\nv_add_u32 v{vTQ+2}, s{sT}, v{T+5}\nv_add_u32 v{vTQ+3}, s{sT}, v{T+6}')
    sQ, sK, sV, sO = 68, 72, 76, sR1
    srd(a, sQ, P(5), 512*8192); srd(a, sK, P(6), 512*8192); srd(a, sV, P(7), 512*8192); srd(a, sO, P(8), 4096*1024)
    chunks = [(m, (sg, ch)) for m in 'qkv' for sg in (0, 1, 4, 5) for ch in range(2)] + [('o', (sg, z)) for sg in range(4) for z in range(2)]
    ops = []
    def waitfor(tag):
        last = max(i for i, t in enumerate(ops) if t == tag)
        a(f's_waitcnt vmcnt({len(ops) - 1 - last})')
    sB1, sB2, s2W = 96, 97, 98
    a(f's_lshl_b32 s{sB1}, s{sIDX}, 8\ns_lshr_b32 s{sT}, s{sW}, 1\ns_lshl_b32 s{sT}, s{sT}, 7\ns_add_u32 s{sB1}, s{sB1}, s{sT}')
    a(f's_lshl_b32 s{sB2}, s{sIDX}, 17\ns_lshl_b32 s{sT}, s{sW}, 8\ns_add_u32 s{sB2}, s{sB2}, s{sT}')
    a(f's_lshl_b32 s{s2W}, s{sW}, 1')
    def issue(ci):
        m, x = chunks[ci]
        a(f's_add_u32 m0, s{sG}, {(ci % 5) * 4096}')
        if m != 'o':
            a(f's_xor_b32 s{sT}, s{s2W}, {x[0]}\ns_lshl_b32 s{sT}, s{sT}, 19\ns_add_u32 s{sT}, s{sT}, s{sB1}')
            if x[1]: a(f's_add_u32 s{sT}, s{sT}, {32*8192}')
            rows = [2*(c>>1) + 16*(c&1) for c in range(4)]; rs = 8192; vs = vS1; sr = {'q': sQ, 'k': sK, 'v': sV}[m]
        else:
            sg, z = x
            a(f's_xor_b32 s{sT}, s{sW}, {sg}\ns_lshl_b32 s{sT}, s{sT}, 15\ns_add_u32 s{sT}, s{sT}, s{sB2}')
            if z: a(f's_add_u32 s{sT}, s{sT}, 128')
            rows = [8*(c>>1) + 2*(c&1) for c in range(4)]; rs = 1024; vs = vS2; sr = sO
        for c in range(4):
            if c: a(f's_add_u32 s{sT}, s{sT}, {((rows[c]-rows[c-1])*rs) & 0xffffffff:#x}\ns_add_u32 m0, m0, 1024')
            a(f'buffer_load_dwordx4 v{vs}, {S(sr)}, s{sT} offen lds'); ops.append(ci)
    for ci in range(cfg.depth): issue(ci)
    a(f'v_and_b32 v{T}, 15, v0\nv_lshrrev_b32 v{T+1}, 4, v0')
    a(f's_lshl_b32 s{sT}, s{sW}, 10')
    a(f'v_bfe_u32 v{T+3}, v0, 4, 1\nv_bfe_u32 v{T+4}, v0, 5, 1')
    a(f'v_bfe_u32 v{T+2}, v0, 2, 1\nv_xor_b32 v{T+2}, v{T+2}, v{T+3}\nv_lshlrev_b32 v{T+2}, 4, v{T+2}')
    a(f'v_lshl_add_u32 v{vKw}, v{T}, 5, v{T+2}\nv_lshl_add_u32 v{vKw}, v{T+4}, 9, v{vKw}\nv_add_u32 v{vKw}, s{sT}, v{vKw}')
    a(f'v_and_b32 v{T+2}, 1, v0\nv_xor_b32 v{T+2}, v{T+2}, v{T+3}\nv_lshlrev_b32 v{T+2}, 4, v{T+2}\nv_bfe_u32 v{T+5}, v0, 1, 1\nv_lshl_add_u32 v{T+2}, v{T+5}, 3, v{T+2}')
    a(f'v_lshrrev_b32 v{T+5}, 2, v0\nv_lshl_add_u32 v{vTX}, v{T+5}, 5, v{T+2}')
    a(f'v_and_b32 v{T+5}, 7, v0\nv_bfe_u32 v{T+6}, v0, 3, 1\nv_lshlrev_b32 v{vOw}, 7, v{T+1}\nv_lshl_add_u32 v{vOw}, v{T+5}, 4, v{vOw}\nv_lshl_add_u32 v{vOw}, v{T+6}, 3, v{vOw}')
    a(f's_lshl_b32 s{sT}, s{sW}, 9\nv_add_u32 v{vOw}, s{sT}, v{vOw}')
    if cfg.x4: a(f'v_and_b32 v{T+5}, 3, v0\nv_lshlrev_b32 v{T+5}, 1, v{T+5}\nv_bfe_u32 v{T+6}, v0, 2, 2')
    a(f'v_lshlrev_b32 v{vPst}, 3, v{T+5}\nv_lshl_add_u32 v{vPst}, v{T+3}, 11, v{vPst}\nv_lshl_add_u32 v{vPst}, v{T+6}, 12, v{vPst}\nv_lshl_add_u32 v{vPst}, v{T+4}, 14, v{vPst}')
    a(f's_lshl_b32 s{sT}, s{sW}, 16\ns_lshl_b32 s{sT2}, s{sIDX}, 6\ns_add_u32 s{sT}, s{sT}, s{sT2}\nv_add_u32 v{vPst}, s{sT}, v{vPst}')
    a(f'v_and_b32 v{T+6}, 3, v0\nv_lshlrev_b32 v{vMst}, 2, v{T+6}\nv_lshl_add_u32 v{vMst}, v{T+1}, 4, v{vMst}')
    a(f'v_mov_b32 v{vIdx}, 0x4444\nv_mov_b32 v{T+7}, 0xeeee\nv_cmp_lt_u32 vcc, 7, v{T}\nv_cndmask_b32 v{vIdx}, v{vIdx}, v{T+7}, vcc')
    a(f'v_bfe_u32 v{T+7}, v0, 2, 1\nv_lshlrev_b32 v{T+7}, 4, v{T+7}\nv_mov_b32 v{T+8}, 0x3f80\nv_lshlrev_b32 v{T+7}, v{T+7}, v{T+8}')
    a(f'v_cmp_eq_u32 vcc, 0, v{T+6}\nv_cndmask_b32 v{SEL}, 0, v{T+7}, vcc\nv_cndmask_b32 v{SEL+2}, 0, v{T+7}, vcc')
    a(f'v_cmp_eq_u32 vcc, 1, v{T+6}\nv_cndmask_b32 v{SEL+1}, 0, v{T+7}, vcc\nv_cndmask_b32 v{SEL+3}, 0, v{T+7}, vcc')
    a(f's_lshr_b32 s{sT}, s{sIDX}, 3\ns_lshl_b32 s{sT}, s{sT}, 5\ns_and_b32 s{sT2}, s{sIDX}, 4\ns_lshl_b32 s{sT2}, s{sT2}, 1\ns_add_u32 s{sT}, s{sT}, s{sT2}')
    a(f's_and_b32 s{sT2}, s{sIDX}, 3\ns_add_u32 s{sT}, s{sT}, s{sT2}\ns_and_b32 s{sT2}, s{sW}, 2\ns_lshl_b32 s{sT2}, s{sT2}, 3\ns_add_u32 s{sT}, s{sT}, s{sT2}')
    a(f's_and_b32 s{sT2}, s{sW}, 1\ns_lshl_b32 s{sT2}, s{sT2}, 2\ns_add_u32 s{sT}, s{sT}, s{sT2}')
    a(f's_lshl_b32 s{sRED}, s{sT}, 11\ns_add_u32 s{sRED}, s{sRED}, {PART:#x}\ns_lshl_b32 s{sMST}, s{sT}, 6\ns_add_u32 s{sMST}, s{sMST}, {MEMS:#x}')
    a(f's_mov_b32 s{sMEM}, {MEMS:#x}\ns_mov_b32 s{sPART}, {PART:#x}\ns_mov_b32 s{sPART2}, {PART+0x8000:#x}\ns_mov_b32 s{sP1}, {PART+0x2000:#x}\ns_mov_b32 s{sP3}, {PART+0xa000:#x}')
    srd(a, sR2, P(4), 8192)
    U = 80
    for i in range(4): a(f'v_mov_b32 v{U+4+i}, -1')
    if cfg.x4:
        a(f's_lshr_b32 s{sT2}, s{sT}, 3\ns_lshl_b32 s{sT2}, s{sT2}, 6\ns_bfe_u32 s{sS}, s{sT}, 0x20001\ns_lshl_b32 s{sS}, s{sS}, 3\ns_add_u32 s{sT2}, s{sT2}, s{sS}')
        a(f's_and_b32 s{sS}, s{sT}, 1\ns_lshl_b32 s{sS}, s{sS}, 12\ns_add_u32 s{sT2}, s{sT2}, s{sS}')
        a(f'v_lshlrev_b32 v{T+7}, 1, v{T+6}\nv_lshl_add_u32 v{T+7}, v{T+1}, 10, v{T+7}')
        a(f'buffer_load_ushort v{U}, v{T+7}, {S(sR2)}, s{sT2} offen\nbuffer_load_ushort v{U+1}, v{T+7}, {S(sR2)}, s{sT2} offen offset:32'); ops.extend(['m0', 'm0'])
        for so in (sPART, sPART2):
            a(f'buffer_store_dwordx4 v[{U+4}:{U+7}], v{vPst}, {S(sWS)}, s{so} offen sc1'); ops.append('i')
    else:
        a(f's_lshr_b32 s{sT2}, s{sT}, 1\ns_lshl_b32 s{sT2}, s{sT2}, 4\ns_and_b32 s{sS}, s{sT}, 1\ns_lshl_b32 s{sS}, s{sS}, 12\ns_add_u32 s{sT2}, s{sT2}, s{sS}')
        a(f'v_lshlrev_b32 v{T+7}, 2, v{T+6}\nv_lshl_add_u32 v{T+7}, v{T+1}, 10, v{T+7}')
        a(f'buffer_load_dword v{U}, v{T+7}, {S(sR2)}, s{sT2} offen'); ops.append('m0')
        for so in (sPART, sP1, sPART2, sP3):
            a(f'buffer_store_dwordx2 v[{U+4}:{U+5}], v{vPst}, {S(sWS)}, s{so} offen sc1'); ops.append('i')
    c = (128 ** -0.5) * math.log2(math.e)
    a(f's_mov_b32 s{sC}, {f2u(c):#x}\ns_mov_b32 s{sNC}, {f2u(-c):#x}')
    a(f's_lshl_b32 s{sT}, s{sIDX}, 21\ns_add_u32 s{sFL}, s{sT}, {FPR:#x}')
    a(f's_add_u32 s{sKX}, s{sT}, {KX:#x}\ns_add_u32 s{sVX}, s{sT}, {VX:#x}\ns_add_u32 s{sPUB}, s{sT}, {KVM+0x1000:#x}')
    a(f's_lshl_b32 s{sT}, s{sW}, 10\ns_add_u32 s{sPUB}, s{sPUB}, s{sT}')
    a(f's_mov_b32 s{sTAG}, 0')
    kxdma = [f's_mov_b32 m0, s{sM0K}',
             f'buffer_load_dwordx4 v{vMem}, {S(sWS)}, s{sKX} offen sc1 lds',
             f'buffer_load_dwordx4 v{vMem}, {S(sWS)}, s{sKX} offen offset:1024 sc1 lds',
             f's_add_u32 s{sKX}, s{sKX}, 0x8000']
    vxld = [f'buffer_load_dwordx4 v[{VXF}:{VXF+3}], v{vMem}, {S(sWS)}, s{sVX} offen sc1',
            f'buffer_load_dwordx4 v[{VXF+4}:{VXF+7}], v{vMem}, {S(sWS)}, s{sVX} offen offset:1024 sc1',
            f's_add_u32 s{sVX}, s{sVX}, 0x8000']
    def init_mem():
        waitfor('m0')
        if cfg.x4: a(f'v_lshl_or_b32 v{U}, v{U+1}, 16, v{U}')
        a(f'v_min_u32 v{U}, -2, v{U}')
        a(f's_mov_b32 exec_lo, 0x000f000f\ns_mov_b32 exec_hi, 0x000f000f')
        a(f'buffer_store_dword v{U}, v{vMst}, {S(sWS)}, s{sMST} offen sc1')
        a(f's_add_u32 s{sS}, s{sMST}, 0x2000\nbuffer_store_dword v{U+4}, v{vMst}, {S(sWS)}, s{sS} offen sc1')
        a('s_mov_b64 exec, -1'); ops.extend(['i', 'i'])
    def publish_id():
        waitfor('i'); a('s_barrier')
        a(f's_getreg_b32 s{sT}, hwreg(HW_REG_XCC_ID)\ns_and_b32 s{sT}, s{sT}, 0xf\ns_add_u32 s{sT}, s{sT}, 1')
        a(f's_lshl_b32 s{sT2}, s{sIDX}, 2\nv_mov_b32 v{U}, s{sT}\nv_mov_b32 v{U+1}, 0')
        a(f's_cmp_lg_u32 s{sW}, 0\ns_cbranch_scc1 L_c_noid')
        a(f's_mov_b64 exec, 1\nbuffer_store_dword v{U}, v{U+1}, {S(sDBG)}, s{sT2} offen offset:128 sc1\ns_mov_b64 exec, -1')
        a('L_c_noid:')
    idld = f'buffer_load_dword v{U+2}, v{U+3}, {S(sDBG)}, 0 offen sc1'
    def ask():
        a(f'v_lshrrev_b32 v{U+3}, 2, v{vL16}\nv_add_u32 v{U+3}, 128, v{U+3}\nv_mov_b32 v{U+10}, 1\ns_mov_b32 exec_lo, 0\nv_mov_b32 v{U+3}, 0\nv_mov_b32 v{U+10}, 192\ns_mov_b32 exec_lo, -1')
        a(idld); ops.append('q')
    def answer():
        waitfor('q')
        a(f's_mov_b32 s{sSPIN}, 0')
        a('L_c_ids:')
        a(f'v_cmp_gt_u32 vcc, v{U+10}, v{U+2}\ns_cbranch_vccz L_c_ids_ok')
        a(f's_sleep 2\n{idld}\ns_waitcnt vmcnt(0)')
        a(f's_add_u32 s{sSPIN}, s{sSPIN}, 1\ns_cmp_lt_u32 s{sSPIN}, 0x400000\ns_cbranch_scc1 L_c_ids\ns_branch L_end')
        a('L_c_ids_ok:')
        a(f'v_readfirstlane_b32 s{sT}, v{U+2}')
        a(f'v_cmp_ne_u32 s[80:81], s{sT}, v{U+2}')
        a(f'v_bfe_u32 v{U+9}, v{vL16}, 4, 2\nv_lshlrev_b32 v{U+9}, 7, v{U+9}\nbuffer_load_dword v{U+8}, v{U+9}, {S(sWS)}, s{sFL} offen sc1'); ops.append('p')
    def answer2():
        waitfor('p')
        progress(a, 'L_c_g0', U+8, 0)
        a(f'v_lshlrev_b32 v{U+3}, 2, v{vL16}\nbuffer_load_dword v{U+8}, v{U+3}, {S(sWS)}, s{sKX} offen sc1\nbuffer_load_dword v{U+8}, v{U+3}, {S(sWS)}, s{sKX} offen offset:4032 sc1')
        a(f'buffer_load_dword v{U+8}, v{U+3}, {S(sWS)}, s{sVX} offen sc1\nbuffer_load_dword v{U+8}, v{U+3}, {S(sWS)}, s{sVX} offen offset:4032 sc1')
        ops.extend(['x'] * 4)
    TMP = 112
    n = len(chunks)
    for ci in range(n):
        m, x = chunks[ci]
        waitfor(ci)
        if ci <= 24: a('s_barrier')
        if ci + cfg.depth < n: issue(ci + cfg.depth)
        if ci == 2: init_mem()
        if ci == 8: publish_id()
        if ci == n - 12: ask()
        if ci == n - 7: answer()
        if ci == n - 2: answer2()
        post = []
        if m != 'o':
            sg, ch = x
            parts = [((m, rho, sg ^ (2*pt)), vTQ + 2*pt + rho, [(2*ch + c1, c1*2048) for c1 in range(2)]) for pt in range(2) for rho in range(2)]
        else:
            parts = [(('o', 2*x[1]+t, x[0]), vTR, [(c, c*1024 + t*32) for c in range(4)]) for t in range(2)]
        for t, (b, va, cl) in enumerate(parts):
            k, i = LOC[b]
            if k == 'es': k, r0 = 'v', TMP + 4*t - 4*x[1]; post.append((i, TMP + 4*t))
            elif k == 'ls': k, r0 = 'v', 24 + 8*i
            else: r0 = i
            for c, off in cl:
                a(f'ds_read_b64_tr_b16 {k}[{r0+2*c}:{r0+2*c+1}], v{va} offset:{(ci%5)*4096 + off}')
        a('s_waitcnt lgkmcnt(0)')
        for i, r0 in post:
            va, off = ldsaddr(L_ES + i*8192 + x[1]*1024)
            a(f'ds_write_b128 v{va}, v[{r0}:{r0+3}] offset:{off}')
        if post: a('s_waitcnt lgkmcnt(0)')
    a('s_barrier')
    stamp(a, cfg, 1)
    if cfg.x_stop:
        stamp(a, cfg, 2); stamp(a, cfg, 3); return
    a(f's_lshl_b32 s{sT}, s{sW}, 11\ns_add_u32 s{sM0K}, s{sT}, {L_KX}')
    for l in kxdma: a(l)
    a(f's_mov_b32 s{sS}, 0\ns_mov_b32 s{sKXB}, {L_KX}\ns_xor_b32 m0, m0, {L_KX ^ (2*L_KX)}\ns_mov_b32 s15, -0x1000')
    for i in range(7):
        for h in range(2):
            va, off = ldsaddr(L_LS + i*8192 + h*1024)
            a(f'ds_write_b128 v{va}, v[{24+8*i+4*h}:{24+8*i+4*h+3}] offset:{off}')
    a('s_waitcnt vmcnt(2) lgkmcnt(0)')
    for l in stage_reads('es', range(10)): a(l)
    for i in range(16): a(f'v_mov_b32 v{AV+i}, 0')
    stamp(a, cfg, 2)
    if cfg.stamps: a('s_memtime s[92:93]')
    if cfg.prof:
        for i in range(12): a(f's_mov_b32 s{68+i}, 0')
    a('s_waitcnt lgkmcnt(0)')
    a('s_cmp_lg_u32 s80, 0\ns_cbranch_scc1 L_cs_step')
    a('s_branch L_cs_step' if cfg.force_slow else 's_branch L_cf_step')
    for pre, sc in (('L_cf', ''), ('L_cs', ' sc1')):
        step_loop(a, cfg, pre, sc, kxdma, vxld)
    a('L_c_last:')
    for l in stage_reads('es', range(10))[cfg.es3:]: a(l)
    a('L_c_lp:')
    for z in range(2): a(f'buffer_load_dwordx4 v[{F0+4*z}:{F0+4*z+3}], v{vMem}, {S(sWS)}, s{sMEM} offen offset:{1024*z} sc1')
    a(f's_waitcnt vmcnt(0)\nv_max_u32 v0, v{F0}, v{F0+4}\nv_cmp_eq_u32 vcc, -1, v0\ns_cbranch_vccz L_c_lok')
    a(f's_add_u32 s{sSPIN}, s{sSPIN}, 1\ns_cmp_lt_u32 s{sSPIN}, 0x400000\ns_cbranch_scc1 L_c_lp\ns_branch L_end')
    a('L_c_lok:')
    a(f'buffer_store_dwordx4 v[{PUB}:{PUB+3}], v{vL16}, {S(sWS)}, s{sPUB} offen sc1\ns_add_u32 s{sPUB}, s{sPUB}, 0x8000')
    for z in range(2): a(f'ds_write_b128 v{vMem}, v[{F0+4*z}:{F0+4*z+3}] offset:{L_MEM+1024*z}')
    for i in range(8): a(f'v_mov_b32_dpp v{F0R+i}, v{F0+i} row_ror:8 row_mask:0xf bank_mask:0xf')
    a('s_waitcnt lgkmcnt(2)')
    for b in PORD[:6]:
        if b[0] != 'q': a(smf(b))
    a('s_waitcnt lgkmcnt(0)\ns_barrier')
    for f, (sl, rho) in enumerate(OTH):
        if f % 2 == 0: a(f'v_xor_b32 v0, {(sl//2)*2048 + rho*128}, v{vMem}')
        a(f'ds_read_b128 v[{FO+4*f}:{FO+4*f+3}], v0 offset:{L_MEM + (sl%2)*1024}')
    for b in PORD[6:12]:
        if b[0] != 'q': a(smf(b))
    for f, (sl, rho) in enumerate(OTH):
        a(f's_waitcnt lgkmcnt({11-f})'); a(smf(('k', rho, sl))); a(smf(('v', rho, sl)))
    for l in KPK + [CANON] + VPK: a(l)
    a(f'buffer_store_dwordx4 v[{PUB}:{PUB+3}], v{vL16}, {S(sWS)}, s{sPUB} offen sc1')
    a('L_c_done:')
    stamp(a, cfg, 3)
    if cfg.stamps: a('s_memtime s[94:95]')
    if cfg.prof:
        a(f's_lshl_b32 s{sT}, s{sIDX}, 2\ns_add_u32 s{sT}, s{sT}, s{sW}\ns_lshl_b32 s{sT}, s{sT}, 6\ns_add_u32 s{sT}, s{sT}, {TS+0x8000:#x}\nv_mov_b32 v25, 0')
        for i in range(12):
            a(f'v_mov_b32 v24, s{68+i}\nbuffer_store_dword v24, v25, {S(sWS)}, s{sT} offen offset:{4*i}')

def step_loop(a, cfg, pre, sc, kxdma, vxld):
    cnt = [0]
    PAIRS = list(range(16, 42, 2)) + list(range(68, 80, 2))
    def ts(trace_only=False):
        if (cfg.prof and not trace_only) or cfg.trace:
            p = PAIRS[cnt[0]]
            a(f's_memtime s[{p}:{p+1}]'); cnt[0] += 1
    DPP = 'row_mask:0xf bank_mask:0xf'
    LO, HI = 'row_mask:0xf bank_mask:0x3', 'row_mask:0xf bank_mask:0xc'
    idn = 'quad_perm:[0,1,2,3]'
    ESR = stage_reads('es', range(10))
    def warm(n):
        for i in range(n): a('v_mov_b32 v0, v0\ns_nop 1')
    def count(i):
        if cfg.prof: a(f's_add_u32 s{78+i}, s{78+i}, 63')
    def bound(back):
        a(f's_add_u32 s{sSPIN}, s{sSPIN}, 1\ns_cmp_lt_u32 s{sSPIN}, 0x400000\ns_cbranch_scc1 {back}\ns_branch L_end')
    def ld2(r, va, so): return f'buffer_load_dwordx4 v[{r}:{r+3}], v{va}, {S(sWS)}, s{so} offen sc1\nbuffer_load_dwordx4 v[{r+4}:{r+7}], v{va}, {S(sWS)}, s{so} offen offset:1024 sc1'
    pmA, pmB = ld2(F0, vMem, sMEM), ld2(F0R, 0, sMEM)
    RLB = 96
    assert cfg.es3 <= 18
    ppA, ppB = ld2(RL, vL16, sRED), ld2(RLB, vL16, sRED)
    def chk_mem(r): return f'v_cmp_eq_u32 vcc, -1, v{r}\nv_cmp_eq_u32 s[50:51], -1, v{r+4}\ns_or_b64 vcc, vcc, s[50:51]'
    def red(r): return f'v_smfmac_f32_16x16x64_bf16 v[{RDA}:{RDA+3}], v[{SEL}:{SEL+3}], v[{r}:{r+7}], v{vIdx}'
    def chk_part(r): return f'{red(r)}\nv_bitop3_b32 v0, v{r}, v{r+4}, s{sTAG} bitop3:0x7e\nv_and_b32 v0, 1, v0\nv_cmp_ne_u32 vcc, 0, v0'
    zr = f's_nop 3\nv_mov_b64 v[{RDA}:{RDA+1}], 0\nv_mov_b64 v[{RDA+2}:{RDA+3}], 0'
    def mld(z, rho): return f'buffer_load_dwordx4 v[{(F0R if rho else F0)+4*z}:{(F0R if rho else F0)+4*z+3}], v{0 if rho else vMem}, {S(sWS)}, s{sMEM} offen offset:{1024*z} sc1'
    PM_ = [smf(b) for b in PORD]
    def masked(l):
        if cfg.mask: a('s_mov_b64 exec, vcc')
        a(l)
        if cfg.mask: a('s_mov_b64 exec, -1')
    def twin(z, src, dst):
        for i in range(4): a(f'v_mov_b32_dpp v{dst+4*z+i}, v{src+4*z+i} row_ror:8 {DPP}')
    def wr(z, rho): a(f'ds_write_b128 v{0 if rho else vMem}, v[{(F0R if rho else F0)+4*z}:{(F0R if rho else F0)+4*z+3}] offset:{L_MEM+1024*z}')
    a.label(f'{pre}_pm0_loop')
    masked(pmB); count(0)
    a('s_waitcnt vmcnt(2)'); a(chk_mem(F0)); a(f's_cbranch_scc1 {pre}_pm0_b')
    wr(0, 0); wr(1, 0)
    a(f's_branch {pre}_pm0_go')
    a.label(f'{pre}_pm0_retry')
    a('s_mov_b64 vcc, -1')
    a.label(f'{pre}_pm0_b')
    masked(pmA); count(0)
    a('s_waitcnt vmcnt(2)'); a(chk_mem(F0R)); a(f's_cbranch_scc0 {pre}_pm0_bok')
    bound(f'{pre}_pm0_loop')
    a.label(f'{pre}_pm0_bok')
    wr(0, 1); wr(1, 1); twin(0, F0R, F0); twin(1, F0R, F0)
    a.label(f'{pre}_pm0_go')
    for m in PM_[:3]: a(m)
    a(f's_branch {pre}_pm1_join')
    a.label(f'{pre}_pm1_retry')
    masked(mld(1, 0)); count(0)
    a(f's_waitcnt vmcnt(1)\nv_cmp_eq_u32 vcc, -1, v{F0R+4}\ns_cbranch_vccnz {pre}_pm1_again')
    wr(1, 1); twin(1, F0R, F0)
    a(f's_nop 0\ns_branch {pre}_pm1_join')
    a.label(f'{pre}_pm1_again')
    masked(mld(1, 1)); count(0); a(f's_waitcnt vmcnt(1)\nv_cmp_eq_u32 vcc, -1, v{F0+4}\ns_cbranch_vccnz {pre}_pm1_more')
    wr(1, 0); a(f's_branch {pre}_pm1_join')
    a.label(f'{pre}_pm1_more')
    bound(f'{pre}_pm1_retry')
    a.label(pre + '_pp_retry')
    masked(ppA); count(1); a(zr)
    if cfg.dual1:
        a('s_waitcnt vmcnt(2)'); a(chk_part(RLB))
        a(f's_cbranch_vccz {pre}_pp_join')
        masked(ppB); count(1); a(zr)
    bound(pre + '_pp')
    a.label(pre + '_special')
    a(f's_waitcnt vmcnt(0)\ns_cmp_eq_u32 s{sS}, 63\ns_cbranch_scc1 L_c_last')
    a(f'v_bfe_u32 v{F0+1}, v{vL16}, 4, 2\nv_lshlrev_b32 v{F0+1}, 7, v{F0+1}\nbuffer_load_dword v{F0}, v{F0+1}, {S(sWS)}, s{sFL} offen sc1\ns_add_u32 s{sT2}, s{sS}, 1\ns_waitcnt vmcnt(0)')
    progress(a, pre + '_gw', F0, f's{sT2}')

    a.label(pre + '_step')
    ts()
    a(f'v_xor_b32 v0, 128, v{vMem}')
    a(mld(0, 0))
    for _ in range(cfg.sp2): a('s_nop 3')
    a(mld(1, 0))
    a('s_waitcnt vmcnt(4)')
    for l in ESR[cfg.es3:]: a(l)
    for _ in range(cfg.sp3): a('s_nop 3')
    a(mld(0, 1)); a(mld(1, 1))
    warm(cfg.wm2)
    a(f's_waitcnt vmcnt(3) lgkmcnt(0)\nds_write_b128 v{vMem}, v[{F0}:{F0+3}] offset:{L_MEM}')
    a(f'v_cmp_eq_u32 vcc, -1, v{F0}\ns_cbranch_vccnz {pre}_pm0_retry')
    for m in PM_[:3]: a(m)
    a(f's_waitcnt vmcnt(2)\nds_write_b128 v{vMem}, v[{F0+4}:{F0+7}] offset:{L_MEM+1024}')
    a(f'v_cmp_eq_u32 vcc, -1, v{F0+4}\ns_cbranch_vccnz {pre}_pm1_retry')
    a.label(pre + '_pm1_join')
    ts()
    a(PM_[3]); a(f'v_xor_b32 v0, 2048, v{vMem}'); a(PM_[4]); a(PM_[5])
    a('s_waitcnt lgkmcnt(0)\ns_barrier')
    ts()
    R = []
    for f, (sl, rho) in enumerate(OTH):
        if f and f % 2 == 0: R.append(f'v_xor_b32 v0, {(sl//2)*2048 + rho*128}, v{vMem}')
        R.append(f'ds_read_b128 v[{FO+4*f}:{FO+4*f+3}], v0 offset:{L_MEM + (sl%2)*1024}')
    kxr = [f'v_add_u32 v0, s{sKXB}, v{vL16}'] + [f'ds_read_b128 v[{KXF+4*(2*u+T)}:{KXF+4*(2*u+T)+3}], v0 offset:{(T*4+u)*1024}' for u in range(4) for T in range(2)]
    pub = f'buffer_store_dwordx4 v[{PUB}:{PUB+3}], v{vL16}, {S(sWS)}, s{sPUB} offen sc1'
    side = ([] if cfg.x_nokv else [vxld[0], vxld[1], kxdma[1], kxdma[2]]) + ([] if cfg.x_nopub else [pub])
    fill = R + kxr
    for j, l in enumerate(side): fill.insert(cfg.vpos + j*cfg.vgap, l)
    for _ in range(2): a(fill.pop(0))
    a('s_waitcnt vmcnt(0)')
    issued = 2
    for i in range(6, len(PORD)):
        m, rho, sl = PORD[i]
        waited = False
        if sl >= 2:
            f = OTH.index((sl, rho))
            if m == 'q' and f % 2 == 0:
                assert f + 1 < issued
                a(f's_waitcnt lgkmcnt({min(15, issued - f - 2)})')
        a(PM_[i])
        if i == 11 or i == 23: ts()
        if fill:
            l = fill.pop(0); a(l)
            if l.startswith('ds_read'): issued += 1
    ts()
    HM = [smf(b) for b in HELD]
    h1, h2 = cfg.h1, cfg.h2
    assert not fill
    a(HM[0]); a('s_barrier'); a(HM[1]); a('s_nop 0'); assert cfg.bar2
    for m in HM[2:h1]: a(m); a('s_nop 0')
    a(f'v_cvt_pk_bf16_f32 v{AQ+3}, v{AQ+2}, v{AQ+3}\nv_cvt_pk_bf16_f32 v{AQ+2}, v{AQ}, v{AQ+1}')
    a(KPK[0]); a(KPK[1])
    a(f'ds_write_b128 v{vKw}, v[{AQ+2}:{AQ+5}] offset:{L_Q}')
    for m in HM[h1:h2]: a(m)
    a('s_waitcnt lgkmcnt(0)\ns_barrier')
    ts()
    qr = [f'ds_read_b64_tr_b16 v[{QKF+4*u+2*t}:{QKF+4*u+2*t+1}], v{vTX} offset:{L_Q + u*1024 + t*512}' for u in range(4) for t in range(2)]
    weave(a, HM[h2:], qr, 2, lead=2)
    SXM = []
    for u in range(4):
        for T in range(2):
            d = SX1 if T else SX
            cc = '0' if u == 0 else f'v[{d}:{d+3}]'
            kb = KXF + 4*(2*u+T)
            SXM.append(f'v_mfma_f32_16x16x32_bf16 v[{d}:{d+3}], v[{kb}:{kb+3}], v[{QKF+4*u}:{QKF+4*u+3}], {cc}')
    SMM = []
    for u in range(4):
        cc = '0' if u == 0 else f'v[{SM}:{SM+3}]'
        SMM.append(f'v_mfma_f32_16x16x32_bf16 v[{SM}:{SM+3}], v[{QKF+4*u}:{QKF+4*u+3}], v[{QKF+4*u}:{QKF+4*u+3}], {cc}')
    LSR = stage_reads('ls', range(7))
    X = SX
    C = [f'v_mov_b32_dpp v{X+i}, v{SX1+i} row_ror:8 {HI}' for i in range(4)]
    a('s_waitcnt lgkmcnt(4)'); a(SXM[0]); a(f'v_mov_b32 v{PM+1}, 0'); a(f'v_mov_b32 v{PM+2}, 0'); a(SXM[1]); a(LSR[0]); a(CANON)
    a(SXM[2]); a(LSR[1]); a(SXM[3]); a(LSR[2]); a('s_waitcnt lgkmcnt(3)')
    a(SXM[4]); a(LSR[3]); a(VPK[0]); a(SXM[5]); a(LSR[4]); a(VPK[1]); a(SXM[6]); a(LSR[5]); a(VPK[2]); a(SXM[7]); a(LSR[6]); a(VPK[3])
    a(SMM[0]); a(VPK[4]); a(SMM[1]); a(VPK[5]); a(SMM[2]); a(LSR[7]); a(C[0]); a(SMM[3])
    ts()
    t0 = SX1
    MX, NM, LX, Y = 38, 39, 36, SM + 2
    ZO = [f'v_mov_b64 v[{OUT+i}:{OUT+i+1}], 0' for i in range(0, 16, 2)]
    a(C[1]); a(C[2]); a(C[3]); a(LSR[8])
    a(f'v_max3_f32 v{MX}, v{X}, v{X+1}, v{X+2}')
    a(ZO[0]); a(ZO[1]); a(LSR[9])
    a(f'v_mov_b32_dpp v{SM}, v{SM+1} row_ror:8 {HI}\nv_mov_b32_dpp v{SM+2}, v{SM+3} row_ror:8 {HI}')
    a(ZO[3]); a(ZO[4])
    a(f'v_permlane32_swap_b32 v{SM}, v{SM+2}')
    a(f'v_max3_f32 v{MX}, v{MX}, v{X+3}, v{Y}')
    a(ZO[5]); a(ZO[6])
    a(f'v_max_f32_dpp v{t0}, v{MX}, v{MX} row_ror:8 {DPP}\nv_max_f32_dpp v{t0+1}, v{MX}, v{MX} row_ror:8 {DPP}')
    a(ZO[7]); a(f'v_and_b32 v0, -9, v{vOw}')
    a(f'v_permlane32_swap_b32 v{t0}, v{t0+1}')
    a(f'v_max_f32 v{t0+2}, v{t0}, v{t0+1}\nv_max_f32 v{t0+3}, v{t0}, v{t0+1}')
    OA = 120
    a(f'v_xor_b32 v{OA+1}, 512, v0\nv_xor_b32 v{OA+2}, 1024, v0')
    a(f'v_permlane16_swap_b32 v{t0+2}, v{t0+3}')
    a(f'v_max_f32 v{t0}, v{t0+2}, v{t0+3}\nv_mul_f32 v{NM}, s{sNC}, v{t0}')
    E = (X, X+1, X+2, X+3, Y)
    for r in E: a(f'v_fma_f32 v{r}, v{r}, s{sC}, v{NM}')
    for r in E: a(f'v_exp_f32 v{r}, v{r}')
    a(f'v_cvt_pk_bf16_f32 v{PF}, v{X}, v{X+1}\nv_cvt_pk_bf16_f32 v{PF+1}, v{X+2}, v{X+3}')
    a(f'v_mov_b32_dpp v{t0}, v{Y} row_ror:8 {DPP}')
    a(f'v_mov_b32_dpp v{PF+2}, v{PF} row_ror:8 {DPP}\nv_mov_b32_dpp v{PF+3}, v{PF+1} row_ror:8 {DPP}')
    a(f'v_cvt_pk_bf16_f32 v{PM}, v{Y}, v{t0}\nv_cvt_pk_bf16_f32 v{PM+3}, v{Y}, v{t0}')
    a(f's_waitcnt vmcnt({(0 if cfg.x_nopub else 1) + 2})')
    a(f'v_mfma_f32_16x16x32_bf16 v[{ACC0}:{ACC0+3}], v[{VXF}:{VXF+3}], v[{PF}:{PF+3}], 0')
    a(f'v_add_f32 v{LX}, v{X}, v{X+1}\nv_add_f32 v{NM}, v{X+2}, v{X+3}')
    a(f'v_mfma_f32_16x16x32_bf16 v[{ACC1}:{ACC1+3}], v[{VXF+4}:{VXF+7}], v[{PF}:{PF+3}], 0')
    a(f'v_add_f32 v{LX}, v{LX}, v{Y}\nv_add_f32 v{LX}, v{LX}, v{NM}')
    a(f'v_mfma_f32_16x16x16_bf16 v[{ACC0}:{ACC0+3}], v[{PUB+2}:{PUB+3}], v[{PM}:{PM+1}], v[{ACC0}:{ACC0+3}]')
    a(LSR[10])
    a(f'v_add_f32_dpp v{t0}, v{LX}, v{LX} row_ror:8 {DPP}')
    a(f'v_add_f32_dpp v{t0+1}, v{LX}, v{LX} row_ror:8 {DPP}')
    a(f'v_mfma_f32_16x16x16_bf16 v[{ACC1}:{ACC1+3}], v[{PUB+2}:{PUB+3}], v[{PM+2}:{PM+3}], v[{ACC1}:{ACC1+3}]')
    a(LSR[11])
    a(f'v_permlane32_swap_b32 v{t0}, v{t0+1}')
    a(f'v_add_f32 v{t0+2}, v{t0}, v{t0+1}\nv_add_f32 v{t0+3}, v{t0}, v{t0+1}')
    a(LSR[12]); a(LSR[13])
    a(f'v_permlane16_swap_b32 v{t0+2}, v{t0+3}')
    a(f'v_add_f32 v{t0+3}, v{t0+2}, v{t0+3}\nv_rcp_f32 v{t0+3}, v{t0+3}')
    for i in range(4): a(f'v_mov_b32_dpp v{ACC0+i}, v{ACC1+i} {idn} {HI}')
    for i in range(4): a(f'v_mul_f32 v{ACC0+i}, v{ACC0+i}, v{t0+3}')
    OP = PF
    a(f'v_cvt_pk_bf16_f32 v{OP}, v{ACC0}, v{ACC0+1}\nv_cvt_pk_bf16_f32 v{OP+1}, v{ACC0+2}, v{ACC0+3}')
    ts()
    a(f'ds_write_b64 v{vOw}, v[{OP}:{OP+1}] offset:{L_O}')
    def om(b): return f'v_smfmac_f32_16x16x64_bf16 v[{OUT+4*b[1]}:{OUT+4*b[1]+3}], v[{OF+4*b[2]}:{OF+4*b[2]+3}], {B8(b)}, v{vIdx}'
    a(f'v_mov_b64 v[{OF}:{OF+1}], v[{OP}:{OP+1}]\nv_mov_b64 v[{OF+2}:{OF+3}], v[{OP}:{OP+1}]')
    a(f'v_xor_b32 v{OA+3}, 1536, v0')
    for i in range(2):
        a(f'v_mov_b32_dpp v{OF+i}, v{OP+i} row_ror:8 {HI}\nv_mov_b32_dpp v{OF+2+i}, v{OP+i} row_ror:8 {LO}')
    O = [om(b) for b in OORD]
    a(ZO[2]); a('s_nop 0')
    for i in range(cfg.own): a(O[i])
    a('s_waitcnt lgkmcnt(0)\ns_barrier')
    for sg in range(1, 4): a(f'ds_read_b128 v[{OF+4*sg}:{OF+4*sg+3}], v{OA+sg} offset:{L_O}')
    ts()
    def fin(x):
        A0 = OUT + 4*x
        return [f'v_cvt_pk_bf16_f32 v{A0}, v{A0}, v{A0+1}', f'v_cvt_pk_bf16_f32 v{A0+1}, v{A0+2}, v{A0+3}', f'v_bfi_b32 v{A0}, v{vTM}, s{sTAG}, v{A0}',
                f'buffer_store_dwordx2 v[{A0}:{A0+1}], v{vPst}, {S(sWS)}, s{(sPART, sP1, sPART2, sP3)[x]} offen{sc}']
    f = [fin(x) for x in range(4)]
    seq = []
    seq += O[cfg.own:4]
    seq += ['s_waitcnt lgkmcnt(2)', O[4], 's_waitcnt lgkmcnt(1)', O[5], 's_waitcnt lgkmcnt(0)', O[6]]
    if cfg.x4:
        def g(z):
            A0 = OUT + 8*z
            return [f'v_cvt_pk_bf16_f32 v{A0}, v{A0}, v{A0+1}', f'v_cvt_pk_bf16_f32 v{A0+1}, v{A0+2}, v{A0+3}', f'v_and_or_b32 v{A0}, v{A0}, -2, s{sTAG}',
                    f'v_cvt_pk_bf16_f32 v{A0+2}, v{A0+4}, v{A0+5}', f'v_cvt_pk_bf16_f32 v{A0+3}, v{A0+6}, v{A0+7}',
                    f'buffer_store_dwordx4 v[{A0}:{A0+3}], v{vPst}, {S(sWS)}, s{sPART2 if z else sPART} offen{sc}']
        g0, g1 = g(0), g(1)
        seq += [O[7], 's_nop 0', O[8], 's_nop 0', O[9], 's_nop 0', O[10], 's_nop 0', O[11], g0[0], O[12], g0[1], g0[2], O[13], g0[3], g0[4], O[14], g0[5], O[15], 's_nop 0'] + g1[:3]
        f[3] = g1[3:]
    elif cfg.osch == 0:
        seq += [O[7], 's_nop 1', O[8], 's_nop 1', O[9], 's_nop 0', f[0][0], O[10], f[0][1], f[0][2], f[0][3], O[11], 's_nop 0', O[12], f[1][0], 's_nop 0']
        seq += [O[13], f[1][1], f[1][2], f[1][3], O[14], 's_nop 0', O[15]] + f[2]
    else:
        seq += [O[7], 's_nop 0', O[8], 's_nop 0', O[9], 's_nop 0', O[10], 's_nop 0', O[11], f[0][0], O[12], f[0][1], O[13], f[0][2], O[14], f[0][3], O[15]] + f[1] + f[2]
    seq += [f'v_mov_b64 v[{RDA}:{RDA+1}], 0', f'v_mov_b64 v[{RDA+2}:{RDA+3}], 0', f'v_mov_b32 v{RDA+4}, -1', f's_cmp_lt_u32 s{sW}, {cfg.wsplit}'] + f[3]
    for l in seq: a(l)
    ts()
    a(f's_mov_b32 s{sSPIN}, 0')
    for _ in range(cfg.pd0): a('s_nop 3')
    a(f's_cbranch_scc1 {pre}_e1')
    for l in ESR[:cfg.es1]: a(l)
    for _ in range(cfg.pd1): a('s_nop 3')
    a.label(pre + '_e1')
    if cfg.x_ack: a('s_waitcnt vmcnt(0)')
    ts(True)
    a(ppA)
    a(f's_cbranch_scc0 {pre}_e2')
    for l in ESR[:cfg.es1]: a(l)
    a.label(pre + '_e2')
    a(f's_xor_b32 s{sT}, s{sMST}, 0x2000\ns_xor_b32 s{sMEM}, s{sMEM}, 0x2000\ns_add_u32 s{sS}, s{sS}, 1\ns_add_u32 s{sPUB}, s{sPUB}, s15\ns_mov_b32 s15, 0x8000')
    a(kxdma[3]); a(vxld[2]); a(f's_xor_b32 m0, m0, {L_KX ^ (2*L_KX)}\ns_xor_b32 s{sKXB}, s{sKXB}, {L_KX ^ (2*L_KX)}')
    if cfg.dual1:
        for _ in range(cfg.sp1): a('s_nop 3')
        a(ppB)
    for l in ESR[cfg.es1:cfg.es2]: a(l)
    for i in range(0, 12, 2): a(f'v_mov_b64 v[{AV+i}:{AV+i+1}], 0')
    warm(cfg.wm1)
    a.label(pre + '_pp')
    a(f's_waitcnt vmcnt({2 if cfg.dual1 else 0})')
    a(chk_part(RL)); a(f's_cbranch_vccnz {pre}_pp_retry')
    a.label(pre + '_pp_join')
    ts()
    a(f's_xor_b32 s{sTAG}, s{sTAG}, 1')
    for r in (4, 8):
        for i in range(2): a(f'v_add_f32_dpp v{RDA+i}, v{RDA+i}, v{RDA+i} row_ror:{r} {DPP}')
    a(f's_mov_b32 exec_lo, 0x000f000f\ns_mov_b32 exec_hi, 0x000f000f')
    a(f'v_cvt_pk_bf16_f32 v{RDA}, v{RDA}, v{RDA+1}\nv_min_u32 v{RDA}, -2, v{RDA}')
    a(f'buffer_store_dword v{RDA}, v{vMst}, {S(sWS)}, s{sT} offen{sc}')
    a(f'buffer_store_dword v{RDA+4}, v{vMst}, {S(sWS)}, s{sMST} offen{sc}')
    a(f's_mov_b64 exec, -1\ns_mov_b32 s{sMST}, s{sT}')
    ts(True)
    for l in ESR[cfg.es2:cfg.es3]: a(l)
    if cfg.prof or cfg.trace: a('s_waitcnt lgkmcnt(0)')
    if cfg.prof:
        for i in range(10):
            a(f's_sub_u32 s{sT}, s{20+2*i}, s{18+2*i}\ns_add_u32 s{68+i}, s{68+i}, s{sT}')
    if cfg.trace:
        a(f's_sub_u32 s{sT2}, s{sS}, {cfg.trace}\ns_cmp_gt_u32 s{sT2}, 1\ns_cbranch_scc1 {pre}_notr')
        a(f's_lshl_b32 s{sT}, s{sIDX}, 2\ns_add_u32 s{sT}, s{sT}, s{sW}\ns_lshl_b32 s{sT}, s{sT}, 1\ns_add_u32 s{sT}, s{sT}, s{sT2}\ns_lshl_b32 s{sT}, s{sT}, 6\ns_add_u32 s{sT}, s{sT}, {TS+0x8000:#x}')
        for i in range(cnt[0]): a(f'v_writelane_b32 v0, s{PAIRS[i]}, {i}')
        a('v_writelane_b32 v0, s96, 14\nv_writelane_b32 v0, s98, 15')
        a(f'v_lshrrev_b32 v{MA01}, 2, v{vL16}\ns_mov_b64 exec, 0xffff\nbuffer_store_dword v0, v{MA01}, {S(sWS)}, s{sT} offen\ns_mov_b64 exec, -1')
        a.label(pre + '_notr')
        a(f's_cmp_lg_u32 s{sS}, {cfg.trace-4}\ns_cbranch_scc1 {pre}_nocal')
        a('s_memrealtime s[100:101]\ns_waitcnt lgkmcnt(0)')
        a.label(pre + '_cal')
        a(f's_memrealtime s[96:97]\ns_memtime s[98:99]\ns_waitcnt lgkmcnt(0)\ns_cmp_eq_u32 s96, s100\ns_cbranch_scc1 {pre}_cal')
        a.label(pre + '_nocal')
    if cfg.bar2: a('s_barrier')
    for _ in range(cfg.pd2): a('s_nop 3')
    a(f's_cmp_lg_u32 s{sS}, s{sLIM}')
    a.flush()
    a(f's_cbranch_scc1 {pre}_step\ns_branch {pre}_special')
```

```python
import sys, os
sys.path.insert(0, os.path.dirname(__file__))
from asmlib import Asm, vr

NAME = 'concat_heads__sliding_local_dilated__memory_aug_recurrent_mem_tr__prompt'
QX, KX, VX, KVM, FPR = 0, 0x2000, 0x4000, 0x6000, 0xf000
OX = 0x4000000
PART, MEMS, FLG = 0x5000000, 0x5080000, 0x5100000
WS_BYTES = 0x10000000
LDS_BYTES = 163840
sWS, sDBG = 4, 8
sR1, sR2, sR3 = 12, 44, 48
sXCD, sIDX, sW = 42, 43, 3
P = lambda i: 16 + 2 * i

class Cfg:
    roles = 'pcao'
    stamps = False
    depth = 4
    osc = 0
    x4 = 0
    own = 3
    pubpos = 0
    pfd = 0
    x_ack = 0
    mask = 1
    wsplit = 0
    dbgts = 0
    dbgmap = {'c': [(0, 9), (2, 10), (3, 11)], 'w': [(0, 12), (3, 13), (5, 14)], 'o': [(3, 15)]}
    fsh = 7
    sl1 = 2
    sl2 = 1
    warm = 1
    cord = 1
    need0 = 192
    x_only = -1
    x_stop = 0
    dual1 = 1
    sp4 = 7
    swz = 0
    pd0 = 0
    sp3 = 4
    h1 = 3
    h2 = 8
    kdpos = 0
    hint = 0
    hpos = 8
    ppos = (16, 20, 30)
    bar2 = 1
    np1 = 1
    np2 = 1
    sp1 = 2
    sp2 = 4
    trace = 0
    clk = 0
    x_nokv = 0
    x_nopub = 0
    x_nopf = 1
    vpos = 2
    osch = 0
    vgap = 3
    x_pfplain = 0
    x_kvplain = 0
    wm1 = 0
    wm2 = 0
    es1 = 12
    es2 = 16
    es3 = 16
    pd1 = 0
    pd2 = 4
    prof = 0
    force_slow = 0
    x_nostore = 0
    x_nodma = 0
    x_plain = 0

def srd(a, d, base, size):
    a(f's_mov_b32 s{d}, s{base}\ns_and_b32 s{d+1}, s{base+1}, 0xffff\ns_mov_b32 s{d+2}, {size:#x}\ns_mov_b32 s{d+3}, 0x20000')

def S(d): return f's[{d}:{d+3}]'

TS = 0x5180000
def stamp(a, cfg, i):
    if cfg.stamps:
        a(f's_memrealtime s[{84+2*i}:{85+2*i}]')
def dump_stamps(a, cfg, n, role):
    if not cfg.stamps: return
    l = a.newlabel('L_ts')
    a(f's_waitcnt lgkmcnt(0)\ns_cmp_lg_u32 s{sW}, 0\ns_cbranch_scc1 {l}')
    a(f's_lshl_b32 s80, s2, 6\ns_add_u32 s80, s80, {TS:#x}\nv_mov_b32 v1, 0')
    for i in range(n):
        a(f'v_mov_b32 v2, s{84+2*i}\nbuffer_store_dword v2, v1, {S(sWS)}, s80 offen offset:{4*i}')
    if cfg.dbgts:
        a('s_mov_b64 exec, 1')
        a(f's_not_b32 s81, s84\nv_mov_b32 v2, s81\nbuffer_atomic_umax v2, v1, {S(sDBG)}, 0 offen offset:32')
        for slot, word in cfg.dbgmap[role]:
            a(f'v_mov_b32 v2, s{84+2*slot}\nbuffer_atomic_umax v2, v1, {S(sDBG)}, 0 offen offset:{4*word}')
    a.label(l)

def prologue(a):
    a('s_cmp_ge_u32 s2, 256\ns_cbranch_scc1 L_end')
    a('s_load_dwordx16 s[16:31], s[0:1], 0\ns_load_dwordx8 s[32:39], s[0:1], 64\ns_load_dwordx2 s[40:41], s[0:1], 96')
    a(f's_and_b32 s{sXCD}, s2, 7\ns_lshr_b32 s{sIDX}, s2, 3')
    a(f'v_lshrrev_b32 v1, 6, v0\nv_and_b32 v0, 63, v0\nv_readfirstlane_b32 s{sW}, v1')
    a('s_waitcnt lgkmcnt(0)')
    srd(a, sWS, P(12), WS_BYTES)
    srd(a, sDBG, P(11), 256)
    a(f's_cmp_eq_u32 s{sXCD}, 0\ns_cbranch_scc1 L_chain')
    a(f's_cmp_eq_u32 s{sXCD}, 1\ns_cbranch_scc1 L_apart')

def role_proj(a, cfg):
    vL16, vSRC, vTR, vX, vRD, vZ = 1, 2, 3, 4, 5, 6
    XB = 16
    ACC = 48
    PK = 64
    XV, RB, RD = 72, 80, 84
    sJ, sWH, sPAR, sT, sT2, sI, sXO, sSLOT, sRSLOT, sOUT, sG = 52, 53, 54, 55, 56, 57, 58, 59, 60, 61, 62
    stamp(a, cfg, 0)
    a(f's_sub_u32 s{sJ}, s{sXCD}, 2\ns_lshr_b32 s{sWH}, s{sJ}, 1\ns_and_b32 s{sPAR}, s{sJ}, 1')
    a(f's_cmp_eq_u32 s{sWH}, 0\ns_cselect_b32 s64, s{P(6)}, s{P(7)}\ns_cselect_b32 s65, s{P(6)+1}, s{P(7)+1}')
    a(f's_mov_b32 s{sOUT}, {VX:#x}\ns_cselect_b32 s{sOUT}, {KX:#x}, s{sOUT}')
    a(f's_cmp_eq_u32 s{sWH}, 2\ns_cselect_b32 s64, s{P(5)}, s64\ns_cselect_b32 s65, s{P(5)+1}, s65\ns_cselect_b32 s{sOUT}, {QX:#x}, s{sOUT}')
    srd(a, sR1, 64, 512 * 8192)
    srd(a, sR2, P(3), 2048 * 1024)
    a(f'v_lshlrev_b32 v{vL16}, 4, v0')
    a(f'v_mov_b32 v{vZ}, 0\ns_lshl_b32 s{sG}, s{sIDX}, 21\ns_lshl_b32 s63, s{sJ}, 7\ns_add_u32 s{sG}, s{sG}, s63\ns_add_u32 s{sG}, s{sG}, {FPR:#x}')
    a(f's_lshl_b32 s{sT2}, s{sJ}, 12\ns_add_u32 s{sT2}, s{sT2}, {FLG+4096:#x}\ns_lshl_b32 s63, s{sIDX}, {cfg.fsh}\ns_add_u32 s{sT2}, s{sT2}, s63')
    a(f's_cmp_lg_u32 s{sW}, 0\ns_cbranch_scc1 L_pz2')
    a(f'buffer_store_dword v{vZ}, v{vZ}, {S(sWS)}, s{sT2} offen sc1\nbuffer_store_dword v{vZ}, v{vZ}, {S(sWS)}, s{sG} offen sc1')
    a('L_pz2:')
    a(f'v_lshrrev_b32 v8, 4, v0\nv_lshlrev_b32 v8, 3, v8\nv_bfe_u32 v9, v0, 2, 2\nv_add_u32 v8, v8, v9\nv_lshlrev_b32 v8, 13, v8')
    a(f'v_and_b32 v9, 3, v0\nv_lshlrev_b32 v9, 4, v9\nv_add_u32 v{vSRC}, v8, v9')
    a(f'v_lshrrev_b32 v8, 2, v0\nv_lshlrev_b32 v8, 6, v8\nv_and_b32 v9, 3, v0\nv_lshlrev_b32 v9, 3, v9\nv_add_u32 v8, v8, v9')
    a(f's_lshl_b32 s{sT}, s{sW}, 15\nv_add_u32 v{vTR}, s{sT}, v8')
    a(f's_lshl_b32 s{sT}, s{sW}, 3\ns_and_b32 s{sT2}, s{sT}, 15\ns_lshl_b32 s{sT}, s{sT}, 10')
    for i in range(8):
        a(f's_add_u32 s63, s{sT2}, {i}\nv_xor_b32 v8, s63, v0\nv_lshlrev_b32 v8, 4, v8')
        a(f's_add_u32 s63, s{sT}, {(i//4)*4096}\nv_add_u32 v{XV+i}, s63, v8')
    for uu in range(4):
        a(f'v_lshrrev_b32 v8, 4, v0\nv_or_b32 v8, {4*uu}, v8\nv_and_b32 v9, 15, v0\nv_xor_b32 v8, v8, v9\nv_lshlrev_b32 v8, 4, v8')
        a(f'v_lshlrev_b32 v9, 10, v9\nv_add_u32 v{RB+uu}, v8, v9')
    a(f's_lshl_b32 s{sT}, s{sIDX}, 8\ns_lshl_b32 s{sT2}, s{sW}, 6\ns_add_u32 s{sT}, s{sT}, s{sT2}')
    a(f's_lshl_b32 m0, s{sW}, 15')
    for ch in range(8):
        for c in range(4):
            a(f'buffer_load_dwordx4 v{vSRC}, {S(sR1)}, s{sT} offen lds')
            step = (4 if c % 2 == 0 else 28) * 8192
            a(f's_add_u32 s{sT}, s{sT}, {step:#x}\ns_add_u32 m0, m0, 1024')
    def xdma(only=None):
        for i in range(8):
            if only is not None and i != only: continue
            if i == 0: a(f's_lshl_b32 s{sT}, s{sW}, 13\ns_add_u32 m0, s{sSLOT}, s{sT}')
            a(f'buffer_load_dwordx4 v{XV+i}, {S(sR2)}, s{sXO} offen offset:{1024*(i%4)} lds')
            if i == 3: a('s_add_u32 m0, m0, 4096')
        if only is not None and only != 7: return
        a(f's_add_u32 s{sXO}, s{sXO}, 0x10000\ns_min_u32 s{sXO}, s{sXO}, 0x1f8000\ns_add_u32 s{sSLOT}, s{sSLOT}, 0x8000')
        a(f's_cmp_eq_u32 s{sSLOT}, 0x28000\ns_cselect_b32 s{sSLOT}, 0, s{sSLOT}')
    a(f's_lshl_b32 s{sXO}, s{sPAR}, 15\ns_mov_b32 s{sSLOT}, 0x20000\ns_mov_b32 s{sRSLOT}, 0x20000')
    xdma()
    for i in range(4): a(f'v_mov_b32 v{PK+i}, -1')
    a(f's_lshl_b32 s{sT}, s{sIDX}, 6\ns_add_u32 s{sT}, s{sT}, s{sJ}\ns_lshl_b32 s{sT}, s{sT}, 15\ns_lshl_b32 s{sT2}, s{sW}, 10\ns_add_u32 s{sT}, s{sT}, s{sT2}\ns_add_u32 s{sT}, s{sT}, {KVM:#x}')
    for r in range(11):
        if r == 10: a(f's_cmp_ge_u32 s{sJ}, 4\ns_cselect_b32 s{sT2}, 0x30000, 0\ns_sub_u32 s{sT}, s{sT}, s{sT2}')
        a(f'buffer_store_dwordx4 v[{PK}:{PK+3}], v{vL16}, {S(sWS)}, s{sT} offen sc1\ns_add_u32 s{sT}, s{sT}, 0x30000')
    for ch in range(8):
        a(f's_waitcnt vmcnt({19 + 4*(7-ch)})')
        for c in range(4):
            for t in range(2):
                u = 2 * ch + (c >> 1)
                r = (t * 16 + u) * 4 + 2 * (c & 1)
                a(f'ds_read_b64_tr_b16 a[{r}:{r+1}], v{vTR} offset:{ch*4096 + c*1024 + t*32}')
    a('s_waitcnt lgkmcnt(0)\ns_barrier')
    stamp(a, cfg, 1)
    xdma(); xdma()
    a(f's_lshl_b32 s{sT}, s{sPAR}, 15\ns_add_u32 s{sOUT}, s{sOUT}, s{sT}\ns_lshl_b32 s{sT}, s{sIDX}, 21\ns_add_u32 s{sOUT}, s{sOUT}, s{sT}')
    a(f's_cmp_eq_u32 s{sWH}, 1\ns_cselect_b32 s{sT2}, 11, 10\ns_lshl_b32 s{sT}, s{sW}, s{sT2}\ns_add_u32 s{sOUT}, s{sOUT}, s{sT}')
    a(f's_mov_b32 s{sI}, 0\nv_mov_b32 v7, 1')
    a(f's_cmp_eq_u32 s{sWH}, 1\ns_cbranch_scc1 L_pv_loop')
    for isv in (0, 1):
        lab = 'L_pv_loop' if isv else 'L_pk_loop'
        a.label(lab)
        a(f's_cmp_lt_u32 s{sI}, 3\ns_cbranch_scc1 {lab}_w0')
        a(f's_waitcnt vmcnt(20)\ns_branch {lab}_w1')
        a(f'{lab}_w0:\ns_waitcnt vmcnt(16)')
        a(f'{lab}_w1:\ns_barrier')
        for uu in range(4): a(f'v_add_u32 v{RD+uu}, s{sRSLOT}, v{RB+uu}')
        def rd(u):
            for T in range(2):
                b = XB + ((u % 4) * 2 + T) * 4
                a(f'ds_read_b128 v[{b}:{b+3}], v{RD+u%4} offset:{T*16384+(u//4)*256}')
        for u in range(4): rd(u)
        a(f's_and_b32 s{sT}, s{sI}, 1\ns_or_b32 s{sT}, s{sT}, s{sW}\ns_cmp_lg_u32 s{sT}, 0\ns_cbranch_scc1 {lab}_nf')
        a(f's_mov_b64 exec, 1\ns_cmp_lg_u32 s{sI}, 0\ns_cbranch_scc1 {lab}_nf2')
        a(f'buffer_atomic_add v7, v{vZ}, {S(sDBG)}, 0 offen sc1\ns_branch {lab}_nf3')
        a(f'{lab}_nf2:\ns_sub_u32 s{sT}, s{sI}, 2\nv_mov_b32 v8, s{sT}\nbuffer_store_dword v8, v{vZ}, {S(sWS)}, s{sG} offen sc1')
        a(f'{lab}_nf3:\ns_mov_b64 exec, -1')
        a(f'{lab}_nf:')
        for u in range(16):
            a(f's_waitcnt lgkmcnt({min(6, 2*(15-u))})')
            for T in range(2):
                for t in range(2):
                    d = ACC + (t * 2 + T) * 4
                    x = XB + ((u % 4) * 2 + T) * 4
                    w = (t * 16 + u) * 4
                    c = '0' if u == 0 else f'v[{d}:{d+3}]'
                    if isv: a(f'v_mfma_f32_16x16x32_bf16 v[{d}:{d+3}], v[{x}:{x+3}], a[{w}:{w+3}], {c}')
                    else:   a(f'v_mfma_f32_16x16x32_bf16 v[{d}:{d+3}], a[{w}:{w+3}], v[{x}:{x+3}], {c}')
            if u + 4 < 16: rd(u + 4)
            if u % 2 == 0 and not cfg.x_nodma: xdma(u // 2)
        a(f's_add_u32 s{sRSLOT}, s{sRSLOT}, 0x8000\ns_cmp_eq_u32 s{sRSLOT}, 0x28000\ns_cselect_b32 s{sRSLOT}, 0, s{sRSLOT}')
        for f in range(2):
            for hlf in range(2):
                d = ACC + ((f * 2 + (hlf ^ f)) if isv else (hlf * 2 + f)) * 4
                a(f'v_cvt_pk_bf16_f32 v{PK+f*4+hlf*2}, v{d}, v{d+1}\nv_cvt_pk_bf16_f32 v{PK+f*4+hlf*2+1}, v{d+2}, v{d+3}')
            off = f * 1024 if isv else 0
            if cfg.x_nostore: continue
            sc = '' if cfg.x_plain else ' sc1'
            if not isv and f == 1:
                a(f's_add_u32 s{sT}, s{sOUT}, 4096')
                a(f'buffer_store_dwordx4 v[{PK+4}:{PK+7}], v{vL16}, {S(sWS)}, s{sT} offen{sc}')
            else:
                a(f'buffer_store_dwordx4 v[{PK+f*4}:{PK+f*4+3}], v{vL16}, {S(sWS)}, s{sOUT} offen offset:{off}{sc}')
        a(f's_add_u32 s{sOUT}, s{sOUT}, 0x10000\ns_add_u32 s{sI}, s{sI}, 1\ns_cmp_lt_u32 s{sI}, 32')
        a.flush()
        a(f's_cbranch_scc1 {lab}')
        if not isv: a('s_branch L_p_done')
    a('L_p_done:')
    stamp(a, cfg, 2)
    a('s_waitcnt vmcnt(0)\ns_barrier')
    stamp(a, cfg, 3)
    a(f's_cmp_lg_u32 s{sW}, 0\ns_cbranch_scc1 L_p_fl')
    a(f'v_mov_b32 v8, 32\ns_mov_b64 exec, 1\nbuffer_store_dword v8, v{vZ}, {S(sWS)}, s{sG} offen sc1\ns_mov_b64 exec, -1')
    a('L_p_fl:')

def build(cfg):
    cfg.OS = ['', ' sc1', ' nt', ' sc0 sc1'][cfg.osc]
    a = Asm()
    hdr = open(os.path.join(os.path.dirname(__file__), '..', 'cdna_kernels', NAME + '.s.ref')).read().split('\n')
    for l in hdr:
        if l.startswith('; @launch'): break
        a.raw(l)
    a.raw(f'; @launch grid=(256,1,1) block=(256,1,1) lds={LDS_BYTES}')
    a.raw('.amdgcn_target "amdgcn-amd-amdhsa--gfx950"\n.text')
    a.raw(f'.globl {NAME}_kernel\n.p2align 8\n.type {NAME}_kernel,@function\n{NAME}_kernel:')
    prologue(a)
    if cfg.x_only >= 0: a(f's_cmp_gt_u32 s{sXCD}, {cfg.x_only}\ns_cbranch_scc1 L_end')
    role_proj(a, cfg)
    if 'a' in cfg.roles:
        from role_att import role_att
        role_att(a, cfg)
    dump_stamps(a, cfg, 8, 'w')
    a('s_endpgm')
    a.label('L_chain')
    if 'c' in cfg.roles:
        from role_chain import role_chain
        role_chain(a, cfg)
        dump_stamps(a, cfg, 8, 'c')
    a('s_endpgm')
    a.label('L_apart')
    if 'o' in cfg.roles:
        from role_apart import role_apart
        role_apart(a, cfg)
        dump_stamps(a, cfg, 8, 'o')
    a.label('L_end')
    a('s_endpgm')
    a.raw(f'''.section .rodata,"a"
.p2align 6
.amdhsa_kernel {NAME}_kernel
  .amdhsa_next_free_vgpr 512
  .amdhsa_next_free_sgpr 102
  .amdhsa_accum_offset 256
  .amdhsa_group_segment_fixed_size 0
  .amdhsa_kernarg_size 104
  .amdhsa_user_sgpr_count 2
  .amdhsa_user_sgpr_kernarg_segment_ptr 1
  .amdhsa_system_sgpr_workgroup_id_x 1
.end_amdhsa_kernel''')
    return a.text()

if __name__ == '__main__':
    sys.modules['gen'] = sys.modules['__main__']
    cfg = Cfg()
    out = None
    for arg in sys.argv[1:]:
        if arg.startswith('roles='): cfg.roles = arg[6:]
        elif arg.startswith('out='): out = arg[4:]
        elif '=' in arg:
            k, v = arg.split('='); setattr(cfg, k, tuple(int(x) for x in v.split(',')) if k == 'ppos' else int(v))
    out = out or os.path.join(os.path.dirname(__file__), '..', 'cdna_kernels', NAME + '.s')
    open(out, 'w').write(build(cfg))
    print('wrote', out)
```

```python
from gen import *
import struct, math

def f2u(x): return struct.unpack('<I', struct.pack('<f', x))[0]

L_MEM, L_KX, L_Q, L_O, L_LS, L_ES = 0, 8192, 0, 4096, 24576, 81920
vL16, vTX, vMem, vMH1, vMH2, vKw, vTM, vOw, vPst, vMst, vIdx, SEL, VXF = 1, 2, 3, 4, 5, 6, 7, 8, 9, 10, 11, 12, 16
ES0 = 24
F0, F0R = 104, 112
AV, AK, AQ, PUB = 120, 124, 128, 132
FO = 24
KXF, QKF = 72, 104
SX, SX1, SM = 24, 28, 32
ACC0, ACC1, PF, PM = 96, 100, 124, 128
OUT, OF, LS0 = 104, 24, 40
RL, RDA = 112, 104
MA01 = F0
L_DUM = 23552
sT, sT2, sS, sMEM, sPART, sPART2, sRED, sMST, sKX, sVX, sPUB, sFL, sC, sNC, sSPIN, sG = range(52, 68)
sTAG, sLIM, sM0K, sKXB = 82, 83, 13, 14
sP1, sP3 = 48, 49
HINT = MEMS + 0x8000

OORD = [('o',x,0) for x in range(4)] + [('o',x,sg) for x in range(4) for sg in range(1,4)]
OTH = [(2*pr + h, rho) for pr in range(1, 4) for rho in range(2) for h in range(2)]
PORD = [(m,rho,sl) for rho in range(2) for sl in range(2) for m in 'qkv']
PORD += [(m,rho,sl) for (sl,rho) in OTH for m in 'qk']
HELD = [('v',rho,sl) for (sl,rho) in OTH]
def blocks():
    loc = {}
    for i, b in enumerate(PORD[:10]): loc[b] = ('es', i)
    for i, b in enumerate(OORD[-7:]): loc[b] = ('ls', i)
    n = 0
    for b in PORD + HELD + OORD:
        if b in loc: continue
        loc[b] = ('a', 8*n) if n < 32 else ('v', 136 + 8*(n-32)); n += 1
    assert n == 47
    return loc
LOC = blocks()
def breg(b):
    k, i = LOC[b]
    if k == 'es': return 'v', ES0 + 8*i
    if k == 'ls': return 'v', LS0 + 8*i
    return k, i
def B8(b):
    k, i = breg(b); return f'{k}[{i}:{i+7}]'
def ldsaddr(off):
    if off < 65536 - 8192: return vMem, off
    if off < 65536: return vMem, off
    if off < 131072: return vMH1, off - 65536
    return vMH2, off - 131072
def ma(rho, slot):
    b = (F0R if rho else F0) + 4*slot if slot < 2 else FO + 4*OTH.index((slot, rho))
    return b
def smf(b):
    m, rho, slot = b
    acc = {'q': AQ, 'k': AK, 'v': AV}[m]
    f = ma(rho, slot)
    return f'v_smfmac_f32_16x16x64_bf16 v[{acc}:{acc+3}], v[{f}:{f+3}], {B8(b)}, v{vIdx}'
def stage_reads(kind, idxs):
    out = []
    for i in idxs:
        base, r0 = (L_ES, ES0) if kind == 'es' else (L_LS, LS0)
        for h in range(2):
            va, off = ldsaddr(base + i*8192 + h*1024)
            out.append(f'ds_read_b128 v[{r0+8*i+4*h}:{r0+8*i+4*h+3}], v{va} offset:{off}')
    return out
def weave(a, M, F, per=2, lead=0):
    F = list(F)
    for _ in range(lead):
        if F: a(F.pop(0))
    for m in M:
        a(m)
        for _ in range(per):
            if F: a(F.pop(0))
    for f in F: a(f)

def poll(a, name, issue, check, cnt=0):
    a(f's_mov_b32 s{sSPIN}, 0')
    a.label(name)
    for l in issue: a(l)
    a(f's_waitcnt vmcnt({cnt})')
    for l in check: a(l)
    a(f's_cbranch_vccz {name}_ok')
    a(f's_add_u32 s{sSPIN}, s{sSPIN}, 1\ns_cmp_lt_u32 s{sSPIN}, 0x200000\ns_cbranch_scc1 {name}')
    a('s_branch L_end')
    a.label(name + '_ok')

def wait_word(a, name, srd, soff, target, v=0, sleep=2):
    a(f's_mov_b32 s{sSPIN}, 0\nv_mov_b32 v{v+1}, 0')
    a.label(name)
    a(f'buffer_load_dword v{v}, v{v+1}, {S(srd)}, {soff} offen sc1\ns_waitcnt vmcnt(0)')
    a(f'v_readfirstlane_b32 s{sT2}, v{v}')
    a(f's_cmp_ge_u32 s{sT2}, {target}\ns_cbranch_scc1 {name}_ok')
    a(f's_sleep {sleep}\ns_add_u32 s{sSPIN}, s{sSPIN}, 1\ns_cmp_lt_u32 s{sSPIN}, 0x400000\ns_cbranch_scc1 {name}')
    a('s_branch L_end')
    a.label(name + '_ok')

VT = 36
KPK = [f'v_cvt_pk_bf16_f32 v{PUB}, v{AK}, v{AK+1}', f'v_cvt_pk_bf16_f32 v{PUB+1}, v{AK+2}, v{AK+3}']
CANON = f'v_min_u32 v{PUB}, -2, v{PUB}'

def progress(a, name, v, need_s):
    a(f's_mov_b32 s{sSPIN}, 0')
    a.label(name)
    a(f'v_readlane_b32 s{sT}, v{v}, 0\nv_readlane_b32 s{sLIM}, v{v}, 1\ns_min_u32 s{sT}, s{sT}, s{sLIM}')
    a(f'v_readlane_b32 s{sLIM}, v{v}, 2\ns_min_u32 s{sT}, s{sT}, s{sLIM}\nv_readlane_b32 s{sLIM}, v{v}, 3\ns_min_u32 s{sT}, s{sT}, s{sLIM}\ns_lshl_b32 s{sT}, s{sT}, 1')
    a(f's_cmp_gt_u32 s{sT}, {need_s}\ns_cbranch_scc1 {name}_ok')
    a(f's_sleep 2\nbuffer_load_dword v{v}, v{v+1}, {S(sWS)}, s{sFL} offen sc1\ns_waitcnt vmcnt(0)')
    a(f's_add_u32 s{sSPIN}, s{sSPIN}, 1\ns_cmp_lt_u32 s{sSPIN}, 0x400000\ns_cbranch_scc1 {name}\ns_branch L_end')
    a.label(name + '_ok')
    a(f's_and_b32 s{sLIM}, s{sT}, -8\ns_cmp_gt_u32 s{sLIM}, {need_s}\ns_cselect_b32 s{sLIM}, s{sLIM}, s{sT}')
    a(f's_cmp_lt_u32 {need_s}, 16\ns_cselect_b32 s{sSPIN}, 16, 64\ns_cmp_eq_u32 s{sT}, 64\ns_cselect_b32 s{sSPIN}, 64, s{sSPIN}\ns_min_u32 s{sLIM}, s{sLIM}, s{sSPIN}')
    a(f's_sub_u32 s{sLIM}, s{sLIM}, 1\ns_mov_b32 s{sSPIN}, 0')
VPK = [f'v_cvt_pk_bf16_f32 v{PUB+2}, v{AV}, v{AV+1}', f'v_cvt_pk_bf16_f32 v{VT}, v{AV+2}, v{AV+3}',
       f'v_cvt_pk_bf16_f32 v{VT+1}, v{AV+1}, v{AV}', f'v_cvt_pk_bf16_f32 v{PUB+3}, v{AV+3}, v{AV+2}',
       f'v_permlane32_swap_b32 v{PUB+2}, v{VT}', f'v_permlane32_swap_b32 v{VT+1}, v{PUB+3}']
RARE_AT = 34

def role_chain(a, cfg):
    a.comment('---- chain head')
    stamp(a, cfg, 0)
    assert not cfg.x4
    vS1, vS2, vTR, vTQ = 96, 97, 98, 100
    T = 110
    a(f'v_lshlrev_b32 v{vL16}, 4, v0\nv_and_b32 v{vTM}, 1, v0\nv_xor_b32 v{vTM}, 1, v{vTM}')
    a(f's_lshl_b32 s{sT}, s{sW}, 11\nv_add_u32 v{vMem}, s{sT}, v{vL16}')
    a(f'v_add_u32 v{vMH1}, 0x10000, v{vMem}\nv_add_u32 v{vMH2}, 0x20000, v{vMem}')
    a(f'v_and_b32 v{T}, 7, v0\nv_lshlrev_b32 v{T}, 4, v{T}')
    a(f'v_bfe_u32 v{T+1}, v0, 5, 1\nv_bfe_u32 v{T+2}, v0, 4, 1\nv_bfe_u32 v{T+3}, v0, 2, 1\nv_bfe_u32 v{T+4}, v0, 3, 1')
    a(f'v_lshl_add_u32 v{vS1}, v{T+1}, 15, v{T}\nv_lshl_add_u32 v{vS1}, v{T+4}, 13, v{vS1}\nv_lshl_add_u32 v{vS1}, v{T+2}, 16, v{vS1}')
    a(f'v_lshl_add_u32 v{vS2}, v{T+2}, 14, v{T}\nv_lshl_add_u32 v{vS2}, v{T+1}, 12, v{vS2}\nv_lshl_add_u32 v{vS2}, v{T+4}, 10, v{vS2}')
    a(f'v_and_b32 v{T+5}, 3, v0\nv_lshlrev_b32 v{T+5}, 3, v{T+5}\nv_lshrrev_b32 v{T+6}, 4, v0')
    a(f's_mul_i32 s{sG}, s{sW}, 20480')
    a(f'v_lshl_add_u32 v{vTR}, v{T+6}, 8, v{T+5}\nv_lshl_add_u32 v{vTR}, v{T+3}, 7, v{vTR}\nv_lshl_add_u32 v{vTR}, v{T+4}, 6, v{vTR}\nv_add_u32 v{vTR}, s{sG}, v{vTR}')
    a(f'v_lshrrev_b32 v{T+6}, 2, v0\nv_lshl_add_u32 v{T+5}, v{T+6}, 7, v{T+5}\nv_lshl_add_u32 v{T+5}, v{T+4}, 5, v{T+5}')
    a(f's_and_b32 s{sT}, s{sW}, 1\ns_lshl_b32 s{sT}, s{sT}, 6\nv_add_u32 v{T+5}, s{sT}, v{T+5}\nv_xor_b32 v{T+6}, 256, v{T+5}')
    a(f's_xor_b32 s{sT}, s{sW}, 1\ns_mul_i32 s{sT}, s{sT}, 20480')
    a(f'v_add_u32 v{vTQ}, s{sG}, v{T+5}\nv_add_u32 v{vTQ+1}, s{sG}, v{T+6}\nv_add_u32 v{vTQ+2}, s{sT}, v{T+5}\nv_add_u32 v{vTQ+3}, s{sT}, v{T+6}')
    args_ready(a)
    sQ, sK, sV, sO = 68, 72, 76, sR1
    srd(a, sQ, P(5), 512*8192); srd(a, sK, P(6), 512*8192); srd(a, sV, P(7), 512*8192); srd(a, sO, P(8), 4096*1024)
    chunks = [(m, (sg, ch)) for m in 'qkv' for sg in (0, 1, 4, 5) for ch in range(2)] + [('o', (sg, z)) for sg in range(4) for z in range(2)]
    ops = []
    def waitfor(tag):
        last = max(i for i, t in enumerate(ops) if t == tag)
        a(f's_waitcnt vmcnt({len(ops) - 1 - last})')
    sB1, sB2, s2W = 96, 97, 98
    a(f's_lshl_b32 s{sB1}, s{sIDX}, 8\ns_lshr_b32 s{sT}, s{sW}, 1\ns_lshl_b32 s{sT}, s{sT}, 7\ns_add_u32 s{sB1}, s{sB1}, s{sT}')
    a(f's_lshl_b32 s{sB2}, s{sIDX}, 17\ns_lshl_b32 s{sT}, s{sW}, 8\ns_add_u32 s{sB2}, s{sB2}, s{sT}')
    a(f's_lshl_b32 s{s2W}, s{sW}, 1')
    def issue(ci):
        m, x = chunks[ci]
        a(f's_add_u32 m0, s{sG}, {(ci % 5) * 4096}')
        if m != 'o':
            a(f's_xor_b32 s{sT}, s{s2W}, {x[0]}\ns_lshl_b32 s{sT}, s{sT}, 19\ns_add_u32 s{sT}, s{sT}, s{sB1}')
            if x[1]: a(f's_add_u32 s{sT}, s{sT}, {32*8192}')
            rows = [2*(c>>1) + 16*(c&1) for c in range(4)]; rs = 8192; vs = vS1; sr = {'q': sQ, 'k': sK, 'v': sV}[m]
        else:
            sg, z = x
            a(f's_xor_b32 s{sT}, s{sW}, {sg}\ns_lshl_b32 s{sT}, s{sT}, 15\ns_add_u32 s{sT}, s{sT}, s{sB2}')
            if z: a(f's_add_u32 s{sT}, s{sT}, 128')
            rows = [8*(c>>1) + 2*(c&1) for c in range(4)]; rs = 1024; vs = vS2; sr = sO
        for c in range(4):
            if c: a(f's_add_u32 s{sT}, s{sT}, {((rows[c]-rows[c-1])*rs) & 0xffffffff:#x}\ns_add_u32 m0, m0, 1024')
            a(f'buffer_load_dwordx4 v{vs}, {S(sr)}, s{sT} offen lds'); ops.append(ci)
    for ci in range(cfg.depth): issue(ci)
    a(f'v_and_b32 v{T}, 15, v0\nv_lshrrev_b32 v{T+1}, 4, v0')
    a(f's_lshl_b32 s{sT}, s{sW}, 10')
    a(f'v_bfe_u32 v{T+3}, v0, 4, 1\nv_bfe_u32 v{T+4}, v0, 5, 1')
    a(f'v_bfe_u32 v{T+2}, v0, 2, 1\nv_xor_b32 v{T+2}, v{T+2}, v{T+3}\nv_lshlrev_b32 v{T+2}, 4, v{T+2}')
    a(f'v_lshl_add_u32 v{vKw}, v{T}, 5, v{T+2}\nv_lshl_add_u32 v{vKw}, v{T+4}, 9, v{vKw}\nv_add_u32 v{vKw}, s{sT}, v{vKw}')
    a(f'v_and_b32 v{T+2}, 1, v0\nv_xor_b32 v{T+2}, v{T+2}, v{T+3}\nv_lshlrev_b32 v{T+2}, 4, v{T+2}\nv_bfe_u32 v{T+5}, v0, 1, 1\nv_lshl_add_u32 v{T+2}, v{T+5}, 3, v{T+2}')
    a(f'v_lshrrev_b32 v{T+5}, 2, v0\nv_lshl_add_u32 v{vTX}, v{T+5}, 5, v{T+2}')
    a(f'v_and_b32 v{T+5}, 7, v0\nv_bfe_u32 v{T+6}, v0, 3, 1\nv_lshlrev_b32 v{vOw}, 7, v{T+1}\nv_lshl_add_u32 v{vOw}, v{T+5}, 4, v{vOw}\nv_lshl_add_u32 v{vOw}, v{T+6}, 3, v{vOw}')
    a(f's_lshl_b32 s{sT}, s{sW}, 9\nv_add_u32 v{vOw}, s{sT}, v{vOw}')
    if cfg.x4: a(f'v_and_b32 v{T+5}, 3, v0\nv_lshlrev_b32 v{T+5}, 1, v{T+5}\nv_bfe_u32 v{T+6}, v0, 2, 2')
    a(f'v_lshlrev_b32 v{vPst}, 3, v{T+5}\nv_lshl_add_u32 v{vPst}, v{T+3}, 11, v{vPst}\nv_lshl_add_u32 v{vPst}, v{T+6}, 12, v{vPst}\nv_lshl_add_u32 v{vPst}, v{T+4}, 14, v{vPst}')
    a(f's_lshl_b32 s{sT}, s{sW}, 16\ns_lshl_b32 s{sT2}, s{sIDX}, 6\ns_add_u32 s{sT}, s{sT}, s{sT2}\nv_add_u32 v{vPst}, s{sT}, v{vPst}')
    a(f'v_and_b32 v{T+6}, 3, v0\nv_lshlrev_b32 v{vMst}, 2, v{T+6}\nv_lshl_add_u32 v{vMst}, v{T+1}, 4, v{vMst}')
    a(f'v_mov_b32 v{vIdx}, 0x4444\nv_mov_b32 v{T+7}, 0xeeee\nv_cmp_lt_u32 vcc, 7, v{T}\nv_cndmask_b32 v{vIdx}, v{vIdx}, v{T+7}, vcc')
    a(f'v_bfe_u32 v{T+7}, v0, 2, 1\nv_lshlrev_b32 v{T+7}, 4, v{T+7}\nv_mov_b32 v{T+8}, 0x3f80\nv_lshlrev_b32 v{T+7}, v{T+7}, v{T+8}')
    a(f'v_cmp_eq_u32 vcc, 0, v{T+6}\nv_cndmask_b32 v{SEL}, 0, v{T+7}, vcc\nv_cndmask_b32 v{SEL+2}, 0, v{T+7}, vcc')
    a(f'v_cmp_eq_u32 vcc, 1, v{T+6}\nv_cndmask_b32 v{SEL+1}, 0, v{T+7}, vcc\nv_cndmask_b32 v{SEL+3}, 0, v{T+7}, vcc')
    a(f's_lshr_b32 s{sT}, s{sIDX}, 3\ns_lshl_b32 s{sT}, s{sT}, 5\ns_and_b32 s{sT2}, s{sIDX}, 4\ns_lshl_b32 s{sT2}, s{sT2}, 1\ns_add_u32 s{sT}, s{sT}, s{sT2}')
    a(f's_and_b32 s{sT2}, s{sIDX}, 3\ns_add_u32 s{sT}, s{sT}, s{sT2}\ns_and_b32 s{sT2}, s{sW}, 2\ns_lshl_b32 s{sT2}, s{sT2}, 3\ns_add_u32 s{sT}, s{sT}, s{sT2}')
    a(f's_and_b32 s{sT2}, s{sW}, 1\ns_lshl_b32 s{sT2}, s{sT2}, 2\ns_add_u32 s{sT}, s{sT}, s{sT2}')
    a(f's_lshl_b32 s{sRED}, s{sT}, 11\ns_add_u32 s{sRED}, s{sRED}, {PART:#x}\ns_lshl_b32 s{sMST}, s{sT}, 6\ns_add_u32 s{sMST}, s{sMST}, {MEMS:#x}')
    a(f's_mov_b32 s{sMEM}, {MEMS:#x}\ns_mov_b32 s{sPART}, {PART:#x}\ns_mov_b32 s{sPART2}, {PART+0x8000:#x}\ns_mov_b32 s{sP1}, {PART+0x2000:#x}\ns_mov_b32 s{sP3}, {PART+0xa000:#x}')
    srd(a, sR2, P(4), 8192)
    U = 80
    for i in range(4): a(f'v_mov_b32 v{U+4+i}, -1')
    if cfg.x4:
        a(f's_lshr_b32 s{sT2}, s{sT}, 3\ns_lshl_b32 s{sT2}, s{sT2}, 6\ns_bfe_u32 s{sS}, s{sT}, 0x20001\ns_lshl_b32 s{sS}, s{sS}, 3\ns_add_u32 s{sT2}, s{sT2}, s{sS}')
        a(f's_and_b32 s{sS}, s{sT}, 1\ns_lshl_b32 s{sS}, s{sS}, 12\ns_add_u32 s{sT2}, s{sT2}, s{sS}')
        a(f'v_lshlrev_b32 v{T+7}, 1, v{T+6}\nv_lshl_add_u32 v{T+7}, v{T+1}, 10, v{T+7}')
        a(f'buffer_load_ushort v{U}, v{T+7}, {S(sR2)}, s{sT2} offen\nbuffer_load_ushort v{U+1}, v{T+7}, {S(sR2)}, s{sT2} offen offset:32'); ops.extend(['m0', 'm0'])
        for so in (sPART, sPART2):
            a(f'buffer_store_dwordx4 v[{U+4}:{U+7}], v{vPst}, {S(sWS)}, s{so} offen sc1'); ops.append('i')
    else:
        a(f's_lshr_b32 s{sT2}, s{sT}, 1\ns_lshl_b32 s{sT2}, s{sT2}, 4\ns_and_b32 s{sS}, s{sT}, 1\ns_lshl_b32 s{sS}, s{sS}, 12\ns_add_u32 s{sT2}, s{sT2}, s{sS}')
        a(f'v_lshlrev_b32 v{T+7}, 2, v{T+6}\nv_lshl_add_u32 v{T+7}, v{T+1}, 10, v{T+7}')
        a(f'buffer_load_dword v{U}, v{T+7}, {S(sR2)}, s{sT2} offen'); ops.append('m0')
        for so in (sPART, sP1, sPART2, sP3):
            a(f'buffer_store_dwordx2 v[{U+4}:{U+5}], v{vPst}, {S(sWS)}, s{so} offen sc1'); ops.append('i')
    c = (128 ** -0.5) * math.log2(math.e)
    a(f's_mov_b32 s{sC}, {f2u(c):#x}\ns_mov_b32 s{sNC}, {f2u(-c):#x}')
    a(f's_lshl_b32 s{sT}, s{sIDX}, 21\ns_add_u32 s{sFL}, s{sT}, {FPR:#x}')
    a(f's_add_u32 s{sKX}, s{sT}, {KX:#x}\ns_add_u32 s{sVX}, s{sT}, {VX:#x}\ns_add_u32 s{sPUB}, s{sT}, {KVM+0x1000:#x}')
    a(f's_lshl_b32 s{sT}, s{sW}, 10\ns_add_u32 s{sPUB}, s{sPUB}, s{sT}')
    a(f's_mov_b32 s{sTAG}, 0')
    kxdma = [f's_mov_b32 m0, s{sM0K}',
             f'buffer_load_dwordx4 v{vMem}, {S(sWS)}, s{sKX} offen sc1 lds',
             f'buffer_load_dwordx4 v{vMem}, {S(sWS)}, s{sKX} offen offset:1024 sc1 lds',
             f's_add_u32 s{sKX}, s{sKX}, 0x8000']
    vxld = [f'buffer_load_dwordx4 v[{VXF}:{VXF+3}], v{vMem}, {S(sWS)}, s{sVX} offen sc1',
            f'buffer_load_dwordx4 v[{VXF+4}:{VXF+7}], v{vMem}, {S(sWS)}, s{sVX} offen offset:1024 sc1',
            f's_add_u32 s{sVX}, s{sVX}, 0x8000']
    def init_mem():
        waitfor('m0')
        if cfg.x4: a(f'v_lshl_or_b32 v{U}, v{U+1}, 16, v{U}')
        a(f'v_min_u32 v{U}, -2, v{U}')
        a(f's_mov_b32 exec_lo, 0x000f000f\ns_mov_b32 exec_hi, 0x000f000f')
        a(f'buffer_store_dword v{U}, v{vMst}, {S(sWS)}, s{sMST} offen sc1')
        a(f's_add_u32 s{sS}, s{sMST}, 0x2000\nbuffer_store_dword v{U+4}, v{vMst}, {S(sWS)}, s{sS} offen sc1')
        a('s_mov_b64 exec, -1'); ops.extend(['i', 'i'])
    def publish_id():
        waitfor('i'); a('s_barrier')
        a(f's_getreg_b32 s{sT}, hwreg(HW_REG_XCC_ID)\ns_and_b32 s{sT}, s{sT}, 0xf\ns_add_u32 s{sT}, s{sT}, 1')
        a(f's_lshl_b32 s{sT2}, s{sIDX}, 2\nv_mov_b32 v{U}, s{sT}\nv_mov_b32 v{U+1}, 0')
        a(f's_cmp_lg_u32 s{sW}, 0\ns_cbranch_scc1 L_c_noid')
        a(f's_mov_b64 exec, 1\nbuffer_store_dword v{U}, v{U+1}, {S(sDBG)}, s{sT2} offen offset:128 sc1\ns_mov_b64 exec, -1')
        a('L_c_noid:')
    idld = f'buffer_load_dword v{U+2}, v{U+3}, {S(sDBG)}, 0 offen sc1'
    def ask():
        a(f'v_lshrrev_b32 v{U+3}, 2, v{vL16}\nv_add_u32 v{U+3}, 128, v{U+3}\nv_mov_b32 v{U+10}, 1\ns_mov_b32 exec_lo, 0\nv_mov_b32 v{U+3}, 0\nv_mov_b32 v{U+10}, 192\ns_mov_b32 exec_lo, -1')
        a(idld); ops.append('q')
    def answer():
        waitfor('q')
        a(f's_mov_b32 s{sSPIN}, 0')
        a('L_c_ids:')
        a(f'v_cmp_gt_u32 vcc, v{U+10}, v{U+2}\ns_cbranch_vccz L_c_ids_ok')
        a(f's_sleep 2\n{idld}\ns_waitcnt vmcnt(0)')
        a(f's_add_u32 s{sSPIN}, s{sSPIN}, 1\ns_cmp_lt_u32 s{sSPIN}, 0x400000\ns_cbranch_scc1 L_c_ids\ns_branch L_end')
        a('L_c_ids_ok:')
        a(f'v_readfirstlane_b32 s{sT}, v{U+2}')
        a(f'v_cmp_ne_u32 s[80:81], s{sT}, v{U+2}')
        a(f'v_bfe_u32 v{U+9}, v{vL16}, 4, 2\nv_lshlrev_b32 v{U+9}, 7, v{U+9}\nbuffer_load_dword v{U+8}, v{U+9}, {S(sWS)}, s{sFL} offen sc1'); ops.append('p')
        if cfg.touch:
            a(f's_xor_b32 s{sT}, s{sMEM}, 0x2000')
            for va, so in ((vL16, sRED), (vMem, sMEM), (vMem, sT)):
                for z in range(2):
                    a(f'buffer_load_dwordx4 v[92:95], v{va}, {S(sWS)}, s{so} offen offset:{1024*z} sc1'); ops.append('t')
    def answer2():
        waitfor('p')
        progress(a, 'L_c_g0', U+8, 0)
        a(f'v_lshlrev_b32 v{U+3}, 2, v{vL16}\nbuffer_load_dword v{U+8}, v{U+3}, {S(sWS)}, s{sKX} offen sc1\nbuffer_load_dword v{U+8}, v{U+3}, {S(sWS)}, s{sKX} offen offset:4032 sc1')
        a(f'buffer_load_dword v{U+8}, v{U+3}, {S(sWS)}, s{sVX} offen sc1\nbuffer_load_dword v{U+8}, v{U+3}, {S(sWS)}, s{sVX} offen offset:4032 sc1')
        a(f'v_mov_b32 v105, v{U+9}\nbuffer_load_dword v104, v105, {S(sWS)}, s{sFL} offen sc1')
        ops.extend(['x'] * 5)
    TMP = 112
    n = len(chunks)
    for ci in range(n):
        m, x = chunks[ci]
        waitfor(ci)
        if ci <= 24: a('s_barrier')
        if ci + cfg.depth < n: issue(ci + cfg.depth)
        if ci == 2: init_mem()
        if ci == 8: publish_id()
        if ci == n - 12: ask()
        if ci == n - 7: answer()
        if ci == n - 2: answer2()
        post = []
        if m != 'o':
            sg, ch = x
            parts = [((m, rho, sg ^ (2*pt)), vTQ + 2*pt + rho, [(2*ch + c1, c1*2048) for c1 in range(2)]) for pt in range(2) for rho in range(2)]
        else:
            parts = [(('o', 2*x[1]+t, x[0]), vTR, [(c, c*1024 + t*32) for c in range(4)]) for t in range(2)]
        for t, (b, va, cl) in enumerate(parts):
            k, i = LOC[b]
            if k == 'es': k, r0 = 'v', TMP + 4*t - 4*x[1]; post.append((i, TMP + 4*t))
            elif k == 'ls': k, r0 = 'v', 24 + 8*i
            else: r0 = i
            for c, off in cl:
                a(f'ds_read_b64_tr_b16 {k}[{r0+2*c}:{r0+2*c+1}], v{va} offset:{(ci%5)*4096 + off}')
        a('s_waitcnt lgkmcnt(0)')
        for i, r0 in post:
            va, off = ldsaddr(L_ES + i*8192 + x[1]*1024)
            a(f'ds_write_b128 v{va}, v[{r0}:{r0+3}] offset:{off}')
        if post: a('s_waitcnt lgkmcnt(0)')
    a('s_barrier')
    stamp(a, cfg, 1)
    if cfg.x_stop:
        stamp(a, cfg, 2); stamp(a, cfg, 3); return
    a(f's_lshl_b32 s{sT}, s{sW}, 11\ns_add_u32 s{sM0K}, s{sT}, {L_KX}')
    for l in kxdma: a(l)
    a('s_mov_b32 s46, 0x000f000f\ns_mov_b32 s47, 0x000f000f')
    a(f's_mov_b32 s{sS}, 0\ns_mov_b32 s{sKXB}, {L_KX}\ns_xor_b32 m0, m0, {L_KX ^ (2*L_KX)}\ns_mov_b32 s15, -0x1000')
    for i in range(7):
        for h in range(2):
            va, off = ldsaddr(L_LS + i*8192 + h*1024)
            a(f'ds_write_b128 v{va}, v[{24+8*i+4*h}:{24+8*i+4*h+3}] offset:{off}')
    a('s_waitcnt vmcnt(2) lgkmcnt(0)')
    progress(a, 'L_c_g1', 104, cfg.need1)
    for l in stage_reads('es', range(10)): a(l)
    for i in range(16): a(f'v_mov_b32 v{AV+i}, 0')
    stamp(a, cfg, 2)
    if cfg.stamps: a('s_memtime s[92:93]')
    if cfg.prof:
        for i in range(12): a(f's_mov_b32 s{68+i}, 0')
    a('s_waitcnt lgkmcnt(0)')
    a('s_cmp_lg_u32 s80, 0\ns_cbranch_scc1 L_cs_step')
    a('s_branch L_cs_step' if cfg.force_slow else 's_branch L_cf_step')
    for pre, sc in (('L_cf', ''), ('L_cs', ' sc1')):
        step_loop(a, cfg, pre, sc, kxdma, vxld)
    a('L_c_last:')
    for l in stage_reads('es', range(10))[cfg.es3:]: a(l)
    for i in range(0, 12, 2): a(f'v_mov_b64 v[{AV+i}:{AV+i+1}], 0')
    a('L_c_lp:')
    for z in range(2): a(f'buffer_load_dwordx4 v[{F0+4*z}:{F0+4*z+3}], v{vMem}, {S(sWS)}, s{sMEM} offen offset:{1024*z} sc1')
    a(f's_waitcnt vmcnt(0)\nv_max_u32 v0, v{F0}, v{F0+4}\nv_cmp_eq_u32 vcc, -1, v0\ns_cbranch_vccz L_c_lok')
    a(f's_add_u32 s{sSPIN}, s{sSPIN}, 1\ns_cmp_lt_u32 s{sSPIN}, 0x400000\ns_cbranch_scc1 L_c_lp\ns_branch L_end')
    a('L_c_lok:')
    a(f'buffer_store_dwordx4 v[{PUB}:{PUB+3}], v{vL16}, {S(sWS)}, s{sPUB} offen sc1\ns_add_u32 s{sPUB}, s{sPUB}, 0x8000')
    for z in range(2): a(f'ds_write_b128 v{vMem}, v[{F0+4*z}:{F0+4*z+3}] offset:{L_MEM+1024*z}')
    for i in range(8): a(f'v_mov_b32_dpp v{F0R+i}, v{F0+i} row_ror:8 row_mask:0xf bank_mask:0xf')
    a('s_waitcnt lgkmcnt(2)')
    for b in PORD[:6]:
        if b[0] != 'q': a(smf(b))
    a('s_waitcnt lgkmcnt(0)\ns_barrier')
    for f, (sl, rho) in enumerate(OTH):
        if f % 2 == 0: a(f'v_xor_b32 v0, {(sl//2)*2048 + rho*128}, v{vMem}')
        a(f'ds_read_b128 v[{FO+4*f}:{FO+4*f+3}], v0 offset:{L_MEM + (sl%2)*1024}')
    for b in PORD[6:12]:
        if b[0] != 'q': a(smf(b))
    for f, (sl, rho) in enumerate(OTH):
        a(f's_waitcnt lgkmcnt({11-f})'); a(smf(('k', rho, sl))); a(smf(('v', rho, sl)))
    for l in KPK + [CANON] + VPK: a(l)
    a(f'buffer_store_dwordx4 v[{PUB}:{PUB+3}], v{vL16}, {S(sWS)}, s{sPUB} offen sc1')
    a('L_c_done:')
    if cfg.steplog >= 0:
        a(f's_lshl_b32 s{sT}, s{sIDX}, 2\ns_add_u32 s{sT}, s{sT}, s{sW}\ns_lshl_b32 s{sT}, s{sT}, 7\ns_add_u32 s{sT}, s{sT}, {TS+0x8000:#x}\nv_mov_b32 v25, 0')
        for i in range(26):
            a(f'v_mov_b32 v24, s{16+i}\nbuffer_store_dword v24, v25, {S(sWS)}, s{sT} offen offset:{4*i}')
    stamp(a, cfg, 3)
    if cfg.stamps: a('s_memtime s[94:95]')
    if cfg.diag:
        a('s_waitcnt lgkmcnt(0)')
        if cfg.diag == 1: a('s_add_u32 s52, s84, 20000')
        if cfg.diag == 5: a('s_add_u32 s52, s100, 20000')
        if cfg.diag == 2: a('s_sub_u32 s52, s88, s84\ns_lshl_b32 s52, s52, 2\ns_add_u32 s52, s52, s84\ns_add_u32 s52, s52, 15000')
        if cfg.diag == 3: a('s_sub_u32 s52, s90, s84\ns_lshl_b32 s52, s52, 1\ns_add_u32 s52, s52, s84')
        if cfg.diag == 4: a('s_sub_u32 s52, s94, s92\ns_lshr_b32 s52, s52, 4\ns_add_u32 s52, s52, s84\ns_add_u32 s52, s52, 10000')
        a('L_diag:\ns_memrealtime s[54:55]\ns_waitcnt lgkmcnt(0)\ns_sub_u32 s54, s54, s52\ns_cmp_lt_i32 s54, 0\ns_cbranch_scc1 L_diag')
    if cfg.prof:
        a(f's_lshl_b32 s{sT}, s{sIDX}, 2\ns_add_u32 s{sT}, s{sT}, s{sW}\ns_lshl_b32 s{sT}, s{sT}, 6\ns_add_u32 s{sT}, s{sT}, {TS+0x8000:#x}\nv_mov_b32 v25, 0')
        for i in range(12):
            a(f'v_mov_b32 v24, s{68+i}\nbuffer_store_dword v24, v25, {S(sWS)}, s{sT} offen offset:{4*i}')

def step_loop(a, cfg, pre, sc, kxdma, vxld):
    cnt = [0]
    PAIRS = list(range(16, 42, 2)) + list(range(68, 80, 2))
    def ts(trace_only=False):
        if (cfg.prof and not trace_only) or cfg.trace:
            p = PAIRS[cnt[0]]
            a(f's_memtime s[{p}:{p+1}]'); cnt[0] += 1
    DPP = 'row_mask:0xf bank_mask:0xf'
    LO, HI = 'row_mask:0xf bank_mask:0x3', 'row_mask:0xf bank_mask:0xc'
    idn = 'quad_perm:[0,1,2,3]'
    ESR = stage_reads('es', range(10))
    def warm(n):
        for i in range(n): a(f'v_mov_b32 v{vIdx}, v{vIdx}\ns_nop 1')
    def count(i):
        if cfg.prof: a(f's_add_u32 s{78+i}, s{78+i}, 63')
    def bound(back):
        a(f's_add_u32 s{sSPIN}, s{sSPIN}, 1\ns_cmp_lt_u32 s{sSPIN}, 0x400000\ns_cbranch_scc1 {back}\ns_branch L_end')
    def ld2(r, va, so): return f'buffer_load_dwordx4 v[{r}:{r+3}], v{va}, {S(sWS)}, s{so} offen sc1\nbuffer_load_dwordx4 v[{r+4}:{r+7}], v{va}, {S(sWS)}, s{so} offen offset:1024 sc1'
    pmA, pmB = ld2(F0, vMem, sMEM), ld2(F0R, 0, sMEM)
    RLB = 96
    assert cfg.es5 <= 18
    ppA, ppB = ld2(RL, vL16, sRED), ld2(RLB, vL16, sRED)
    def chk_mem(r): return f'v_cmp_eq_u32 vcc, -1, v{r}\nv_cmp_eq_u32 s[50:51], -1, v{r+4}\ns_or_b64 vcc, vcc, s[50:51]'
    def red(r): return f'v_smfmac_f32_16x16x64_bf16 v[{RDA}:{RDA+3}], v[{SEL}:{SEL+3}], v[{r}:{r+7}], v{vIdx}'
    def chk_part(r): return f'{red(r)}\nv_bitop3_b32 v0, v{r}, v{r+4}, s{sTAG} bitop3:0x7e\nv_and_b32 v0, 1, v0\nv_cmp_ne_u32 vcc, 0, v0'
    zr = f's_nop 3\nv_mov_b64 v[{RDA}:{RDA+1}], 0\nv_mov_b64 v[{RDA+2}:{RDA+3}], 0'
    def mld(z, rho): return f'buffer_load_dwordx4 v[{(F0R if rho else F0)+4*z}:{(F0R if rho else F0)+4*z+3}], v{0 if rho else vMem}, {S(sWS)}, s{sMEM} offen offset:{1024*z} sc1'
    PM_ = [smf(b) for b in PORD]
    NS = cfg.spos
    def masked(l):
        if cfg.mask: a('s_mov_b64 exec, vcc')
        a(l)
        if cfg.mask: a('s_mov_b64 exec, -1')
    def twin(z, src, dst):
        for i in range(4): a(f'v_mov_b32_dpp v{dst+4*z+i}, v{src+4*z+i} row_ror:8 {DPP}')
    def wr(z, rho): a(f'ds_write_b128 v{0 if rho else vMem}, v[{(F0R if rho else F0)+4*z}:{(F0R if rho else F0)+4*z+3}] offset:{L_MEM+1024*z}')
    a.label(f'{pre}_pm0_loop')
    masked(pmB); count(0)
    a('s_waitcnt vmcnt(2)'); a(chk_mem(F0)); a(f's_cbranch_scc1 {pre}_pm0_b')
    wr(0, 0); wr(1, 0)
    if NS: a('s_waitcnt vmcnt(0)')
    a(f's_branch {pre}_pm0_go')
    a.label(f'{pre}_pm0_retry')
    if NS:
        a(f's_waitcnt vmcnt({NS})'); a(chk_mem(F0R)); a(f's_cbranch_scc0 {pre}_pm0_bok2')
    a('s_mov_b64 vcc, -1')
    a.label(f'{pre}_pm0_b')
    masked(pmA); count(0)
    a('s_waitcnt vmcnt(2)'); a(chk_mem(F0R)); a(f's_cbranch_scc0 {pre}_pm0_bok')
    bound(f'{pre}_pm0_loop')
    a.label(f'{pre}_pm0_bok')
    if NS: a('s_waitcnt vmcnt(0)')
    a.label(f'{pre}_pm0_bok2')
    wr(0, 1); wr(1, 1); twin(0, F0R, F0); twin(1, F0R, F0)
    a.label(f'{pre}_pm0_go')
    for m in PM_[:3]: a(m)
    a(f's_branch {pre}_pm1_join')
    a.label(f'{pre}_pm1_first')
    if NS:
        a(f's_waitcnt vmcnt({NS})\nv_cmp_eq_u32 s[50:51], -1, v{F0R+4}\ns_cmp_eq_u64 s[50:51], 0\ns_cbranch_scc1 {pre}_pm1_tw')
    a.label(f'{pre}_pm1_retry')
    masked(mld(1, 0)); count(0)
    a(f's_waitcnt vmcnt(1)\nv_cmp_eq_u32 vcc, -1, v{F0R+4}\ns_cbranch_vccnz {pre}_pm1_again')
    if NS: a('s_waitcnt vmcnt(0)')
    a.label(f'{pre}_pm1_tw')
    wr(1, 1); twin(1, F0R, F0)
    a(f's_nop 0\ns_branch {pre}_pm1_join')
    a.label(f'{pre}_pm1_again')
    masked(mld(1, 1)); count(0); a(f's_waitcnt vmcnt(1)\nv_cmp_eq_u32 vcc, -1, v{F0+4}\ns_cbranch_vccnz {pre}_pm1_more')
    wr(1, 0)
    if NS: a('s_waitcnt vmcnt(0)')
    a(f's_branch {pre}_pm1_join')
    a.label(f'{pre}_pm1_more')
    bound(f'{pre}_pm1_retry')
    a.label(pre + '_pp_retry')
    masked(ppA); count(1); a(zr)
    if cfg.dual1:
        a('s_waitcnt vmcnt(2)'); a(chk_part(RLB))
        a(f's_cbranch_vccz {pre}_pp_join')
        masked(ppB); count(1); a(zr)
    bound(pre + '_pp')
    a.label(pre + '_special')
    a(f's_waitcnt vmcnt(0)\ns_cmp_eq_u32 s{sS}, 63\ns_cbranch_scc1 L_c_last')
    a(f'v_bfe_u32 v{F0+1}, v{vL16}, 4, 2\nv_lshlrev_b32 v{F0+1}, 7, v{F0+1}\nbuffer_load_dword v{F0}, v{F0+1}, {S(sWS)}, s{sFL} offen sc1\ns_add_u32 s{sT2}, s{sS}, 1\ns_waitcnt vmcnt(0)')
    progress(a, pre + '_gw', F0, f's{sT2}')

    a.label(pre + '_step')
    ts()
    a(f'v_xor_b32 v0, 128, v{vMem}')
    ZA = [f'v_mov_b64 v[{AV+i}:{AV+i+1}], 0' for i in range(0, 12, 2)]
    for l in ESR[cfg.es3:cfg.es4]: a(l)
    if cfg.lw & 1: a('s_waitcnt lgkmcnt(0)')
    a(mld(0, 0))
    for l in ESR[cfg.es4:cfg.es5]: a(l)
    if cfg.lw & 2: a('s_waitcnt lgkmcnt(0)')
    if cfg.zpos == 1:
        for l in ZA: a(l)
    for _ in range(cfg.sp2): a('s_nop 3')
    a(mld(1, 0))
    a('s_waitcnt vmcnt(4)')
    for l in ESR[cfg.es5:]: a(l)
    if cfg.lw & 4: a('s_waitcnt lgkmcnt(0)')
    if cfg.zpos == 2:
        for l in ZA: a(l)
    for _ in range(cfg.sp3): a('s_nop 3')
    a(mld(0, 1)); a(mld(1, 1))
    for l in [vxld[0], vxld[1], kxdma[1], kxdma[2]][:NS]: a(l)
    warm(cfg.wm2)
    a(f's_waitcnt vmcnt({3+NS}) lgkmcnt({min(8, 20 - cfg.es3) if cfg.lazy else 0})\nds_write_b128 v{vMem}, v[{F0}:{F0+3}] offset:{L_MEM}')
    a(f'v_cmp_eq_u32 vcc, -1, v{F0}\ns_cbranch_vccnz {pre}_pm0_retry')
    for m in PM_[:3]: a(m)
    a(f's_waitcnt vmcnt({2+NS})\nds_write_b128 v{vMem}, v[{F0+4}:{F0+7}] offset:{L_MEM+1024}')
    a(f'v_cmp_eq_u32 vcc, -1, v{F0+4}\ns_cbranch_vccnz {pre}_pm1_first')
    a.label(pre + '_pm1_join')
    ts()
    a(PM_[3]); a(f'v_xor_b32 v0, 2048, v{vMem}'); a(PM_[4]); a(PM_[5])
    a('s_waitcnt lgkmcnt(0)\ns_barrier')
    ts()
    R = []
    for f, (sl, rho) in enumerate(OTH):
        if f and f % 2 == 0: R.append(f'v_xor_b32 v0, {(sl//2)*2048 + rho*128}, v{vMem}')
        R.append(f'ds_read_b128 v[{FO+4*f}:{FO+4*f+3}], v0 offset:{L_MEM + (sl%2)*1024}')
    kxr = [f'v_add_u32 v0, s{sKXB}, v{vL16}'] + [f'ds_read_b128 v[{KXF+4*(2*u+T)}:{KXF+4*(2*u+T)+3}], v0 offset:{(T*4+u)*1024}' for u in range(4) for T in range(2)]
    pub = f'buffer_store_dwordx4 v[{PUB}:{PUB+3}], v{vL16}, {S(sWS)}, s{sPUB} offen sc1'
    side = ([] if cfg.x_nokv else [vxld[0], vxld[1], kxdma[1], kxdma[2]][NS:]) + ([] if cfg.x_nopub else [pub])
    fill = R + kxr
    for j, l in enumerate(side): fill.insert(cfg.vpos + j*cfg.vgap, l)
    for _ in range(2): a(fill.pop(0))
    a(f's_waitcnt vmcnt({NS})')
    issued = 2
    for i in range(6, len(PORD)):
        m, rho, sl = PORD[i]
        waited = False
        if sl >= 2:
            f = OTH.index((sl, rho))
            if m == 'q' and f % 2 == 0:
                assert f + 1 < issued
                a(f's_waitcnt lgkmcnt({min(15, issued - f - 2)})')
        a(PM_[i])
        if i == 11 or i == 23: ts()
        if fill:
            l = fill.pop(0); a(l)
            if l.startswith('ds_read'): issued += 1
    ts()
    HM = [smf(b) for b in HELD]
    h1, h2 = cfg.h1, cfg.h2
    assert not fill
    a(HM[0]); a('s_barrier'); a(HM[1]); a('s_nop 0'); assert cfg.bar2
    for m in HM[2:h1]: a(m); a('s_nop 0')
    a(f'v_cvt_pk_bf16_f32 v{AQ+3}, v{AQ+2}, v{AQ+3}\nv_cvt_pk_bf16_f32 v{AQ+2}, v{AQ}, v{AQ+1}')
    a(KPK[0]); a(KPK[1])
    a(f'ds_write_b128 v{vKw}, v[{AQ+2}:{AQ+5}] offset:{L_Q}')
    for m in HM[h1:h2]: a(m)
    a('s_waitcnt lgkmcnt(0)\ns_barrier')
    ts()
    qr = [f'ds_read_b64_tr_b16 v[{QKF+4*u+2*t}:{QKF+4*u+2*t+1}], v{vTX} offset:{L_Q + u*1024 + t*512}' for u in range(4) for t in range(2)]
    weave(a, HM[h2:], qr, 2, lead=2)
    SXM = []
    for u in range(4):
        for T in range(2):
            d = SX1 if T else SX
            cc = '0' if u == 0 else f'v[{d}:{d+3}]'
            kb = KXF + 4*(2*u+T)
            SXM.append(f'v_mfma_f32_16x16x32_bf16 v[{d}:{d+3}], v[{kb}:{kb+3}], v[{QKF+4*u}:{QKF+4*u+3}], {cc}')
    SMM = []
    for u in range(4):
        cc = '0' if u == 0 else f'v[{SM}:{SM+3}]'
        SMM.append(f'v_mfma_f32_16x16x32_bf16 v[{SM}:{SM+3}], v[{QKF+4*u}:{QKF+4*u+3}], v[{QKF+4*u}:{QKF+4*u+3}], {cc}')
    LSR = stage_reads('ls', range(7))
    X = SX
    C = [f'v_mov_b32_dpp v{X+i}, v{SX1+i} row_ror:8 {HI}' for i in range(4)]
    a('s_waitcnt lgkmcnt(4)'); a(SXM[0]); a(f'v_mov_b32 v{PM+1}, 0'); a(f'v_mov_b32 v{PM+2}, 0'); a(SXM[1]); a(LSR[0]); a(CANON)
    a(SXM[2]); a(LSR[1]); a(SXM[3]); a(LSR[2]); a('s_waitcnt lgkmcnt(3)')
    a(SXM[4]); a(LSR[3]); a(VPK[0]); a(SXM[5]); a(LSR[4]); a(VPK[1]); a(SXM[6]); a(LSR[5]); a(VPK[2]); a(SXM[7]); a(LSR[6]); a(VPK[3])
    a(SMM[0]); a(VPK[4]); a(SMM[1]); a(VPK[5]); a(SMM[2]); a(LSR[7]); a(C[0]); a(SMM[3])
    ts()
    t0 = SX1
    MX, NM, LX, Y = 38, 39, 36, SM + 2
    ZO = [f'v_mov_b64 v[{OUT+i}:{OUT+i+1}], 0' for i in range(0, 16, 2)]
    a(C[1]); a(C[2]); a(C[3]); a(LSR[8])
    a(f'v_max3_f32 v{MX}, v{X}, v{X+1}, v{X+2}')
    a(ZO[0]); a(ZO[1]); a(LSR[9])
    a(f'v_mov_b32_dpp v{SM}, v{SM+1} row_ror:8 {HI}\nv_mov_b32_dpp v{SM+2}, v{SM+3} row_ror:8 {HI}')
    a(ZO[3]); a(ZO[4])
    a(f'v_permlane32_swap_b32 v{SM}, v{SM+2}')
    a(f'v_max3_f32 v{MX}, v{MX}, v{X+3}, v{Y}')
    a(ZO[5]); a(ZO[6])
    a(f'v_max_f32_dpp v{t0}, v{MX}, v{MX} row_ror:8 {DPP}\nv_max_f32_dpp v{t0+1}, v{MX}, v{MX} row_ror:8 {DPP}')
    a(ZO[7]); a(f'v_and_b32 v0, -9, v{vOw}')
    a(f'v_permlane32_swap_b32 v{t0}, v{t0+1}')
    a(f'v_max_f32 v{t0+2}, v{t0}, v{t0+1}\nv_max_f32 v{t0+3}, v{t0}, v{t0+1}')
    OA = 120
    a(f'v_xor_b32 v{OA+1}, 512, v0\nv_xor_b32 v{OA+2}, 1024, v0')
    a(f'v_permlane16_swap_b32 v{t0+2}, v{t0+3}')
    a(f'v_max_f32 v{t0}, v{t0+2}, v{t0+3}\nv_mul_f32 v{NM}, s{sNC}, v{t0}')
    E = (X, X+1, X+2, X+3, Y)
    for r in E: a(f'v_fma_f32 v{r}, v{r}, s{sC}, v{NM}')
    for r in E: a(f'v_exp_f32 v{r}, v{r}')
    a(f'v_cvt_pk_bf16_f32 v{PF}, v{X}, v{X+1}\nv_cvt_pk_bf16_f32 v{PF+1}, v{X+2}, v{X+3}')
    a(f'v_mov_b32_dpp v{t0}, v{Y} row_ror:8 {DPP}')
    a(f'v_mov_b32_dpp v{PF+2}, v{PF} row_ror:8 {DPP}\nv_mov_b32_dpp v{PF+3}, v{PF+1} row_ror:8 {DPP}')
    a(f'v_cvt_pk_bf16_f32 v{PM}, v{Y}, v{t0}\nv_cvt_pk_bf16_f32 v{PM+3}, v{Y}, v{t0}')
    a(f's_waitcnt vmcnt({(0 if cfg.x_nopub else 1) + 2})')
    a(f'v_mfma_f32_16x16x32_bf16 v[{ACC0}:{ACC0+3}], v[{VXF}:{VXF+3}], v[{PF}:{PF+3}], 0')
    a(f'v_add_f32 v{LX}, v{X}, v{X+1}\nv_add_f32 v{NM}, v{X+2}, v{X+3}')
    a(f'v_mfma_f32_16x16x32_bf16 v[{ACC1}:{ACC1+3}], v[{VXF+4}:{VXF+7}], v[{PF}:{PF+3}], 0')
    a(f'v_add_f32 v{LX}, v{LX}, v{Y}\nv_add_f32 v{LX}, v{LX}, v{NM}')
    a(f'v_mfma_f32_16x16x16_bf16 v[{ACC0}:{ACC0+3}], v[{PUB+2}:{PUB+3}], v[{PM}:{PM+1}], v[{ACC0}:{ACC0+3}]')
    a(LSR[10])
    a(f'v_add_f32_dpp v{t0}, v{LX}, v{LX} row_ror:8 {DPP}')
    a(f'v_add_f32_dpp v{t0+1}, v{LX}, v{LX} row_ror:8 {DPP}')
    a(f'v_mfma_f32_16x16x16_bf16 v[{ACC1}:{ACC1+3}], v[{PUB+2}:{PUB+3}], v[{PM+2}:{PM+3}], v[{ACC1}:{ACC1+3}]')
    a(LSR[11])
    a(f'v_permlane32_swap_b32 v{t0}, v{t0+1}')
    a(f'v_add_f32 v{t0+2}, v{t0}, v{t0+1}\nv_add_f32 v{t0+3}, v{t0}, v{t0+1}')
    a(LSR[12]); a(LSR[13])
    a(f'v_permlane16_swap_b32 v{t0+2}, v{t0+3}')
    a(f'v_add_f32 v{t0+3}, v{t0+2}, v{t0+3}\nv_rcp_f32 v{t0+3}, v{t0+3}')
    for i in range(4): a(f'v_mov_b32_dpp v{ACC0+i}, v{ACC1+i} {idn} {HI}')
    for i in range(4): a(f'v_mul_f32 v{ACC0+i}, v{ACC0+i}, v{t0+3}')
    OP = PF
    a(f'v_cvt_pk_bf16_f32 v{OP}, v{ACC0}, v{ACC0+1}\nv_cvt_pk_bf16_f32 v{OP+1}, v{ACC0+2}, v{ACC0+3}')
    ts()
    a(f'ds_write_b64 v{vOw}, v[{OP}:{OP+1}] offset:{L_O}')
    def om(b): return f'v_smfmac_f32_16x16x64_bf16 v[{OUT+4*b[1]}:{OUT+4*b[1]+3}], v[{OF+4*b[2]}:{OF+4*b[2]+3}], {B8(b)}, v{vIdx}'
    a(f'v_mov_b64 v[{OF}:{OF+1}], v[{OP}:{OP+1}]\nv_mov_b64 v[{OF+2}:{OF+3}], v[{OP}:{OP+1}]')
    a(f'v_xor_b32 v{OA+3}, 1536, v0')
    for i in range(2):
        a(f'v_mov_b32_dpp v{OF+i}, v{OP+i} row_ror:8 {HI}\nv_mov_b32_dpp v{OF+2+i}, v{OP+i} row_ror:8 {LO}')
    O = [om(b) for b in OORD]
    a(ZO[2]); a('s_nop 0')
    for i in range(cfg.own): a(O[i])
    a('s_waitcnt lgkmcnt(0)\ns_barrier')
    for sg in range(1, 4): a(f'ds_read_b128 v[{OF+4*sg}:{OF+4*sg+3}], v{OA+sg} offset:{L_O}')
    ts()
    def fin(x):
        A0 = OUT + 4*x
        return [f'v_cvt_pk_bf16_f32 v{A0}, v{A0}, v{A0+1}', f'v_cvt_pk_bf16_f32 v{A0+1}, v{A0+2}, v{A0+3}', f'v_bfi_b32 v{A0}, v{vTM}, s{sTAG}, v{A0}',
                f'buffer_store_dwordx2 v[{A0}:{A0+1}], v{vPst}, {S(sWS)}, s{(sPART, sP1, sPART2, sP3)[x]} offen{sc}']
    f = [fin(x) for x in range(4)]
    seq = []
    seq += O[cfg.own:4]
    seq += ['s_waitcnt lgkmcnt(2)', O[4], 's_waitcnt lgkmcnt(1)', O[5], 's_waitcnt lgkmcnt(0)', O[6]]
    if cfg.x4:
        def g(z):
            A0 = OUT + 8*z
            return [f'v_cvt_pk_bf16_f32 v{A0}, v{A0}, v{A0+1}', f'v_cvt_pk_bf16_f32 v{A0+1}, v{A0+2}, v{A0+3}', f'v_and_or_b32 v{A0}, v{A0}, -2, s{sTAG}',
                    f'v_cvt_pk_bf16_f32 v{A0+2}, v{A0+4}, v{A0+5}', f'v_cvt_pk_bf16_f32 v{A0+3}, v{A0+6}, v{A0+7}',
                    f'buffer_store_dwordx4 v[{A0}:{A0+3}], v{vPst}, {S(sWS)}, s{sPART2 if z else sPART} offen{sc}']
        g0, g1 = g(0), g(1)
        seq += [O[7], 's_nop 0', O[8], 's_nop 0', O[9], 's_nop 0', O[10], 's_nop 0', O[11], g0[0], O[12], g0[1], g0[2], O[13], g0[3], g0[4], O[14], g0[5], O[15], 's_nop 0'] + g1[:3]
        f[3] = g1[3:]
    elif cfg.osch == 0:
        seq += [O[7], 's_nop 1', O[8], 's_nop 1', O[9], 's_nop 0', f[0][0], O[10], f[0][1], f[0][2], f[0][3], O[11], 's_nop 0', O[12], f[1][0], 's_nop 0']
        seq += [O[13], f[1][1], f[1][2], f[1][3], O[14], 's_nop 0', O[15]] + f[2]
    else:
        seq += [O[7], 's_nop 0', O[8], 's_nop 0', O[9], 's_nop 0', O[10], 's_nop 0', O[11], f[0][0], O[12], f[0][1], O[13], f[0][2], O[14], f[0][3], O[15]] + f[1] + f[2]
    seq += [f'v_mov_b64 v[{RDA}:{RDA+1}], 0', f'v_mov_b64 v[{RDA+2}:{RDA+3}], 0', f'v_mov_b32 v{RDA+4}, -1', f's_cmp_lt_u32 s{sW}, {cfg.wsplit}' if cfg.wsplit else f's_mov_b32 s{sSPIN}, 0'] + f[3]
    for l in seq: a(l)
    ts()
    if cfg.wsplit: a(f's_mov_b32 s{sSPIN}, 0')
    for _ in range(cfg.pd0): a('s_nop 3')
    if cfg.wsplit: a(f's_cbranch_scc1 {pre}_e1')
    for l in ESR[:cfg.es1]: a(l)
    if cfg.lw & 16: a('s_waitcnt lgkmcnt(0)')
    for _ in range(cfg.pd1): a('s_nop 3')
    a.label(pre + '_e1')
    if cfg.x_ack: a('s_waitcnt vmcnt(0)')
    ts(True)
    a(ppA)
    if cfg.wsplit:
        a(f's_cbranch_scc0 {pre}_e2')
        for l in ESR[:cfg.es1]: a(l)
        a.label(pre + '_e2')
    a(f's_xor_b32 s{sT}, s{sMST}, 0x2000\ns_xor_b32 s{sMEM}, s{sMEM}, 0x2000\ns_add_u32 s{sS}, s{sS}, 1\ns_add_u32 s{sPUB}, s{sPUB}, s15\ns_mov_b32 s15, 0x8000')
    a(kxdma[3]); a(vxld[2]); a(f's_xor_b32 m0, m0, {L_KX ^ (2*L_KX)}\ns_xor_b32 s{sKXB}, s{sKXB}, {L_KX ^ (2*L_KX)}')
    for l in ESR[cfg.es1:cfg.es2]: a(l)
    if cfg.lw & 8: a('s_waitcnt lgkmcnt(0)')
    if cfg.dual1:
        for _ in range(cfg.sp1): a('s_nop 3')
        a(ppB)
    if cfg.zpos == 0:
        for l in ZA: a(l)
    warm(cfg.wm1)
    a.label(pre + '_pp')
    a(f's_waitcnt vmcnt({2 if cfg.dual1 else 0})')
    a(chk_part(RL)); a(f's_cbranch_vccnz {pre}_pp_retry')
    a.label(pre + '_pp_join')
    ts()
    a(f's_xor_b32 s{sTAG}, s{sTAG}, 1')
    for r in (4, 8):
        for i in range(2): a(f'v_add_f32_dpp v{RDA+i}, v{RDA+i}, v{RDA+i} row_ror:{r} {DPP}')
    if cfg.xm == 1: a(f's_mov_b32 exec_lo, 0x000f000f\ns_mov_b32 exec_hi, 0x000f000f')
    if cfg.xm == 2: a('s_mov_b64 exec, s[46:47]')
    a(f'v_cvt_pk_bf16_f32 v{RDA}, v{RDA}, v{RDA+1}\nv_min_u32 v{RDA}, -2, v{RDA}')
    a(f'buffer_store_dword v{RDA}, v{vMst}, {S(sWS)}, s{sT} offen{sc}')
    a(f'buffer_store_dword v{RDA+4}, v{vMst}, {S(sWS)}, s{sMST} offen{sc}')
    a(f's_mov_b64 exec, -1\ns_mov_b32 s{sMST}, s{sT}')
    ts(True)
    for l in ESR[cfg.es2:cfg.es3]: a(l)
    if cfg.prof or cfg.trace: a('s_waitcnt lgkmcnt(0)')
    if cfg.prof:
        for i in range(10):
            a(f's_sub_u32 s{sT}, s{20+2*i}, s{18+2*i}\ns_add_u32 s{68+i}, s{68+i}, s{sT}')
    if cfg.trace:
        a(f's_sub_u32 s{sT2}, s{sS}, {cfg.trace}\ns_cmp_gt_u32 s{sT2}, 1\ns_cbranch_scc1 {pre}_notr')
        a(f's_lshl_b32 s{sT}, s{sIDX}, 2\ns_add_u32 s{sT}, s{sT}, s{sW}\ns_lshl_b32 s{sT}, s{sT}, 1\ns_add_u32 s{sT}, s{sT}, s{sT2}\ns_lshl_b32 s{sT}, s{sT}, 6\ns_add_u32 s{sT}, s{sT}, {TS+0x8000:#x}')
        for i in range(cnt[0]): a(f'v_writelane_b32 v0, s{PAIRS[i]}, {i}')
        a('v_writelane_b32 v0, s96, 14\nv_writelane_b32 v0, s98, 15')
        a(f'v_lshrrev_b32 v{MA01}, 2, v{vL16}\ns_mov_b64 exec, 0xffff\nbuffer_store_dword v0, v{MA01}, {S(sWS)}, s{sT} offen\ns_mov_b64 exec, -1')
        a.label(pre + '_notr')
        a(f's_cmp_lg_u32 s{sS}, {cfg.trace-4}\ns_cbranch_scc1 {pre}_nocal')
        a('s_memrealtime s[100:101]\ns_waitcnt lgkmcnt(0)')
        a.label(pre + '_cal')
        a(f's_memrealtime s[96:97]\ns_memtime s[98:99]\ns_waitcnt lgkmcnt(0)\ns_cmp_eq_u32 s96, s100\ns_cbranch_scc1 {pre}_cal')
        a.label(pre + '_nocal')
    if cfg.steplog >= 0:
        a(f's_memrealtime s[100:101]\ns_sub_u32 s{sT2}, s{sS}, {cfg.steplog}\ns_cmp_ge_u32 s{sT2}, 26\ns_cbranch_scc1 {pre}_nsl')
        a(f's_mov_b32 s99, m0\ns_mov_b32 m0, s{sT2}\ns_waitcnt lgkmcnt(0)\ns_movreld_b32 s16, s100\ns_mov_b32 m0, s99')
        a.label(pre + '_nsl')
    if cfg.bar2: a('s_barrier')
    for _ in range(cfg.pd2): a('s_nop 3')
    a(f's_cmp_lg_u32 s{sS}, s{sLIM}')
    a.flush()
    a(f's_cbranch_scc1 {pre}_step\ns_branch {pre}_special')
```

```python
import sys, os
sys.path.insert(0, os.path.dirname(__file__))
from asmlib import Asm, vr

NAME = 'concat_heads__sliding_local_dilated__memory_aug_recurrent_mem_tr__prompt'
QX, KX, VX, KVM, FPR = 0, 0x2000, 0x4000, 0x6000, 0xf000
OX = 0x4000000
PART, MEMS, FLG = 0x5000000, 0x5080000, 0x5100000
WS_BYTES = 0x10000000
LDS_BYTES = 163840
sWS, sDBG = 4, 8
sR1, sR2, sR3 = 12, 44, 48
sXCD, sIDX, sW = 42, 43, 3
P = lambda i: 16 + 2 * i

class Cfg:
    roles = 'pcao'
    stamps = False
    diag = 0
    spos = 0
    lw = 15
    es4 = 15
    es5 = 16
    zpos = 0
    lazy = 1
    xm = 2
    touch = 1
    need1 = 7
    phalf = 1
    cwarm = 0
    steplog = -1
    depth = 4
    osc = 0
    x4 = 0
    own = 3
    pubpos = 0
    pfd = 0
    x_ack = 0
    mask = 1
    wsplit = 0
    dbgts = 0
    dbgmap = {'c': [(0, 9), (2, 10), (3, 11)], 'w': [(0, 12), (3, 13), (5, 14)], 'o': [(3, 15)]}
    fsh = 7
    sl1 = 2
    sl2 = 1
    warm = 1
    cord = 1
    need0 = 192
    x_only = -1
    x_stop = 0
    dual1 = 1
    sp4 = 7
    swz = 0
    pd0 = 0
    sp3 = 0
    h1 = 3
    h2 = 8
    kdpos = 0
    hint = 0
    hpos = 8
    ppos = (16, 20, 30)
    bar2 = 1
    np1 = 1
    np2 = 1
    sp1 = 0
    sp2 = 0
    trace = 0
    clk = 0
    x_nokv = 0
    x_nopub = 0
    x_nopf = 1
    vpos = 2
    osch = 0
    vgap = 3
    x_pfplain = 0
    x_kvplain = 0
    wm1 = 0
    wm2 = 0
    es1 = 12
    es2 = 14
    es3 = 14
    pd1 = 0
    pd2 = 0
    prof = 0
    force_slow = 0
    x_nostore = 0
    x_nodma = 0
    x_plain = 0

def srd(a, d, base, size):
    a(f's_mov_b32 s{d}, s{base}\ns_and_b32 s{d+1}, s{base+1}, 0xffff\ns_mov_b32 s{d+2}, {size:#x}\ns_mov_b32 s{d+3}, 0x20000')

def S(d): return f's[{d}:{d+3}]'

TS = 0x5180000
def stamp(a, cfg, i):
    if cfg.stamps:
        a(f's_memrealtime s[{84+2*i}:{85+2*i}]')
def dump_stamps(a, cfg, n, role):
    if not cfg.stamps: return
    l = a.newlabel('L_ts')
    a(f's_waitcnt lgkmcnt(0)\ns_cmp_lg_u32 s{sW}, 0\ns_cbranch_scc1 {l}')
    a(f's_lshl_b32 s80, s2, 6\ns_add_u32 s80, s80, {TS:#x}\nv_mov_b32 v1, 0')
    for i in range(n):
        a(f'v_mov_b32 v2, s{84+2*i}\nbuffer_store_dword v2, v1, {S(sWS)}, s80 offen offset:{4*i}')
    if cfg.dbgts:
        a('s_mov_b64 exec, 1')
        a(f's_not_b32 s81, s84\nv_mov_b32 v2, s81\nbuffer_atomic_umax v2, v1, {S(sDBG)}, 0 offen offset:32')
        for slot, word in cfg.dbgmap[role]:
            a(f'v_mov_b32 v2, s{84+2*slot}\nbuffer_atomic_umax v2, v1, {S(sDBG)}, 0 offen offset:{4*word}')
    a.label(l)

def prologue(a, cfg):
    if cfg.diag == 5: a('s_memrealtime s[100:101]')
    a('s_cmp_ge_u32 s2, 256\ns_cbranch_scc1 L_end')
    a('s_load_dwordx16 s[16:31], s[0:1], 0\ns_load_dwordx8 s[32:39], s[0:1], 64\ns_load_dwordx2 s[40:41], s[0:1], 96')
    a(f's_and_b32 s{sXCD}, s2, 7\ns_lshr_b32 s{sIDX}, s2, 3')
    if cfg.cwarm:
        a('s_getpc_b64 s[44:45]')
        a.label('L_pc')
        a('s_and_b32 s45, s45, 0xffff')
        a.raw('  s_mov_b32 s46, L_code_end - L_pc')
        a('s_mov_b32 s47, 0x20000\nv_lshlrev_b32 v2, 7, v0\ns_mov_b32 s48, 0x8000\ns_mov_b32 s49, 0x10000')
        a('buffer_load_dword v253, v2, s[44:47], 0 offen')
        a('v_add_u32 v2, 0x8000, v2\nbuffer_load_dword v254, v2, s[44:47], 0 offen')
        a('v_add_u32 v2, 0x8000, v2\nbuffer_load_dword v255, v2, s[44:47], 0 offen')
    a(f'v_lshrrev_b32 v1, 6, v0\nv_and_b32 v0, 63, v0\nv_readfirstlane_b32 s{sW}, v1')
    a(f's_cmp_gt_u32 s{sXCD}, 1\ns_cbranch_scc1 L_work')
    a(f's_cmp_eq_u32 s{sXCD}, 1\ns_cbranch_scc1 L_apart')

def args_ready(a):
    a('s_waitcnt lgkmcnt(0)')
    srd(a, sWS, P(12), WS_BYTES)
    srd(a, sDBG, P(11), 256)

def role_proj(a, cfg):
    vL16, vSRC, vTR, vX, vRD, vZ = 1, 2, 3, 4, 5, 6
    XB = 16
    ACC = 48
    PK = 64
    XV, RB, RD = 72, 80, 84
    sJ, sWH, sPAR, sT, sT2, sI, sXO, sSLOT, sRSLOT, sOUT, sG = 52, 53, 54, 55, 56, 57, 58, 59, 60, 61, 62
    stamp(a, cfg, 0)
    a(f's_sub_u32 s{sJ}, s{sXCD}, 2\ns_lshr_b32 s{sWH}, s{sJ}, 1\ns_and_b32 s{sPAR}, s{sJ}, 1')
    a(f'v_lshrrev_b32 v8, 4, v0\ns_and_b32 s{sT}, s{sW}, 2\ns_lshl_b32 s{sT}, s{sT}, 1\nv_or_b32 v9, s{sT}, v8\nv_lshlrev_b32 v9, 1, v9')
    a(f'v_and_b32 v10, 15, v0\nv_xor_b32 v9, v9, v10\nv_lshlrev_b32 v9, 4, v9\nv_lshl_add_u32 v{vSRC}, v8, 13, v9')
    args_ready(a)
    a(f's_cmp_eq_u32 s{sWH}, 0\ns_cselect_b32 s64, s{P(6)}, s{P(7)}\ns_cselect_b32 s65, s{P(6)+1}, s{P(7)+1}')
    a(f's_mov_b32 s{sOUT}, {VX:#x}\ns_cselect_b32 s{sOUT}, {KX:#x}, s{sOUT}')
    a(f's_cmp_eq_u32 s{sWH}, 2\ns_cselect_b32 s64, s{P(5)}, s64\ns_cselect_b32 s65, s{P(5)+1}, s65\ns_cselect_b32 s{sOUT}, {QX:#x}, s{sOUT}')
    srd(a, sR1, 64, 512 * 8192)
    srd(a, sR2, P(3), 2048 * 1024)
    a(f's_lshl_b32 s{sT}, s{sIDX}, 8\ns_lshl_b32 s{sT2}, s{sW}, 15\ns_add_u32 s{sT}, s{sT}, s{sT2}\ns_lshl_b32 m0, s{sW}, 10')
    for k in range(32):
        a(f'buffer_load_dwordx4 v{vSRC}, {S(sR1)}, s{sT} offen lds')
        a(f's_add_u32 s{sT}, s{sT}, {16*8192:#x}\ns_add_u32 m0, m0, 4096')
    a(f'v_lshlrev_b32 v{vL16}, 4, v0')
    a(f'v_mov_b32 v{vZ}, 0\ns_lshl_b32 s{sG}, s{sIDX}, 21\ns_lshl_b32 s63, s{sJ}, 7\ns_add_u32 s{sG}, s{sG}, s63\ns_add_u32 s{sG}, s{sG}, {FPR:#x}')
    a(f's_lshl_b32 s{sT2}, s{sJ}, 12\ns_add_u32 s{sT2}, s{sT2}, {FLG+4096:#x}\ns_lshl_b32 s63, s{sIDX}, {cfg.fsh}\ns_add_u32 s{sT2}, s{sT2}, s63')
    a(f's_cmp_lg_u32 s{sW}, 0\ns_cbranch_scc1 L_pz2')
    a(f'buffer_store_dword v{vZ}, v{vZ}, {S(sWS)}, s{sT2} offen sc1\nbuffer_store_dword v{vZ}, v{vZ}, {S(sWS)}, s{sG} offen sc1')
    a('L_pz2:')
    WT = 12
    a(f'v_bfe_u32 v9, v0, 2, 2\nv_lshl_add_u32 v10, v8, 3, v9\nv_lshlrev_b32 v10, 8, v10')
    a(f'v_and_b32 v8, 1, v8\nv_lshl_or_b32 v9, v8, 2, v9\nv_lshlrev_b32 v9, 1, v9')
    a(f'v_bfe_u32 v8, v0, 1, 1\ns_lshl_b32 s{sT}, s{sW}, 2\nv_or_b32 v8, s{sT}, v8\nv_xor_b32 v9, v9, v8\nv_lshl_add_u32 v10, v9, 4, v10')
    a(f'v_and_b32 v8, 1, v0\nv_lshl_add_u32 v{WT}, v8, 3, v10\nv_xor_b32 v{WT+2}, 32, v{WT}\nv_add_u32 v{WT+1}, 0x10000, v{WT}\nv_add_u32 v{WT+3}, 0x10000, v{WT+2}')
    a(f's_lshl_b32 s{sT}, s{sW}, 3\ns_and_b32 s{sT2}, s{sT}, 15\ns_lshl_b32 s{sT}, s{sT}, 10')
    for i in range(8):
        a(f's_add_u32 s63, s{sT2}, {i}\nv_xor_b32 v8, s63, v0\nv_lshlrev_b32 v8, 4, v8')
        a(f's_add_u32 s63, s{sT}, {(i//4)*4096}\nv_add_u32 v{XV+i}, s63, v8')
    for uu in range(4):
        a(f'v_lshrrev_b32 v8, 4, v0\nv_or_b32 v8, {4*uu}, v8\nv_and_b32 v9, 15, v0\nv_xor_b32 v8, v8, v9\nv_lshlrev_b32 v8, 4, v8')
        a(f'v_lshlrev_b32 v9, 10, v9\nv_add_u32 v{RB+uu}, v8, v9')
    def xdma(only=None):
        for i in range(8):
            if only is not None and i != only: continue
            if i == 0: a(f's_lshl_b32 s{sT}, s{sW}, 13\ns_add_u32 m0, s{sSLOT}, s{sT}')
            a(f'buffer_load_dwordx4 v{XV+i}, {S(sR2)}, s{sXO} offen offset:{1024*(i%4)} lds')
            if i == 3: a('s_add_u32 m0, m0, 4096')
        if only is not None and only != 7: return
        a(f's_add_u32 s{sXO}, s{sXO}, 0x10000\ns_min_u32 s{sXO}, s{sXO}, 0x1f8000\ns_add_u32 s{sSLOT}, s{sSLOT}, 0x8000')
        a(f's_cmp_eq_u32 s{sSLOT}, 0x28000\ns_cselect_b32 s{sSLOT}, 0, s{sSLOT}')
    a(f's_lshl_b32 s{sXO}, s{sPAR}, 15\ns_mov_b32 s{sSLOT}, 0x20000\ns_mov_b32 s{sRSLOT}, 0x20000')
    xdma()
    for st in range(4):
        a(f's_waitcnt vmcnt({8 + 8*(3-st)})\ns_barrier')
        for u in range(4*st, 4*st + 4):
            for c in range(2):
                for t in range(2):
                    r = (t * 16 + u) * 4 + 2 * c
                    a(f'ds_read_b64_tr_b16 a[{r}:{r+1}], v{WT + 2*t + u//8} offset:{(u%8)*8192 + c*1024}')
    a('s_waitcnt lgkmcnt(0)\ns_barrier')
    stamp(a, cfg, 1)
    xdma(); xdma()
    a(f's_lshl_b32 s{sT}, s{sPAR}, 15\ns_add_u32 s{sOUT}, s{sOUT}, s{sT}\ns_lshl_b32 s{sT}, s{sIDX}, 21\ns_add_u32 s{sOUT}, s{sOUT}, s{sT}')
    a(f's_cmp_eq_u32 s{sWH}, 1\ns_cselect_b32 s{sT2}, 11, 10\ns_lshl_b32 s{sT}, s{sW}, s{sT2}\ns_add_u32 s{sOUT}, s{sOUT}, s{sT}')
    sADV, sOUT2 = 63, 66
    ACCS = (ACC, 88)
    a(f's_mov_b32 s{sI}, 0\nv_mov_b32 v7, 1\ns_mov_b32 s{sADV}, 0')
    a(f's_cmp_eq_u32 s{sWH}, 1\ns_cselect_b32 s{sT}, 1, 4\ns_lshl_b32 s{sT}, s{sT}, 10\ns_add_u32 s{sOUT2}, s{sOUT}, s{sT}')
    def rd(u):
        return [f'ds_read_b128 v[{XB + ((u % 4) * 2 + T) * 4}:{XB + ((u % 4) * 2 + T) * 4 + 3}], v{RD+u%4} offset:{T*16384+((u%16)//4)*256}' for T in range(2)]
    def nextslot():
        return [f'v_add_u32 v{RD+uu}, s{sRSLOT}, v{RB+uu}' for uu in range(4)] + \
               [f's_add_u32 s{sRSLOT}, s{sRSLOT}, 0x8000\ns_cmp_eq_u32 s{sRSLOT}, 0x28000\ns_cselect_b32 s{sRSLOT}, 0, s{sRSLOT}']
    def epilogue(isv, acc):
        E = []
        for f in range(2):
            for hlf in range(2):
                d = acc + ((f * 2 + (hlf ^ f)) if isv else (hlf * 2 + f)) * 4
                E += [f'v_cvt_pk_bf16_f32 v{PK+f*4+hlf*2}, v{d}, v{d+1}', f'v_cvt_pk_bf16_f32 v{PK+f*4+hlf*2+1}, v{d+2}, v{d+3}']
            E.append(f'buffer_store_dwordx4 v[{PK+f*4}:{PK+f*4+3}], v{vL16}, {S(sWS)}, s{sOUT2 if f else sOUT} offen sc1')
        if isv: E[-1] += f'\nbuffer_store_dwordx4 v[12:15], v11, {S(sWS)}, s{sOUT} offen sc1'
        E.append(f's_add_u32 s{sOUT}, s{sOUT}, s{sADV}\ns_add_u32 s{sOUT2}, s{sOUT2}, s{sADV}\ns_mov_b32 s{sADV}, 0x10000')
        return E
    for i in range(4): a(f'v_mov_b32 v{12+i}, -1')
    a(f's_lshl_b32 s{sT}, s{sW}, 10\nv_subrev_u32 v11, s{sT}, v{vL16}\nv_add_u32 v11, {KVM - VX:#x}, v11')
    a('s_waitcnt vmcnt(16)\ns_barrier')
    a(f's_cmp_lg_u32 s{sW}, 0\ns_cbranch_scc1 L_p_ni')
    a(f's_mov_b64 exec, 1\nbuffer_atomic_add v7, v{vZ}, {S(sDBG)}, 0 offen sc1\ns_mov_b64 exec, -1')
    a('L_p_ni:')
    stamp(a, cfg, 4)
    for l in nextslot(): a(l)
    for u in range(4):
        for l in rd(u): a(l)
    a(f's_cmp_eq_u32 s{sWH}, 1\ns_cbranch_scc1 L_pv_loop')
    for isv in (0, 1):
        lab = 'L_pv_loop' if isv else 'L_pk_loop'
        a.label(lab)
        for half in range(2):
            acc = ACCS[half]
            E = epilogue(isv, ACCS[1 - half])
            for u in range(16):
                a('s_waitcnt lgkmcnt(6)')
                fill = []
                if 2 <= u <= 7: fill = E[2*(u-2):2*(u-2)+2]
                k = 0
                for T in range(2):
                    for t in range(2):
                        d = acc + (t * 2 + T) * 4
                        x = XB + ((u % 4) * 2 + T) * 4
                        w = (t * 16 + u) * 4
                        c = '0' if u == 0 else f'v[{d}:{d+3}]'
                        if isv: a(f'v_mfma_f32_16x16x32_bf16 v[{d}:{d+3}], v[{x}:{x+3}], a[{w}:{w+3}], {c}')
                        else:   a(f'v_mfma_f32_16x16x32_bf16 v[{d}:{d+3}], a[{w}:{w+3}], v[{x}:{x+3}], {c}')
                        if k == 0 and u % 2 == 0: xdma(u // 2)
                        if k == 0 and u == 12:
                            a('s_waitcnt vmcnt(13)\ns_barrier')
                            for l in nextslot(): a(l)
                        if k == 1: a(rd(u + 4)[0])
                        if k == 3: a(rd(u + 4)[1])
                        if k in (0, 2) and fill: a(fill.pop(0))
                        if k == 2 and u == 13 and half == cfg.phalf:
                            a(f's_cmp_lg_u32 s{sW}, 0\ns_cbranch_scc1 {lab}_nf')
                            a(f'v_mov_b32 v8, s{sI}\ns_mov_b64 exec, 1\nbuffer_store_dword v8, v{vZ}, {S(sWS)}, s{sG} offen sc1')
                            a('s_mov_b64 exec, -1')
                            a.label(f'{lab}_nf')
                        k += 1
        a(f's_add_u32 s{sI}, s{sI}, 2\ns_cmp_lt_u32 s{sI}, 32\ns_cbranch_scc1 {lab}')
        a.flush(); a('s_nop 7')
        for l in epilogue(isv, ACCS[1]): a(l)
        if not isv: a('s_branch L_p_done')
    a('L_p_done:')
    stamp(a, cfg, 2)
    a('s_waitcnt vmcnt(0) lgkmcnt(0)\ns_barrier')
    stamp(a, cfg, 3)
    a(f's_cmp_lg_u32 s{sW}, 0\ns_cbranch_scc1 L_p_fl')
    a(f'v_mov_b32 v8, 32\ns_mov_b64 exec, 1\nbuffer_store_dword v8, v{vZ}, {S(sWS)}, s{sG} offen sc1\ns_mov_b64 exec, -1')
    a('L_p_fl:')

def build(cfg):
    cfg.OS = ['', ' sc1', ' nt', ' sc0 sc1'][cfg.osc]
    a = Asm()
    hdr = open(os.path.join(os.path.dirname(__file__), '..', 'cdna_kernels', NAME + '.s.ref')).read().split('\n')
    for l in hdr:
        if l.startswith('; @launch'): break
        a.raw(l)
    a.raw(f'; @launch grid=(256,1,1) block=(256,1,1) lds={LDS_BYTES}')
    a.raw('.amdgcn_target "amdgcn-amd-amdhsa--gfx950"\n.text')
    a.raw(f'.globl {NAME}_kernel\n.p2align 8\n.type {NAME}_kernel,@function\n{NAME}_kernel:')
    prologue(a, cfg)
    if 'c' in cfg.roles:
        from role_chain import role_chain
        role_chain(a, cfg)
        dump_stamps(a, cfg, 8, 'c')
    a('s_endpgm')
    a.label('L_work')
    if cfg.x_only >= 0: a(f's_cmp_gt_u32 s{sXCD}, {cfg.x_only}\ns_cbranch_scc1 L_end')
    role_proj(a, cfg)
    if 'a' in cfg.roles:
        from role_att import role_att
        role_att(a, cfg)
    dump_stamps(a, cfg, 8, 'w')
    a('s_endpgm')
    a.label('L_apart')
    if 'o' in cfg.roles:
        from role_apart import role_apart
        role_apart(a, cfg)
        dump_stamps(a, cfg, 8, 'o')
    a.label('L_end')
    a('s_endpgm')
    a.label('L_code_end')
    a.raw(f'''.section .rodata,"a"
.p2align 6
.amdhsa_kernel {NAME}_kernel
  .amdhsa_next_free_vgpr 512
  .amdhsa_next_free_sgpr 102
  .amdhsa_accum_offset 256
  .amdhsa_group_segment_fixed_size 0
  .amdhsa_kernarg_size 104
  .amdhsa_user_sgpr_count 2
  .amdhsa_user_sgpr_kernarg_segment_ptr 1
  .amdhsa_system_sgpr_workgroup_id_x 1
.end_amdhsa_kernel''')
    return a.text()

if __name__ == '__main__':
    sys.modules['gen'] = sys.modules['__main__']
    cfg = Cfg()
    out = None
    for arg in sys.argv[1:]:
        if arg.startswith('roles='): cfg.roles = arg[6:]
        elif arg.startswith('out='): out = arg[4:]
        elif '=' in arg:
            k, v = arg.split('='); setattr(cfg, k, tuple(int(x) for x in v.split(',')) if k == 'ppos' else int(v))
    out = out or os.path.join(os.path.dirname(__file__), '..', 'cdna_kernels', NAME + '.s')
    open(out, 'w').write(build(cfg))
    print('wrote', out)
```

```python
from gen import *
import struct, math
def f2u(x): return struct.unpack('<I', struct.pack('<f', x))[0]

def spin(a, name, srd, soff, target, vtmp, vaddr, scnt, sleep=1):
    a(f's_cmp_lg_u32 s{sW}, 0\ns_cbranch_scc1 {name}_ok')
    a(f's_mov_b32 s{scnt}, 0')
    a.label(name)
    a(f'buffer_load_dword v{vtmp}, v{vaddr}, {S(srd)}, {soff} offen sc1\ns_waitcnt vmcnt(0)')
    a(f'v_cmp_gt_u32 vcc, {target}, v{vtmp}\ns_cbranch_vccz {name}_ok')
    a(f's_sleep {sleep}\ns_add_u32 s{scnt}, s{scnt}, 1\ns_cmp_lt_u32 s{scnt}, 0x200000\ns_cbranch_scc1 {name}')
    a.label(name + '_ok')
    a('s_barrier')

def role_att(a, cfg):
    a.comment('---- attention of the segment rows + output projection')
    vL16, vZ, vONE = 1, 6, 7
    vL8, vKa, vKb, vKr, vOut, vNEG, vRW, vRR, vT = 2, 3, 4, 5, 8, 9, 10, 11, 12
    QF, KF, VF, PB, KM = 16, 32, 64, 80, 96
    vVr = 88
    S0, S1, SMm = 112, 116, 120
    PP, PD, AC, OPK, TT = 124, 130, 136, 152, 160
    OB = 128
    OA = 112
    sJ = 52
    sT, sT2, sS, sB, sTq, sEH, sGD, sNEED, sCNT, sFC, sFA, sC, sNC, sO = range(53, 67)
    MK = 68
    DPP = 'row_mask:0xf bank_mask:0xf'
    if cfg.ne < 6 and not cfg.nsw: a(f's_cmp_ge_u32 s{sJ}, {cfg.ne}\ns_cbranch_scc1 L_a_out')
    srd(a, sR1, P(8), 4096*1024)
    srd(a, sR2, P(10), 2048*2048)
    vWS = 90
    a(f'v_lshrrev_b32 v{vWS}, 2, v0\nv_lshlrev_b32 v{vWS}, 10, v{vWS}\nv_and_b32 v{vT+1}, 3, v0\nv_lshl_add_u32 v{vWS}, v{vT+1}, 4, v{vWS}')
    sHX = 67
    a(f's_mul_i32 s{sHX}, s{sIDX}, {cfg.hx}\ns_and_b32 s{sHX}, s{sHX}, 31\ns_lshl_b32 s{sT}, s{sW}, 3\ns_xor_b32 s{sHX}, s{sHX}, s{sT}')
    a(f's_and_b32 s{sFC}, s{sIDX}, 15\ns_lshl_b32 s{sFC}, s{sFC}, 6')
    def wo_issue(ps):
        a(f's_lshl_b32 m0, s{sW}, 15')
        for i in range(32):
            if i % 8 == 0: a(f's_xor_b32 s{sO}, s{sHX}, {4*ps + i//8}\ns_lshl_b32 s{sO}, s{sO}, 17\ns_add_u32 s{sO}, s{sO}, s{sFC}')
            a(f'buffer_load_dwordx4 v{vWS}, {S(sR1)}, s{sO} offen lds')
            a(f's_add_u32 s{sO}, s{sO}, 0x4000\ns_add_u32 m0, m0, 1024')
    def wo_read(ps):
        for i in range(32):
            if i % 8 == 0: a(f's_waitcnt vmcnt({24 - i})')
            for ct in range(2):
                r = 128*ct + 64*ps + 2*i
                a(f'ds_read_b64_tr_b16 a[{r}:{r+1}], v{vL8} offset:{i*1024 + ct*32}')
        a('s_waitcnt lgkmcnt(0)')
    wo_issue(0)
    a(f's_lshl_b32 s{sT}, s{sW}, 15\nv_lshrrev_b32 v{vL8}, 2, v0\nv_lshlrev_b32 v{vL8}, 6, v{vL8}\nv_lshl_add_u32 v{vL8}, v{vT+1}, 3, v{vL8}\nv_add_u32 v{vL8}, s{sT}, v{vL8}')
    a(f's_and_b32 s{sTq}, s{sW}, 1\ns_lshr_b32 s{sEH}, s{sW}, 1')
    n, g, b4, b5 = vT+1, vT+2, vT+3, 112
    a(f'v_and_b32 v{n}, 15, v0\nv_lshrrev_b32 v{g}, 4, v0\nv_bfe_u32 v{b4}, v0, 4, 1\nv_bfe_u32 v{b5}, v0, 5, 1')
    PRIV = 131072
    a(f'v_lshlrev_b32 v{vKa}, 4, v{n}\nv_lshl_add_u32 v{vKa}, v{b5}, 8, v{vKa}\nv_lshl_add_u32 v{vKa}, v{b4}, 3, v{vKa}')
    a(f's_lshl_b32 s{sT}, s{sW}, 9\ns_add_u32 s{sT}, s{sT}, {PRIV}\nv_add_u32 v{vKa}, s{sT}, v{vKa}')
    a(f'v_lshlrev_b32 v113, 3, v0\ns_add_u32 s{sT}, s{sT}, 2048\nv_add_u32 v{vKb}, s{sT}, v113')
    a(f's_lshl_b32 s{sT}, s{sEH}, 10\ns_add_u32 s{sT}, s{sT}, {PRIV+2048}\nv_add_u32 v{vVr}, s{sT}, v113')
    a(f'v_lshrrev_b32 v113, 2, v0\nv_lshlrev_b32 v113, 4, v113\nv_and_b32 v114, 1, v0\nv_lshl_add_u32 v113, v114, 3, v113\nv_add_u32 v{vKr}, {PRIV}, v113')
    a(f'v_lshlrev_b32 v{vOut}, 11, v{n}\nv_lshl_add_u32 v{vOut}, v{g}, 3, v{vOut}')
    a(f's_lshl_b32 s{sT}, s{sW}, 10\ns_add_u32 s{sT}, s{sT}, {PRIV+8192}\nv_add_u32 v{vRW}, s{sT}, v{vL16}')
    a(f's_lshl_b32 s{sT}, s{sTq}, 12\ns_add_u32 s{sT}, s{sT}, {PRIV+8192}\nv_add_u32 v{vRR}, s{sT}, v{vL16}')
    sc = 128 ** -0.5
    a(f'v_mov_b32 v{vNEG}, {f2u(-1e9/sc):#x}')
    a(f's_lshl_b32 s{sT}, s{sTq}, 4\nv_lshlrev_b32 v113, 2, v{g}\nv_sub_u32 v113, v{n}, v113\nv_add_u32 v113, s{sT}, v113')
    for Tk in range(2):
        for i in range(4):
            m = MK + 2*(4*Tk+i)
            a(f'v_cmp_gt_i32 s[{m}:{m+1}], {16*Tk+i}, v113')
    c = sc * math.log2(math.e)
    a(f's_mov_b32 s{sC}, {f2u(c):#x}\ns_mov_b32 s{sNC}, {f2u(-c):#x}')
    a(f's_lshl_b32 s{sT}, s{sJ}, 12\ns_add_u32 s{sFA}, s{sT}, {FLG+4096:#x}')
    a(f's_mov_b32 s{sS}, s{sJ}\ns_mov_b32 s{sGD}, -1\ns_mov_b32 s{sNEED}, 1\nv_and_b32 v{vONE}, 31, v0\nv_lshlrev_b32 v{vONE}, {cfg.fsh}, v{vONE}')
    wo_read(0); wo_issue(1); wo_read(1)
    stamp(a, cfg, 4)
    spin(a, 'L_a_iw', sDBG, 0, 192, vT, vZ, sCNT, 8)
    a(f'buffer_load_dword v{vT}, v{vONE}, {S(sWS)}, s{sFA} offen offset:4 sc1\ns_waitcnt vmcnt(0)\nv_readfirstlane_b32 s{sT}, v{vT}')
    a(f'v_cmp_ne_u32 vcc, s{sT}, v{vT}\ns_mov_b32 s{sGD}, vcc_lo')
    if not cfg.efast: a(f's_mov_b32 s{sGD}, 1')
    a(f'v_min_u32 v113, 5, v0\nv_lshlrev_b32 v113, 7, v113\ns_lshl_b32 s{sB}, s{sIDX}, 21\ns_add_u32 s{sB}, s{sB}, {FPR:#x}')
    spin(a, 'L_a_gw', sWS, f's{sB}', 32, vT, 113, sCNT, 4)
    a('L_a_loop:')
    a(f's_lshl_b32 s{sB}, s{sIDX}, 6\ns_add_u32 s{sB}, s{sB}, s{sS}\ns_lshl_b32 s{sB}, s{sB}, 15')
    a(f's_lshl_b32 s{sT}, s{sTq}, 12\ns_add_u32 s{sT}, s{sT}, s{sB}')
    for u in range(4): a(f'buffer_load_dwordx4 v[{QF+4*u}:{QF+4*u+3}], v{vL16}, {S(sWS)}, s{sT} offen offset:{u*1024} sc1')
    for Tk in range(2):
        a(f's_add_u32 s{sT}, s{sB}, {KX + Tk*4096:#x}')
        for u in range(4): a(f'buffer_load_dwordx4 v[{KF+16*Tk+4*u}:{KF+16*Tk+4*u+3}], v{vL16}, {S(sWS)}, s{sT} offen offset:{u*1024} sc1')
    a(f's_lshl_b32 s{sT}, s{sEH}, 12\ns_add_u32 s{sT}, s{sT}, s{sB}\ns_add_u32 s{sT}, s{sT}, {VX:#x}')
    for u in range(4): a(f'buffer_load_dwordx4 v[{VF+4*u}:{VF+4*u+3}], v{vL16}, {S(sWS)}, s{sT} offen offset:{u*1024} sc1')
    a('s_waitcnt vmcnt(4)')
    for u in range(4):
        for Tk, d in ((0, S0), (1, S1)):
            cc = '0' if u == 0 else f'v[{d}:{d+3}]'
            a(f'v_mfma_f32_16x16x32_bf16 v[{d}:{d+3}], v[{KF+16*Tk+4*u}:{KF+16*Tk+4*u+3}], v[{QF+4*u}:{QF+4*u+3}], {cc}')
    for x in range(8):
        a(f'v_cndmask_b32 v{S0+x}, v{S0+x}, v{vNEG}, s[{MK+2*x}:{MK+2*x+1}]')
    MX = TT
    a(f'v_max3_f32 v{MX}, v{S0}, v{S0+1}, v{S0+2}\nv_max3_f32 v{MX}, v{MX}, v{S0+3}, v{S0+4}\nv_max3_f32 v{MX}, v{MX}, v{S0+5}, v{S0+6}\nv_max_f32 v{MX}, v{MX}, v{S0+7}')
    a(f'v_mov_b32 v{PD+1}, 0\nv_mov_b32 v{PD+2}, 0')
    a(f's_lshl_b32 s{sT}, s{sW}, 10\ns_add_u32 s{sO}, s{sB}, s{sT}\ns_add_u32 s{sO}, s{sO}, {KVM:#x}\ns_mov_b32 s{sCNT}, 0')
    a('L_a_cw:')
    a(f'buffer_load_dwordx4 v[{PB}:{PB+3}], v{vL16}, {S(sWS)}, s{sO} offen sc1\ns_waitcnt vmcnt(0)')
    a(f'v_cmp_eq_u32 vcc, -1, v{PB}\ns_cbranch_vccz L_a_cw_ok')
    a(f's_sleep {cfg.sl1}\ns_add_u32 s{sCNT}, s{sCNT}, 1\ns_cmp_lt_u32 s{sCNT}, 0x200000\ns_cbranch_scc1 L_a_cw')
    a('L_a_cw_ok:')
    stamp(a, cfg, 1)
    a(f'ds_write_b64 v{vKa}, v[{PB}:{PB+1}]\nds_write_b64 v{vKb}, v[{PB+2}:{PB+3}]\ns_waitcnt lgkmcnt(0)\ns_barrier')
    for p in range(2): a(f'ds_read_b64 v[{PB+4*p+2}:{PB+4*p+3}], v{vVr} offset:{p*512}')
    for u in range(4):
        for t in range(2):
            a(f'ds_read_b64_tr_b16 v[{KM+4*u+2*t}:{KM+4*u+2*t+1}], v{vKr} offset:{u*512 + t*256}')
    for u in range(4):
        a(f's_waitcnt lgkmcnt({6-2*u})')
        cc = '0' if u == 0 else f'v[{SMm}:{SMm+3}]'
        a(f'v_mfma_f32_16x16x32_bf16 v[{SMm}:{SMm+3}], v[{KM+4*u}:{KM+4*u+3}], v[{QF+4*u}:{QF+4*u+3}], {cc}')
    for i in range(2): a(f'v_mov_b32_dpp v{SMm+i}, v{SMm+2+i} quad_perm:[0,1,2,3] row_mask:0xc bank_mask:0xf')
    t0 = TT + 2
    def allg(op, src):
        a(f'v_mov_b32 v{t0}, v{src}\nv_mov_b32 v{t0+1}, v{src}\nv_permlane32_swap_b32 v{t0}, v{t0+1}')
        a(f'{op} v{t0+2}, v{t0}, v{t0+1}\n{op} v{t0+3}, v{t0}, v{t0+1}\nv_permlane16_swap_b32 v{t0+2}, v{t0+3}\n{op} v{t0}, v{t0+2}, v{t0+3}')
    a(f'v_max3_f32 v{MX}, v{MX}, v{SMm}, v{SMm+1}')
    allg('v_max_f32', MX)
    a(f'v_mul_f32 v{MX}, s{sNC}, v{t0}')
    for x in range(10): a(f'v_fma_f32 v{S0+x}, v{S0+x}, s{sC}, v{MX}')
    for x in range(10): a(f'v_exp_f32 v{S0+x}, v{S0+x}')
    for i, x in enumerate((0, 2, 4, 6, 0, 2)): a(f'v_cvt_pk_bf16_f32 v{PP+i}, v{S0+x}, v{S0+x+1}')
    a(f'v_cvt_pk_bf16_f32 v{PD}, v{SMm}, v{SMm+1}\nv_cvt_pk_bf16_f32 v{PD+3}, v{SMm+1}, v{SMm}')
    for tau in range(4):
        pb = PP + 2*(tau & 1)
        a(f'v_mfma_f32_16x16x32_bf16 v[{AC+4*tau}:{AC+4*tau+3}], v[{VF+4*tau}:{VF+4*tau+3}], v[{pb}:{pb+3}], 0')
    for tau in range(4):
        vb = PB + 4*(tau >> 1) + 2; pd = PD + 2*(tau & 1)
        a(f'v_mfma_f32_16x16x16_bf16 v[{AC+4*tau}:{AC+4*tau+3}], v[{vb}:{vb+1}], v[{pd}:{pd+1}], v[{AC+4*tau}:{AC+4*tau+3}]')
    a(f'v_add_f32 v{MX}, v{S0}, v{S0+1}')
    for x in range(2, 10): a(f'v_add_f32 v{MX}, v{MX}, v{S0+x}')
    allg('v_add_f32', MX)
    a(f'v_rcp_f32 v{t0}, v{t0}')
    for x in range(16): a(f'v_mul_f32 v{AC+x}, v{AC+x}, v{t0}')
    for x in range(8): a(f'v_cvt_pk_bf16_f32 v{OPK+x}, v{AC+2*x}, v{AC+2*x+1}')
    a(f's_lshl_b32 s{sT}, s{sTq}, 12\ns_lshl_b32 s{sT2}, s{sEH}, 11\ns_add_u32 s{sT}, s{sT}, s{sT2}\ns_add_u32 s{sT}, s{sT}, {OX:#x}')
    a(f's_lshl_b32 s{sT2}, s{sS}, 5\ns_add_u32 s{sT2}, s{sT2}, s{sIDX}\ns_lshl_b32 s{sT2}, s{sT2}, 13\ns_add_u32 s{sT}, s{sT}, s{sT2}')
    a(f's_cmp_lg_u32 s{sGD}, 0\ns_cbranch_scc1 L_a_s1')
    for uu in range(2): a(f'buffer_store_dwordx4 v[{OPK+4*uu}:{OPK+4*uu+3}], v{vL16}, {S(sWS)}, s{sT} offen offset:{uu*1024}')
    a('s_branch L_a_s2\nL_a_s1:')
    for uu in range(2): a(f'buffer_store_dwordx4 v[{OPK+4*uu}:{OPK+4*uu+3}], v{vL16}, {S(sWS)}, s{sT} offen offset:{uu*1024} sc1')
    a('L_a_s2:')
    stamp(a, cfg, 2)
    a('s_waitcnt vmcnt(0)\ns_barrier')
    stamp(a, cfg, 4)
    a(f's_cmp_lg_u32 s{sW}, 0\ns_cbranch_scc1 L_a_nf')
    a(f'v_mov_b32 v{vT}, s{sNEED}\ns_lshl_b32 s{sT}, s{sIDX}, {cfg.fsh}\ns_add_u32 s{sT}, s{sT}, s{sFA}')
    a(f's_mov_b64 exec, 1\ns_cmp_lg_u32 s{sGD}, 0\ns_cbranch_scc1 L_a_f1')
    a(f'buffer_store_dword v{vT}, v{vZ}, {S(sWS)}, s{sT} offen\ns_branch L_a_f2')
    a(f'L_a_f1:\nbuffer_store_dword v{vT}, v{vZ}, {S(sWS)}, s{sT} offen sc1')
    a('L_a_f2:\ns_mov_b64 exec, -1')
    a('L_a_nf:')
    spin(a, 'L_a_ow', sWS, f's{sFA}', f's{sNEED}', vT, vONE, sCNT, cfg.sl2)
    stamp(a, cfg, 6)
    a(f's_lshl_b32 s{sO}, s{sS}, 18\ns_add_u32 s{sO}, s{sO}, {OX:#x}')
    a(f's_lshr_b32 s{sT}, s{sIDX}, 4\ns_lshl_b32 s{sT}, s{sT}, 12\ns_add_u32 s{sO}, s{sO}, s{sT}')
    for f in range(32):
        r = OB + 4*f
        if f % 4 == 0: a(f's_xor_b32 s{sT}, s{sHX}, {f//4}\ns_lshl_b32 s{sT}, s{sT}, 13\ns_add_u32 s{sT}, s{sT}, s{sO}')
        a(f'buffer_load_dwordx4 v[{r}:{r+3}], v{vL16}, {S(sWS)}, s{sT} offen offset:{(f%4)*1024} sc1')
    for f in range(32):
        if f % 2 == 0: a(f's_waitcnt vmcnt({30 - f})')
        for ct in range(2):
            r = OB + 4*f; wv = 128*ct + 4*f; d = OA + 8*ct + 4*(f & 1)
            cc = '0' if f < 2 else f'v[{d}:{d+3}]'
            a(f'v_mfma_f32_16x16x32_bf16 v[{d}:{d+3}], a[{wv}:{wv+3}], v[{r}:{r+3}], {cc}')
    stamp(a, cfg, 7)
    for T in range(2):
        for i in range(4): a(f'v_add_f32 v{OA+8*T+i}, v{OA+8*T+i}, v{OA+8*T+4+i}')
        a(f'ds_write_b128 v{vRW}, v[{OA+8*T}:{OA+8*T+3}] offset:{T*4096}')
    a('s_waitcnt lgkmcnt(0)\ns_barrier')
    a(f's_cmp_ge_u32 s{sW}, 2\ns_cbranch_scc1 L_a_ns')
    for w in range(4): a(f'ds_read_b128 v[{OB+4*w}:{OB+4*w+3}], v{vRR} offset:{w*1024}')
    a(f's_lshl_b32 s{sT}, s{sS}, 16\ns_lshr_b32 s{sT2}, s{sIDX}, 4\ns_lshl_b32 s{sT2}, s{sT2}, 15\ns_add_u32 s{sT}, s{sT}, s{sT2}\ns_and_b32 s{sT2}, s{sIDX}, 15\ns_lshl_b32 s{sT2}, s{sT2}, 6\ns_add_u32 s{sT}, s{sT}, s{sT2}')
    a(f's_lshl_b32 s{sT2}, s{sTq}, 5\ns_add_u32 s{sT}, s{sT}, s{sT2}')
    a('s_waitcnt lgkmcnt(0)')
    for i in range(4): a(f'v_add_f32 v{OB+i}, v{OB+i}, v{OB+4+i}\nv_add_f32 v{OB+8+i}, v{OB+8+i}, v{OB+12+i}')
    for i in range(4): a(f'v_add_f32 v{OB+i}, v{OB+i}, v{OB+8+i}')
    a(f'v_cvt_pk_bf16_f32 v{OB}, v{OB}, v{OB+1}\nv_cvt_pk_bf16_f32 v{OB+1}, v{OB+2}, v{OB+3}')
    a(f'buffer_store_dwordx2 v[{OB}:{OB+1}], v{vOut}, {S(sR2)}, s{sT} offen offset:1024{cfg.OS}')
    a('L_a_ns:')
    a(f's_add_u32 s{sNEED}, s{sNEED}, 1\ns_nop 0')
    if cfg.nsw:
        a(f's_cmp_lt_u32 s{sS}, {cfg.nsw}\ns_cselect_b32 s{sT}, 6, {cfg.ne}\ns_add_u32 s{sS}, s{sS}, s{sT}')
        a(f's_cmp_ge_u32 s{sJ}, {cfg.ne}\ns_cselect_b32 s{sT}, {cfg.nsw}, 64\ns_cmp_lt_u32 s{sS}, s{sT}')
    else:
        a(f's_add_u32 s{sS}, s{sS}, {cfg.ne}\ns_cmp_lt_u32 s{sS}, 64')
    a.flush()
    a('s_cbranch_scc1 L_a_loop')
    a('L_a_out:')
    stamp(a, cfg, 5)
```

```python
from gen import *
import struct, math

def f2u(x): return struct.unpack('<I', struct.pack('<f', x))[0]

L_MEM, L_KX, L_Q, L_O, L_LS, L_ES = 0, 8192, 0, 4096, 24576, 81920
vL16, vTX, vMem, vMH1, vMH2, vKw, vTM, vOw, vPst, vMst, vIdx, SEL, VXF = 1, 2, 3, 4, 5, 6, 7, 8, 9, 10, 11, 12, 16
ES0 = 24
F0, F0R = 104, 112
AV, AK, AQ, PUB = 120, 124, 128, 132
FO = 24
KXF, QKF = 72, 104
SX, SX1, SM = 24, 28, 32
ACC0, ACC1, PF, PM = 96, 100, 124, 128
OUT, OF, LS0 = 104, 24, 40
RL, RDA = 112, 104
MA01 = F0
L_DUM = 23552
sT, sT2, sS, sMEM, sPART, sPART2, sRED, sMST, sKX, sVX, sPUB, sFL, sC, sNC, sSPIN, sG = range(52, 68)
sTAG, sLIM, sM0K, sKXB = 82, 83, 13, 14
sP1, sP3 = 48, 49
HINT = MEMS + 0x8000

OORD = [('o',x,0) for x in range(4)] + [('o',x,sg) for x in range(4) for sg in range(1,4)]
OTH = [(2*pr + h, rho) for pr in range(1, 4) for rho in range(2) for h in range(2)]
PORD = [(m,rho,sl) for rho in range(2) for sl in range(2) for m in 'qkv']
PORD += [(m,rho,sl) for (sl,rho) in OTH for m in 'qk']
HELD = [('v',rho,sl) for (sl,rho) in OTH]
def blocks():
    loc = {}
    for i, b in enumerate(PORD[:10]): loc[b] = ('es', i)
    for i, b in enumerate(OORD[-7:]): loc[b] = ('ls', i)
    n = 0
    for b in PORD + HELD + OORD:
        if b in loc: continue
        loc[b] = ('a', 8*n) if n < 32 else ('v', 136 + 8*(n-32)); n += 1
    assert n == 47
    return loc
LOC = blocks()
def breg(b):
    k, i = LOC[b]
    if k == 'es': return 'v', ES0 + 8*i
    if k == 'ls': return 'v', LS0 + 8*i
    return k, i
def B8(b):
    k, i = breg(b); return f'{k}[{i}:{i+7}]'
def ldsaddr(off):
    if off < 65536 - 8192: return vMem, off
    if off < 65536: return vMem, off
    if off < 131072: return vMH1, off - 65536
    return vMH2, off - 131072
def ma(rho, slot):
    b = (F0R if rho else F0) + 4*slot if slot < 2 else FO + 4*OTH.index((slot, rho))
    return b
def smf(b):
    m, rho, slot = b
    acc = {'q': AQ, 'k': AK, 'v': AV}[m]
    f = ma(rho, slot)
    return f'v_smfmac_f32_16x16x64_bf16 v[{acc}:{acc+3}], v[{f}:{f+3}], {B8(b)}, v{vIdx}'
def stage_reads(kind, idxs):
    out = []
    for i in idxs:
        base, r0 = (L_ES, ES0) if kind == 'es' else (L_LS, LS0)
        for h in range(2):
            va, off = ldsaddr(base + i*8192 + h*1024)
            out.append(f'ds_read_b128 v[{r0+8*i+4*h}:{r0+8*i+4*h+3}], v{va} offset:{off}')
    return out
def weave(a, M, F, per=2, lead=0):
    F = list(F)
    for _ in range(lead):
        if F: a(F.pop(0))
    for m in M:
        a(m)
        for _ in range(per):
            if F: a(F.pop(0))
    for f in F: a(f)

def poll(a, name, issue, check, cnt=0):
    a(f's_mov_b32 s{sSPIN}, 0')
    a.label(name)
    for l in issue: a(l)
    a(f's_waitcnt vmcnt({cnt})')
    for l in check: a(l)
    a(f's_cbranch_vccz {name}_ok')
    a(f's_add_u32 s{sSPIN}, s{sSPIN}, 1\ns_cmp_lt_u32 s{sSPIN}, 0x200000\ns_cbranch_scc1 {name}')
    a('s_branch L_end')
    a.label(name + '_ok')

def wait_word(a, name, srd, soff, target, v=0, sleep=2):
    a(f's_mov_b32 s{sSPIN}, 0\nv_mov_b32 v{v+1}, 0')
    a.label(name)
    a(f'buffer_load_dword v{v}, v{v+1}, {S(srd)}, {soff} offen sc1\ns_waitcnt vmcnt(0)')
    a(f'v_readfirstlane_b32 s{sT2}, v{v}')
    a(f's_cmp_ge_u32 s{sT2}, {target}\ns_cbranch_scc1 {name}_ok')
    a(f's_sleep {sleep}\ns_add_u32 s{sSPIN}, s{sSPIN}, 1\ns_cmp_lt_u32 s{sSPIN}, 0x400000\ns_cbranch_scc1 {name}')
    a('s_branch L_end')
    a.label(name + '_ok')

VT = 36
KPK = [f'v_cvt_pk_bf16_f32 v{PUB}, v{AK}, v{AK+1}', f'v_cvt_pk_bf16_f32 v{PUB+1}, v{AK+2}, v{AK+3}']
CANON = f'v_min_u32 v{PUB}, -2, v{PUB}'

def progress(a, name, v, need_s, first=0):
    a(f's_mov_b32 s{sSPIN}, 0')
    a.label(name)
    a(f'v_readlane_b32 s{sT}, v{v}, 0\nv_readlane_b32 s{sLIM}, v{v}, 1\ns_min_u32 s{sT}, s{sT}, s{sLIM}')
    a(f'v_readlane_b32 s{sLIM}, v{v}, 2\ns_min_u32 s{sT}, s{sT}, s{sLIM}\nv_readlane_b32 s{sLIM}, v{v}, 3\ns_min_u32 s{sT}, s{sT}, s{sLIM}\ns_lshl_b32 s{sT}, s{sT}, 1')
    a(f's_cmp_gt_u32 s{sT}, {need_s}\ns_cbranch_scc1 {name}_ok')
    a(f's_sleep 2\nbuffer_load_dword v{v}, v{v+1}, {S(sWS)}, s{sFL} offen sc1\ns_waitcnt vmcnt(0)')
    a(f's_add_u32 s{sSPIN}, s{sSPIN}, 1\ns_cmp_lt_u32 s{sSPIN}, 0x400000\ns_cbranch_scc1 {name}\ns_branch L_end')
    a.label(name + '_ok')
    a(f's_and_b32 s{sLIM}, s{sT}, -8\ns_cmp_gt_u32 s{sLIM}, {need_s}\ns_cselect_b32 s{sLIM}, s{sLIM}, s{sT}')
    if first:
        a(f's_cmp_ge_u32 s{sT}, {first}\ns_cselect_b32 s{sLIM}, {first}, s{sLIM}\ns_cmp_eq_u32 s{sT}, 64\ns_cselect_b32 s{sLIM}, 64, s{sLIM}')
    a(f's_sub_u32 s{sLIM}, s{sLIM}, 1\ns_mov_b32 s{sSPIN}, 0')
VPK = [f'v_cvt_pk_bf16_f32 v{PUB+2}, v{AV}, v{AV+1}', f'v_cvt_pk_bf16_f32 v{VT}, v{AV+2}, v{AV+3}',
       f'v_cvt_pk_bf16_f32 v{VT+1}, v{AV+1}, v{AV}', f'v_cvt_pk_bf16_f32 v{PUB+3}, v{AV+3}, v{AV+2}',
       f'v_permlane32_swap_b32 v{PUB+2}, v{VT}', f'v_permlane32_swap_b32 v{VT+1}, v{PUB+3}']
RARE_AT = 34

def role_chain(a, cfg):
    a.comment('---- chain head')
    stamp(a, cfg, 0)
    assert not cfg.x4
    vS1, vS2, vTR, vTQ = 96, 97, 98, 100
    T = 110
    a(f'v_and_b32 v{T}, 7, v0\nv_lshlrev_b32 v{T}, 4, v{T}')
    a(f'v_bfe_u32 v{T+1}, v0, 5, 1\nv_bfe_u32 v{T+2}, v0, 4, 1\nv_bfe_u32 v{T+3}, v0, 2, 1\nv_bfe_u32 v{T+4}, v0, 3, 1')
    a(f'v_lshl_add_u32 v{vS1}, v{T+1}, 15, v{T}\nv_lshl_add_u32 v{vS1}, v{T+4}, 13, v{vS1}\nv_lshl_add_u32 v{vS1}, v{T+2}, 16, v{vS1}')
    sQ, sK, sV, sO = 68, 72, 76, sR1
    chunks = [(m, (sg, ch)) for m in 'qkv' for sg in (0, 1, 4, 5) for ch in range(2)] + [('o', (sg, z)) for sg in range(4) for z in range(2)]
    ops = []
    def waitfor(tag):
        last = max(i for i, t in enumerate(ops) if t == tag)
        a(f's_waitcnt vmcnt({len(ops) - 1 - last})')
    sB1, sB2, s2W = 96, 97, 98
    a(f's_lshl_b32 s{sB1}, s{sIDX}, 8\ns_lshr_b32 s{sT}, s{sW}, 1\ns_lshl_b32 s{sT}, s{sT}, 7\ns_add_u32 s{sB1}, s{sB1}, s{sT}')
    a(f's_lshl_b32 s{s2W}, s{sW}, 1\ns_mul_i32 s{sG}, s{sW}, 20480\ns_waitcnt lgkmcnt(0)')
    srd(a, sQ, P(5), 512*8192)
    def issue(ci):
        m, x = chunks[ci]
        a(f's_add_u32 m0, s{sG}, {(ci % 5) * 4096}')
        if m != 'o':
            a(f's_xor_b32 s{sT}, s{s2W}, {x[0]}\ns_lshl_b32 s{sT}, s{sT}, 19\ns_add_u32 s{sT}, s{sT}, s{sB1}')
            if x[1]: a(f's_add_u32 s{sT}, s{sT}, {32*8192}')
            rows = [2*(c>>1) + 16*(c&1) for c in range(4)]; rs = 8192; vs = vS1; sr = {'q': sQ, 'k': sK, 'v': sV}[m]
        else:
            sg, z = x
            a(f's_xor_b32 s{sT}, s{sW}, {sg}\ns_lshl_b32 s{sT}, s{sT}, 15\ns_add_u32 s{sT}, s{sT}, s{sB2}')
            if z: a(f's_add_u32 s{sT}, s{sT}, 128')
            rows = [8*(c>>1) + 2*(c&1) for c in range(4)]; rs = 1024; vs = vS2; sr = sO
        for c in range(4):
            if c: a(f's_add_u32 s{sT}, s{sT}, {((rows[c]-rows[c-1])*rs) & 0xffffffff:#x}\ns_add_u32 m0, m0, 1024')
            a(f'buffer_load_dwordx4 v{vs}, {S(sr)}, s{sT} offen lds'); ops.append(ci)
    for ci in range(cfg.depth): issue(ci)
    code_warm(a, cfg)
    args_ready(a)
    srd(a, sK, P(6), 512*8192); srd(a, sV, P(7), 512*8192); srd(a, sO, P(8), 4096*1024)
    a(f's_lshl_b32 s{sB2}, s{sIDX}, 17\ns_lshl_b32 s{sT}, s{sW}, 8\ns_add_u32 s{sB2}, s{sB2}, s{sT}')
    a(f'v_lshlrev_b32 v{vL16}, 4, v0\nv_and_b32 v{vTM}, 1, v0\nv_xor_b32 v{vTM}, 1, v{vTM}')
    a(f's_lshl_b32 s{sT}, s{sW}, 11\nv_add_u32 v{vMem}, s{sT}, v{vL16}')
    a(f'v_add_u32 v{vMH1}, 0x10000, v{vMem}\nv_add_u32 v{vMH2}, 0x20000, v{vMem}')
    a(f'v_lshl_add_u32 v{vS2}, v{T+2}, 14, v{T}\nv_lshl_add_u32 v{vS2}, v{T+1}, 12, v{vS2}\nv_lshl_add_u32 v{vS2}, v{T+4}, 10, v{vS2}')
    a(f'v_and_b32 v{T+5}, 3, v0\nv_lshlrev_b32 v{T+5}, 3, v{T+5}\nv_lshrrev_b32 v{T+6}, 4, v0')
    a(f'v_lshl_add_u32 v{vTR}, v{T+6}, 8, v{T+5}\nv_lshl_add_u32 v{vTR}, v{T+3}, 7, v{vTR}\nv_lshl_add_u32 v{vTR}, v{T+4}, 6, v{vTR}\nv_add_u32 v{vTR}, s{sG}, v{vTR}')
    a(f'v_lshrrev_b32 v{T+6}, 2, v0\nv_lshl_add_u32 v{T+5}, v{T+6}, 7, v{T+5}\nv_lshl_add_u32 v{T+5}, v{T+4}, 5, v{T+5}')
    a(f's_and_b32 s{sT}, s{sW}, 1\ns_lshl_b32 s{sT}, s{sT}, 6\nv_add_u32 v{T+5}, s{sT}, v{T+5}\nv_xor_b32 v{T+6}, 256, v{T+5}')
    a(f's_xor_b32 s{sT}, s{sW}, 1\ns_mul_i32 s{sT}, s{sT}, 20480')
    a(f'v_add_u32 v{vTQ}, s{sG}, v{T+5}\nv_add_u32 v{vTQ+1}, s{sG}, v{T+6}\nv_add_u32 v{vTQ+2}, s{sT}, v{T+5}\nv_add_u32 v{vTQ+3}, s{sT}, v{T+6}')
    a(f'v_and_b32 v{T}, 15, v0\nv_lshrrev_b32 v{T+1}, 4, v0')
    a(f's_lshl_b32 s{sT}, s{sW}, 10')
    a(f'v_bfe_u32 v{T+3}, v0, 4, 1\nv_bfe_u32 v{T+4}, v0, 5, 1')
    a(f'v_bfe_u32 v{T+2}, v0, 2, 1\nv_xor_b32 v{T+2}, v{T+2}, v{T+3}\nv_lshlrev_b32 v{T+2}, 4, v{T+2}')
    a(f'v_lshl_add_u32 v{vKw}, v{T}, 5, v{T+2}\nv_lshl_add_u32 v{vKw}, v{T+4}, 9, v{vKw}\nv_add_u32 v{vKw}, s{sT}, v{vKw}')
    a(f'v_and_b32 v{T+2}, 1, v0\nv_xor_b32 v{T+2}, v{T+2}, v{T+3}\nv_lshlrev_b32 v{T+2}, 4, v{T+2}\nv_bfe_u32 v{T+5}, v0, 1, 1\nv_lshl_add_u32 v{T+2}, v{T+5}, 3, v{T+2}')
    a(f'v_lshrrev_b32 v{T+5}, 2, v0\nv_lshl_add_u32 v{vTX}, v{T+5}, 5, v{T+2}')
    a(f'v_and_b32 v{T+5}, 7, v0\nv_bfe_u32 v{T+6}, v0, 3, 1\nv_lshlrev_b32 v{vOw}, 7, v{T+1}\nv_lshl_add_u32 v{vOw}, v{T+5}, 4, v{vOw}\nv_lshl_add_u32 v{vOw}, v{T+6}, 3, v{vOw}')
    a(f's_lshl_b32 s{sT}, s{sW}, 9\nv_add_u32 v{vOw}, s{sT}, v{vOw}')
    if cfg.x4: a(f'v_and_b32 v{T+5}, 3, v0\nv_lshlrev_b32 v{T+5}, 1, v{T+5}\nv_bfe_u32 v{T+6}, v0, 2, 2')
    a(f'v_lshlrev_b32 v{vPst}, 3, v{T+5}\nv_lshl_add_u32 v{vPst}, v{T+3}, 11, v{vPst}\nv_lshl_add_u32 v{vPst}, v{T+6}, 12, v{vPst}\nv_lshl_add_u32 v{vPst}, v{T+4}, 14, v{vPst}')
    a(f's_lshl_b32 s{sT}, s{sW}, 16\ns_lshl_b32 s{sT2}, s{sIDX}, 6\ns_add_u32 s{sT}, s{sT}, s{sT2}\nv_add_u32 v{vPst}, s{sT}, v{vPst}')
    a(f'v_and_b32 v{T+6}, 3, v0\nv_lshlrev_b32 v{vMst}, 2, v{T+6}\nv_lshl_add_u32 v{vMst}, v{T+1}, 4, v{vMst}')
    a(f'v_mov_b32 v{vIdx}, 0x4444\nv_mov_b32 v{T+7}, 0xeeee\nv_cmp_lt_u32 vcc, 7, v{T}\nv_cndmask_b32 v{vIdx}, v{vIdx}, v{T+7}, vcc')
    a(f'v_bfe_u32 v{T+7}, v0, 2, 1\nv_lshlrev_b32 v{T+7}, 4, v{T+7}\nv_mov_b32 v{T+8}, 0x3f80\nv_lshlrev_b32 v{T+7}, v{T+7}, v{T+8}')
    a(f'v_cmp_eq_u32 vcc, 0, v{T+6}\nv_cndmask_b32 v{SEL}, 0, v{T+7}, vcc\nv_cndmask_b32 v{SEL+2}, 0, v{T+7}, vcc')
    a(f'v_cmp_eq_u32 vcc, 1, v{T+6}\nv_cndmask_b32 v{SEL+1}, 0, v{T+7}, vcc\nv_cndmask_b32 v{SEL+3}, 0, v{T+7}, vcc')
    a(f's_lshr_b32 s{sT}, s{sIDX}, 3\ns_lshl_b32 s{sT}, s{sT}, 5\ns_and_b32 s{sT2}, s{sIDX}, 4\ns_lshl_b32 s{sT2}, s{sT2}, 1\ns_add_u32 s{sT}, s{sT}, s{sT2}')
    a(f's_and_b32 s{sT2}, s{sIDX}, 3\ns_add_u32 s{sT}, s{sT}, s{sT2}\ns_and_b32 s{sT2}, s{sW}, 2\ns_lshl_b32 s{sT2}, s{sT2}, 3\ns_add_u32 s{sT}, s{sT}, s{sT2}')
    a(f's_and_b32 s{sT2}, s{sW}, 1\ns_lshl_b32 s{sT2}, s{sT2}, 2\ns_add_u32 s{sT}, s{sT}, s{sT2}')
    a(f's_lshl_b32 s{sRED}, s{sT}, 11\ns_add_u32 s{sRED}, s{sRED}, {PART:#x}\ns_lshl_b32 s{sMST}, s{sT}, 6\ns_add_u32 s{sMST}, s{sMST}, {MEMS:#x}')
    a(f's_mov_b32 s{sMEM}, {MEMS:#x}\ns_mov_b32 s{sPART}, {PART:#x}\ns_mov_b32 s{sPART2}, {PART+0x8000:#x}\ns_mov_b32 s{sP1}, {PART+0x2000:#x}\ns_mov_b32 s{sP3}, {PART+0xa000:#x}')
    srd(a, sR2, P(4), 8192)
    U = 80
    for i in range(4): a(f'v_mov_b32 v{U+4+i}, -1')
    if cfg.x4:
        a(f's_lshr_b32 s{sT2}, s{sT}, 3\ns_lshl_b32 s{sT2}, s{sT2}, 6\ns_bfe_u32 s{sS}, s{sT}, 0x20001\ns_lshl_b32 s{sS}, s{sS}, 3\ns_add_u32 s{sT2}, s{sT2}, s{sS}')
        a(f's_and_b32 s{sS}, s{sT}, 1\ns_lshl_b32 s{sS}, s{sS}, 12\ns_add_u32 s{sT2}, s{sT2}, s{sS}')
        a(f'v_lshlrev_b32 v{T+7}, 1, v{T+6}\nv_lshl_add_u32 v{T+7}, v{T+1}, 10, v{T+7}')
        a(f'buffer_load_ushort v{U}, v{T+7}, {S(sR2)}, s{sT2} offen\nbuffer_load_ushort v{U+1}, v{T+7}, {S(sR2)}, s{sT2} offen offset:32'); ops.extend(['m0', 'm0'])
        for so in (sPART, sPART2):
            a(f'buffer_store_dwordx4 v[{U+4}:{U+7}], v{vPst}, {S(sWS)}, s{so} offen sc1'); ops.append('i')
    else:
        a(f's_lshr_b32 s{sT2}, s{sT}, 1\ns_lshl_b32 s{sT2}, s{sT2}, 4\ns_and_b32 s{sS}, s{sT}, 1\ns_lshl_b32 s{sS}, s{sS}, 12\ns_add_u32 s{sT2}, s{sT2}, s{sS}')
        a(f'v_lshlrev_b32 v{T+7}, 2, v{T+6}\nv_lshl_add_u32 v{T+7}, v{T+1}, 10, v{T+7}')
        a(f'buffer_load_dword v{U}, v{T+7}, {S(sR2)}, s{sT2} offen'); ops.append('m0')
        for so in (sPART, sP1, sPART2, sP3):
            a(f'buffer_store_dwordx2 v[{U+4}:{U+5}], v{vPst}, {S(sWS)}, s{so} offen sc1'); ops.append('i')
    c = (128 ** -0.5) * math.log2(math.e)
    a(f's_mov_b32 s{sC}, {f2u(c):#x}\ns_mov_b32 s{sNC}, {f2u(-c):#x}')
    a(f's_lshl_b32 s{sT}, s{sIDX}, 21\ns_add_u32 s{sFL}, s{sT}, {FPR:#x}')
    a(f's_add_u32 s{sKX}, s{sT}, {KX:#x}\ns_add_u32 s{sVX}, s{sT}, {VX:#x}\ns_add_u32 s{sPUB}, s{sT}, {KVM+0x1000:#x}')
    a(f's_lshl_b32 s{sT}, s{sW}, 10\ns_add_u32 s{sPUB}, s{sPUB}, s{sT}')
    a(f's_mov_b32 s{sTAG}, 0')
    kxdma = [f's_mov_b32 m0, s{sM0K}',
             f'buffer_load_dwordx4 v{vMem}, {S(sWS)}, s{sKX} offen sc1 lds',
             f'buffer_load_dwordx4 v{vMem}, {S(sWS)}, s{sKX} offen offset:1024 sc1 lds',
             f's_add_u32 s{sKX}, s{sKX}, 0x8000']
    vxld = [f'buffer_load_dwordx4 v[{VXF}:{VXF+3}], v{vMem}, {S(sWS)}, s{sVX} offen sc1',
            f'buffer_load_dwordx4 v[{VXF+4}:{VXF+7}], v{vMem}, {S(sWS)}, s{sVX} offen offset:1024 sc1',
            f's_add_u32 s{sVX}, s{sVX}, 0x8000']
    def init_mem():
        waitfor('m0')
        if cfg.x4: a(f'v_lshl_or_b32 v{U}, v{U+1}, 16, v{U}')
        a(f'v_min_u32 v{U}, -2, v{U}')
        a(f's_mov_b32 exec_lo, 0x000f000f\ns_mov_b32 exec_hi, 0x000f000f')
        a(f'buffer_store_dword v{U}, v{vMst}, {S(sWS)}, s{sMST} offen sc1')
        a(f's_add_u32 s{sS}, s{sMST}, 0x2000\nbuffer_store_dword v{U+4}, v{vMst}, {S(sWS)}, s{sS} offen sc1')
        a('s_mov_b64 exec, -1'); ops.extend(['i', 'i'])
    def publish_id():
        waitfor('i'); a('s_barrier')
        a(f's_getreg_b32 s{sT}, hwreg(HW_REG_XCC_ID)\ns_and_b32 s{sT}, s{sT}, 0xf\ns_add_u32 s{sT}, s{sT}, 1')
        a(f's_lshl_b32 s{sT2}, s{sIDX}, 2\nv_mov_b32 v{U}, s{sT}\nv_mov_b32 v{U+1}, 0')
        a(f's_cmp_lg_u32 s{sW}, 0\ns_cbranch_scc1 L_c_noid')
        a(f's_mov_b64 exec, 1\nbuffer_store_dword v{U}, v{U+1}, {S(sDBG)}, s{sT2} offen offset:128 sc1\ns_mov_b64 exec, -1')
        a('L_c_noid:')
    idld = f'buffer_load_dword v{U+2}, v{U+3}, {S(sDBG)}, 0 offen sc1'
    def ask():
        a(f'v_lshrrev_b32 v{U+3}, 2, v{vL16}\nv_add_u32 v{U+3}, 128, v{U+3}\nv_mov_b32 v{U+10}, 1\ns_mov_b32 exec_lo, 0\nv_mov_b32 v{U+3}, 0\nv_mov_b32 v{U+10}, 192\ns_mov_b32 exec_lo, -1')
        a(idld); ops.append('q')
    def answer():
        waitfor('q')
        a(f's_mov_b32 s{sSPIN}, 0')
        a('L_c_ids:')
        a(f'v_cmp_gt_u32 vcc, v{U+10}, v{U+2}\ns_cbranch_vccz L_c_ids_ok')
        a(f's_sleep 2\n{idld}\ns_waitcnt vmcnt(0)')
        a(f's_add_u32 s{sSPIN}, s{sSPIN}, 1\ns_cmp_lt_u32 s{sSPIN}, 0x400000\ns_cbranch_scc1 L_c_ids\ns_branch L_end')
        a('L_c_ids_ok:')
        a(f'v_readfirstlane_b32 s{sT}, v{U+2}')
        a(f'v_cmp_ne_u32 s[80:81], s{sT}, v{U+2}')
        a(f'v_bfe_u32 v{U+9}, v{vL16}, 4, 2\nv_lshlrev_b32 v{U+9}, 7, v{U+9}\nbuffer_load_dword v{U+8}, v{U+9}, {S(sWS)}, s{sFL} offen sc1'); ops.append('p')
        if cfg.touch:
            a(f's_xor_b32 s{sT}, s{sMEM}, 0x2000')
            for va, so in ((vL16, sRED), (vMem, sMEM), (vMem, sT)):
                for z in range(2):
                    a(f'buffer_load_dwordx4 v[92:95], v{va}, {S(sWS)}, s{so} offen offset:{1024*z} sc1'); ops.append('t')
    def answer2():
        waitfor('p')
        progress(a, 'L_c_g0', U+8, 0)
        a(f'v_lshlrev_b32 v{U+3}, 2, v{vL16}\nbuffer_load_dword v{U+8}, v{U+3}, {S(sWS)}, s{sKX} offen sc1\nbuffer_load_dword v{U+8}, v{U+3}, {S(sWS)}, s{sKX} offen offset:4032 sc1')
        a(f'buffer_load_dword v{U+8}, v{U+3}, {S(sWS)}, s{sVX} offen sc1\nbuffer_load_dword v{U+8}, v{U+3}, {S(sWS)}, s{sVX} offen offset:4032 sc1')
        a(f'v_mov_b32 v105, v{U+9}\nbuffer_load_dword v104, v105, {S(sWS)}, s{sFL} offen sc1')
        ops.extend(['x'] * 5)
    TMP = 112
    n = len(chunks)
    for ci in range(n):
        m, x = chunks[ci]
        waitfor(ci)
        if ci <= 24: a('s_barrier')
        if ci + cfg.depth < n: issue(ci + cfg.depth)
        if ci == 2: init_mem()
        if ci == 8: publish_id()
        if ci == n - 12: ask()
        if ci == n - 7: answer()
        if ci == n - 2: answer2()
        post = []
        if m != 'o':
            sg, ch = x
            parts = [((m, rho, sg ^ (2*pt)), vTQ + 2*pt + rho, [(2*ch + c1, c1*2048) for c1 in range(2)]) for pt in range(2) for rho in range(2)]
        else:
            parts = [(('o', 2*x[1]+t, x[0]), vTR, [(c, c*1024 + t*32) for c in range(4)]) for t in range(2)]
        for t, (b, va, cl) in enumerate(parts):
            k, i = LOC[b]
            if k == 'es': k, r0 = 'v', TMP + 4*t - 4*x[1]; post.append((i, TMP + 4*t))
            elif k == 'ls': k, r0 = 'v', 24 + 8*i
            else: r0 = i
            for c, off in cl:
                a(f'ds_read_b64_tr_b16 {k}[{r0+2*c}:{r0+2*c+1}], v{va} offset:{(ci%5)*4096 + off}')
        a('s_waitcnt lgkmcnt(0)')
        for i, r0 in post:
            va, off = ldsaddr(L_ES + i*8192 + x[1]*1024)
            a(f'ds_write_b128 v{va}, v[{r0}:{r0+3}] offset:{off}')
        if post: a('s_waitcnt lgkmcnt(0)')
    a('s_barrier')
    stamp(a, cfg, 1)
    if cfg.x_stop:
        stamp(a, cfg, 2); stamp(a, cfg, 3); return
    a(f's_lshl_b32 s{sT}, s{sW}, 11\ns_add_u32 s{sM0K}, s{sT}, {L_KX}')
    for l in kxdma: a(l)
    a('s_mov_b32 s46, 0x000f000f\ns_mov_b32 s47, 0x000f000f')
    a(f's_mov_b32 s{sS}, 0\ns_mov_b32 s{sKXB}, {L_KX}\ns_xor_b32 m0, m0, {L_KX ^ (2*L_KX)}\ns_mov_b32 s15, -0x1000')
    for i in range(7):
        for h in range(2):
            va, off = ldsaddr(L_LS + i*8192 + h*1024)
            a(f'ds_write_b128 v{va}, v[{24+8*i+4*h}:{24+8*i+4*h+3}] offset:{off}')
    a('s_waitcnt vmcnt(2) lgkmcnt(0)')
    progress(a, 'L_c_g1', 104, cfg.need1, cfg.need1 + 1)
    for l in stage_reads('es', range(10)): a(l)
    for i in range(16): a(f'v_mov_b32 v{AV+i}, 0')
    stamp(a, cfg, 2)
    if cfg.stamps: a('s_memtime s[92:93]')
    if cfg.prof:
        for i in range(12): a(f's_mov_b32 s{68+i}, 0')
    a('s_waitcnt lgkmcnt(0)')
    a('s_cmp_lg_u32 s80, 0\ns_cbranch_scc1 L_cs_step')
    a('s_branch L_cs_step' if cfg.force_slow else 's_branch L_cf_step')
    for pre, sc in (('L_cf', ''), ('L_cs', ' sc1')):
        step_loop(a, cfg, pre, sc, kxdma, vxld)
    a('L_c_last:')
    for l in stage_reads('es', range(10))[cfg.es3:]: a(l)
    for i in range(0, 12, 2): a(f'v_mov_b64 v[{AV+i}:{AV+i+1}], 0')
    a('L_c_lp:')
    for z in range(2): a(f'buffer_load_dwordx4 v[{F0+4*z}:{F0+4*z+3}], v{vMem}, {S(sWS)}, s{sMEM} offen offset:{1024*z} sc1')
    a(f's_waitcnt vmcnt(0)\nv_max_u32 v0, v{F0}, v{F0+4}\nv_cmp_eq_u32 vcc, -1, v0\ns_cbranch_vccz L_c_lok')
    a(f's_add_u32 s{sSPIN}, s{sSPIN}, 1\ns_cmp_lt_u32 s{sSPIN}, 0x400000\ns_cbranch_scc1 L_c_lp\ns_branch L_end')
    a('L_c_lok:')
    a(f'buffer_store_dwordx4 v[{PUB}:{PUB+3}], v{vL16}, {S(sWS)}, s{sPUB} offen sc1\ns_add_u32 s{sPUB}, s{sPUB}, 0x8000')
    for z in range(2): a(f'ds_write_b128 v{vMem}, v[{F0+4*z}:{F0+4*z+3}] offset:{L_MEM+1024*z}')
    for i in range(8): a(f'v_mov_b32_dpp v{F0R+i}, v{F0+i} row_ror:8 row_mask:0xf bank_mask:0xf')
    a('s_waitcnt lgkmcnt(2)')
    for b in PORD[:6]:
        if b[0] != 'q': a(smf(b))
    a('s_waitcnt lgkmcnt(0)\ns_barrier')
    for f, (sl, rho) in enumerate(OTH):
        if f % 2 == 0: a(f'v_xor_b32 v0, {(sl//2)*2048 + rho*128}, v{vMem}')
        a(f'ds_read_b128 v[{FO+4*f}:{FO+4*f+3}], v0 offset:{L_MEM + (sl%2)*1024}')
    for b in PORD[6:12]:
        if b[0] != 'q': a(smf(b))
    for f, (sl, rho) in enumerate(OTH):
        a(f's_waitcnt lgkmcnt({11-f})'); a(smf(('k', rho, sl))); a(smf(('v', rho, sl)))
    for l in KPK + [CANON] + VPK: a(l)
    a(f'buffer_store_dwordx4 v[{PUB}:{PUB+3}], v{vL16}, {S(sWS)}, s{sPUB} offen sc1')
    a('L_c_done:')
    if cfg.steplog >= 0:
        a(f's_lshl_b32 s{sT}, s{sIDX}, 2\ns_add_u32 s{sT}, s{sT}, s{sW}\ns_lshl_b32 s{sT}, s{sT}, 7\ns_add_u32 s{sT}, s{sT}, {TS+0x8000:#x}\nv_mov_b32 v25, 0')
        for i in range(26):
            a(f'v_mov_b32 v24, s{16+i}\nbuffer_store_dword v24, v25, {S(sWS)}, s{sT} offen offset:{4*i}')
    stamp(a, cfg, 3)
    if cfg.stamps: a('s_memtime s[94:95]')
    if cfg.diag:
        a('s_waitcnt lgkmcnt(0)')
        if cfg.diag == 1: a('s_add_u32 s52, s84, 20000')
        if cfg.diag == 5: a('s_add_u32 s52, s100, 20000')
        if cfg.diag == 2: a('s_sub_u32 s52, s88, s84\ns_lshl_b32 s52, s52, 2\ns_add_u32 s52, s52, s84\ns_add_u32 s52, s52, 15000')
        if cfg.diag == 3: a('s_sub_u32 s52, s90, s84\ns_lshl_b32 s52, s52, 1\ns_add_u32 s52, s52, s84')
        if cfg.diag == 4: a('s_sub_u32 s52, s94, s92\ns_lshr_b32 s52, s52, 4\ns_add_u32 s52, s52, s84\ns_add_u32 s52, s52, 10000')
        a('L_diag:\ns_memrealtime s[54:55]\ns_waitcnt lgkmcnt(0)\ns_sub_u32 s54, s54, s52\ns_cmp_lt_i32 s54, 0\ns_cbranch_scc1 L_diag')
    if cfg.prof:
        a(f's_lshl_b32 s{sT}, s{sIDX}, 2\ns_add_u32 s{sT}, s{sT}, s{sW}\ns_lshl_b32 s{sT}, s{sT}, 6\ns_add_u32 s{sT}, s{sT}, {TS+0x8000:#x}\nv_mov_b32 v25, 0')
        for i in range(12):
            a(f'v_mov_b32 v24, s{68+i}\nbuffer_store_dword v24, v25, {S(sWS)}, s{sT} offen offset:{4*i}')

def step_loop(a, cfg, pre, sc, kxdma, vxld):
    cnt = [0]
    PAIRS = list(range(16, 42, 2)) + list(range(68, 80, 2))
    def ts(trace_only=False):
        if (cfg.prof and not trace_only) or cfg.trace:
            p = PAIRS[cnt[0]]
            a(f's_memtime s[{p}:{p+1}]'); cnt[0] += 1
    DPP = 'row_mask:0xf bank_mask:0xf'
    LO, HI = 'row_mask:0xf bank_mask:0x3', 'row_mask:0xf bank_mask:0xc'
    idn = 'quad_perm:[0,1,2,3]'
    ESR = stage_reads('es', range(10))
    def warm(n):
        for i in range(n): a(f'v_mov_b32 v{vIdx}, v{vIdx}\ns_nop 1')
    def count(i):
        if cfg.prof: a(f's_add_u32 s{78+i}, s{78+i}, 63')
    def bound(back):
        a(f's_add_u32 s{sSPIN}, s{sSPIN}, 1\ns_cmp_lt_u32 s{sSPIN}, 0x400000\ns_cbranch_scc1 {back}\ns_branch L_end')
    def ld2(r, va, so): return f'buffer_load_dwordx4 v[{r}:{r+3}], v{va}, {S(sWS)}, s{so} offen sc1\nbuffer_load_dwordx4 v[{r+4}:{r+7}], v{va}, {S(sWS)}, s{so} offen offset:1024 sc1'
    pmA, pmB = ld2(F0, vMem, sMEM), ld2(F0R, 0, sMEM)
    RLB = 96
    assert cfg.es5 <= 18
    ppA, ppB = ld2(RL, vL16, sRED), ld2(RLB, vL16, sRED)
    def chk_mem(r): return f'v_cmp_eq_u32 vcc, -1, v{r}\nv_cmp_eq_u32 s[50:51], -1, v{r+4}\ns_or_b64 vcc, vcc, s[50:51]'
    def red(r): return f'v_smfmac_f32_16x16x64_bf16 v[{RDA}:{RDA+3}], v[{SEL}:{SEL+3}], v[{r}:{r+7}], v{vIdx}'
    def chk_part(r): return f'{red(r)}\nv_bitop3_b32 v0, v{r}, v{r+4}, s{sTAG} bitop3:0x7e\nv_and_b32 v0, 1, v0\nv_cmp_ne_u32 vcc, 0, v0'
    zr = f's_nop 3\nv_mov_b64 v[{RDA}:{RDA+1}], 0\nv_mov_b64 v[{RDA+2}:{RDA+3}], 0'
    def mld(z, rho): return f'buffer_load_dwordx4 v[{(F0R if rho else F0)+4*z}:{(F0R if rho else F0)+4*z+3}], v{0 if rho else vMem}, {S(sWS)}, s{sMEM} offen offset:{1024*z} sc1'
    PM_ = [smf(b) for b in PORD]
    NS = cfg.spos
    def masked(l):
        if cfg.mask: a('s_mov_b64 exec, vcc')
        a(l)
        if cfg.mask: a('s_mov_b64 exec, -1')
    def twin(z, src, dst):
        for i in range(4): a(f'v_mov_b32_dpp v{dst+4*z+i}, v{src+4*z+i} row_ror:8 {DPP}')
    def wr(z, rho): a(f'ds_write_b128 v{0 if rho else vMem}, v[{(F0R if rho else F0)+4*z}:{(F0R if rho else F0)+4*z+3}] offset:{L_MEM+1024*z}')
    a.label(f'{pre}_pm0_loop')
    masked(pmB); count(0)
    a('s_waitcnt vmcnt(2)'); a(chk_mem(F0)); a(f's_cbranch_scc1 {pre}_pm0_b')
    wr(0, 0); wr(1, 0)
    if NS: a('s_waitcnt vmcnt(0)')
    a(f's_branch {pre}_pm0_go')
    a.label(f'{pre}_pm0_retry')
    if NS:
        a(f's_waitcnt vmcnt({NS})'); a(chk_mem(F0R)); a(f's_cbranch_scc0 {pre}_pm0_bok2')
    a('s_mov_b64 vcc, -1')
    a.label(f'{pre}_pm0_b')
    masked(pmA); count(0)
    a('s_waitcnt vmcnt(2)'); a(chk_mem(F0R)); a(f's_cbranch_scc0 {pre}_pm0_bok')
    bound(f'{pre}_pm0_loop')
    a.label(f'{pre}_pm0_bok')
    if NS: a('s_waitcnt vmcnt(0)')
    a.label(f'{pre}_pm0_bok2')
    wr(0, 1); wr(1, 1); twin(0, F0R, F0); twin(1, F0R, F0)
    a.label(f'{pre}_pm0_go')
    for m in PM_[:3]: a(m)
    a(f's_branch {pre}_pm1_join')
    a.label(f'{pre}_pm1_first')
    if NS:
        a(f's_waitcnt vmcnt({NS})\nv_cmp_eq_u32 s[50:51], -1, v{F0R+4}\ns_cmp_eq_u64 s[50:51], 0\ns_cbranch_scc1 {pre}_pm1_tw')
    a.label(f'{pre}_pm1_retry')
    masked(mld(1, 0)); count(0)
    a(f's_waitcnt vmcnt(1)\nv_cmp_eq_u32 vcc, -1, v{F0R+4}\ns_cbranch_vccnz {pre}_pm1_again')
    if NS: a('s_waitcnt vmcnt(0)')
    a.label(f'{pre}_pm1_tw')
    wr(1, 1); twin(1, F0R, F0)
    a(f's_nop 0\ns_branch {pre}_pm1_join')
    a.label(f'{pre}_pm1_again')
    masked(mld(1, 1)); count(0); a(f's_waitcnt vmcnt(1)\nv_cmp_eq_u32 vcc, -1, v{F0+4}\ns_cbranch_vccnz {pre}_pm1_more')
    wr(1, 0)
    if NS: a('s_waitcnt vmcnt(0)')
    a(f's_branch {pre}_pm1_join')
    a.label(f'{pre}_pm1_more')
    bound(f'{pre}_pm1_retry')
    a.label(pre + '_pp_retry')
    masked(ppA); count(1); a(zr)
    if cfg.dual1:
        a('s_waitcnt vmcnt(2)'); a(chk_part(RLB))
        a(f's_cbranch_vccz {pre}_pp_join')
        masked(ppB); count(1); a(zr)
    bound(pre + '_pp')
    a.label(pre + '_special')
    a(f's_waitcnt vmcnt(0)\ns_cmp_eq_u32 s{sS}, 63\ns_cbranch_scc1 L_c_last')
    a(f'v_bfe_u32 v{F0+1}, v{vL16}, 4, 2\nv_lshlrev_b32 v{F0+1}, 7, v{F0+1}\nbuffer_load_dword v{F0}, v{F0+1}, {S(sWS)}, s{sFL} offen sc1\ns_add_u32 s{sT2}, s{sS}, 1\ns_waitcnt vmcnt(0)')
    progress(a, pre + '_gw', F0, f's{sT2}')
    if cfg.align >= 0:
        a(f's_branch {pre}_step')
        a.raw('.p2align 6')
        for _ in range(cfg.align): a.raw('  s_nop 0')

    a.label(pre + '_step')
    ts()
    a(f'v_xor_b32 v0, 128, v{vMem}')
    ZA = [f'v_mov_b64 v[{AV+i}:{AV+i+1}], 0' for i in range(0, 12, 2)]
    for l in ESR[cfg.es3:cfg.es4]: a(l)
    if cfg.lw & 1: a('s_waitcnt lgkmcnt(0)')
    a(mld(0, 0))
    for l in ESR[cfg.es4:cfg.es5]: a(l)
    if cfg.lw & 2: a('s_waitcnt lgkmcnt(0)')
    if cfg.zpos == 1:
        for l in ZA: a(l)
    for _ in range(cfg.sp2): a('s_nop 3')
    a(mld(1, 0))
    a('s_waitcnt vmcnt(4)')
    for l in ESR[cfg.es5:]: a(l)
    if cfg.lw & 4: a('s_waitcnt lgkmcnt(0)')
    if cfg.zpos == 2:
        for l in ZA: a(l)
    for _ in range(cfg.sp3): a('s_nop 3')
    a(mld(0, 1)); a(mld(1, 1))
    for l in [vxld[0], vxld[1], kxdma[1], kxdma[2]][:NS]: a(l)
    warm(cfg.wm2)
    a(f's_waitcnt vmcnt({3+NS}) lgkmcnt({min(8, 20 - cfg.es3) if cfg.lazy else 0})\nds_write_b128 v{vMem}, v[{F0}:{F0+3}] offset:{L_MEM}')
    a(f'v_cmp_eq_u32 vcc, -1, v{F0}\ns_cbranch_vccnz {pre}_pm0_retry')
    for m in PM_[:3]: a(m)
    a(f's_waitcnt vmcnt({2+NS})\nds_write_b128 v{vMem}, v[{F0+4}:{F0+7}] offset:{L_MEM+1024}')
    a(f'v_cmp_eq_u32 vcc, -1, v{F0+4}\ns_cbranch_vccnz {pre}_pm1_first')
    a.label(pre + '_pm1_join')
    ts()
    a(PM_[3]); a(f'v_xor_b32 v0, 2048, v{vMem}'); a(PM_[4]); a(PM_[5])
    a('s_waitcnt lgkmcnt(0)\ns_barrier')
    ts()
    R = []
    for f, (sl, rho) in enumerate(OTH):
        if f and f % 2 == 0: R.append(f'v_xor_b32 v0, {(sl//2)*2048 + rho*128}, v{vMem}')
        R.append(f'ds_read_b128 v[{FO+4*f}:{FO+4*f+3}], v0 offset:{L_MEM + (sl%2)*1024}')
    kxr = [f'v_add_u32 v0, s{sKXB}, v{vL16}'] + [f'ds_read_b128 v[{KXF+4*(2*u+T)}:{KXF+4*(2*u+T)+3}], v0 offset:{(T*4+u)*1024}' for u in range(4) for T in range(2)]
    pub = f'buffer_store_dwordx4 v[{PUB}:{PUB+3}], v{vL16}, {S(sWS)}, s{sPUB} offen sc1'
    side = ([] if cfg.x_nokv else [vxld[0], vxld[1], kxdma[1], kxdma[2]][NS:]) + ([] if cfg.x_nopub else [pub])
    fill = R + kxr
    for j, l in enumerate(side): fill.insert(cfg.vpos + j*cfg.vgap, l)
    for _ in range(2): a(fill.pop(0))
    a(f's_waitcnt vmcnt({NS})')
    issued = 2
    for i in range(6, len(PORD)):
        m, rho, sl = PORD[i]
        waited = False
        if sl >= 2:
            f = OTH.index((sl, rho))
            if m == 'q' and f % 2 == 0:
                assert f + 1 < issued
                a(f's_waitcnt lgkmcnt({min(15, issued - f - 2)})')
        a(PM_[i])
        if i == 11 or i == 23: ts()
        if fill:
            l = fill.pop(0); a(l)
            if l.startswith('ds_read'): issued += 1
    ts()
    HM = [smf(b) for b in HELD]
    h1, h2 = cfg.h1, cfg.h2
    assert not fill
    a(HM[0]); a('s_barrier'); a(HM[1]); a('s_nop 0'); assert cfg.bar2
    for m in HM[2:h1]: a(m); a('s_nop 0')
    a(f'v_cvt_pk_bf16_f32 v{AQ+3}, v{AQ+2}, v{AQ+3}\nv_cvt_pk_bf16_f32 v{AQ+2}, v{AQ}, v{AQ+1}')
    a(KPK[0]); a(KPK[1])
    a(f'ds_write_b128 v{vKw}, v[{AQ+2}:{AQ+5}] offset:{L_Q}')
    for m in HM[h1:h2]: a(m)
    a('s_waitcnt lgkmcnt(0)\ns_barrier')
    ts()
    qr = [f'ds_read_b64_tr_b16 v[{QKF+4*u+2*t}:{QKF+4*u+2*t+1}], v{vTX} offset:{L_Q + u*1024 + t*512}' for u in range(4) for t in range(2)]
    weave(a, HM[h2:], qr, 2, lead=2)
    SXM = []
    for u in range(4):
        for T in range(2):
            d = SX1 if T else SX
            cc = '0' if u == 0 else f'v[{d}:{d+3}]'
            kb = KXF + 4*(2*u+T)
            SXM.append(f'v_mfma_f32_16x16x32_bf16 v[{d}:{d+3}], v[{kb}:{kb+3}], v[{QKF+4*u}:{QKF+4*u+3}], {cc}')
    SMM = []
    for u in range(4):
        cc = '0' if u == 0 else f'v[{SM}:{SM+3}]'
        SMM.append(f'v_mfma_f32_16x16x32_bf16 v[{SM}:{SM+3}], v[{QKF+4*u}:{QKF+4*u+3}], v[{QKF+4*u}:{QKF+4*u+3}], {cc}')
    LSR = stage_reads('ls', range(7))
    X = SX
    C = [f'v_mov_b32_dpp v{X+i}, v{SX1+i} row_ror:8 {HI}' for i in range(4)]
    a('s_waitcnt lgkmcnt(4)'); a(SXM[0]); a(f'v_mov_b32 v{PM+1}, 0'); a(f'v_mov_b32 v{PM+2}, 0'); a(SXM[1]); a(LSR[0]); a(CANON)
    a(SXM[2]); a(LSR[1]); a(SXM[3]); a(LSR[2]); a('s_waitcnt lgkmcnt(3)')
    a(SXM[4]); a(LSR[3]); a(VPK[0]); a(SXM[5]); a(LSR[4]); a(VPK[1]); a(SXM[6]); a(LSR[5]); a(VPK[2]); a(SXM[7]); a(LSR[6]); a(VPK[3])
    a(SMM[0]); a(VPK[4]); a(SMM[1]); a(VPK[5]); a(SMM[2]); a(LSR[7]); a(C[0]); a(SMM[3])
    ts()
    t0 = SX1
    MX, NM, LX, Y = 38, 39, 36, SM + 2
    ZO = [f'v_mov_b64 v[{OUT+i}:{OUT+i+1}], 0' for i in range(0, 16, 2)]
    a(C[1]); a(C[2]); a(C[3]); a(LSR[8])
    a(f'v_max3_f32 v{MX}, v{X}, v{X+1}, v{X+2}')
    a(ZO[0]); a(ZO[1]); a(LSR[9])
    a(f'v_mov_b32_dpp v{SM}, v{SM+1} row_ror:8 {HI}\nv_mov_b32_dpp v{SM+2}, v{SM+3} row_ror:8 {HI}')
    a(ZO[3]); a(ZO[4])
    a(f'v_permlane32_swap_b32 v{SM}, v{SM+2}')
    a(f'v_max3_f32 v{MX}, v{MX}, v{X+3}, v{Y}')
    a(ZO[5]); a(ZO[6])
    a(f'v_max_f32_dpp v{t0}, v{MX}, v{MX} row_ror:8 {DPP}\nv_max_f32_dpp v{t0+1}, v{MX}, v{MX} row_ror:8 {DPP}')
    a(ZO[7]); a(f'v_and_b32 v0, -9, v{vOw}')
    a(f'v_permlane32_swap_b32 v{t0}, v{t0+1}')
    a(f'v_max_f32 v{t0+2}, v{t0}, v{t0+1}\nv_max_f32 v{t0+3}, v{t0}, v{t0+1}')
    OA = 120
    a(f'v_xor_b32 v{OA+1}, 512, v0\nv_xor_b32 v{OA+2}, 1024, v0')
    a(f'v_permlane16_swap_b32 v{t0+2}, v{t0+3}')
    a(f'v_max_f32 v{t0}, v{t0+2}, v{t0+3}\nv_mul_f32 v{NM}, s{sNC}, v{t0}')
    E = (X, X+1, X+2, X+3, Y)
    for r in E: a(f'v_fma_f32 v{r}, v{r}, s{sC}, v{NM}')
    for r in E: a(f'v_exp_f32 v{r}, v{r}')
    a(f'v_cvt_pk_bf16_f32 v{PF}, v{X}, v{X+1}\nv_cvt_pk_bf16_f32 v{PF+1}, v{X+2}, v{X+3}')
    a(f'v_mov_b32_dpp v{t0}, v{Y} row_ror:8 {DPP}')
    a(f'v_mov_b32_dpp v{PF+2}, v{PF} row_ror:8 {DPP}\nv_mov_b32_dpp v{PF+3}, v{PF+1} row_ror:8 {DPP}')
    a(f'v_cvt_pk_bf16_f32 v{PM}, v{Y}, v{t0}\nv_cvt_pk_bf16_f32 v{PM+3}, v{Y}, v{t0}')
    a(f's_waitcnt vmcnt({(0 if cfg.x_nopub else 1) + 2})')
    a(f'v_mfma_f32_16x16x32_bf16 v[{ACC0}:{ACC0+3}], v[{VXF}:{VXF+3}], v[{PF}:{PF+3}], 0')
    a(f'v_add_f32 v{LX}, v{X}, v{X+1}\nv_add_f32 v{NM}, v{X+2}, v{X+3}')
    a(f'v_mfma_f32_16x16x32_bf16 v[{ACC1}:{ACC1+3}], v[{VXF+4}:{VXF+7}], v[{PF}:{PF+3}], 0')
    a(f'v_add_f32 v{LX}, v{LX}, v{Y}\nv_add_f32 v{LX}, v{LX}, v{NM}')
    a(f'v_mfma_f32_16x16x16_bf16 v[{ACC0}:{ACC0+3}], v[{PUB+2}:{PUB+3}], v[{PM}:{PM+1}], v[{ACC0}:{ACC0+3}]')
    a(LSR[10])
    a(f'v_add_f32_dpp v{t0}, v{LX}, v{LX} row_ror:8 {DPP}')
    a(f'v_add_f32_dpp v{t0+1}, v{LX}, v{LX} row_ror:8 {DPP}')
    a(f'v_mfma_f32_16x16x16_bf16 v[{ACC1}:{ACC1+3}], v[{PUB+2}:{PUB+3}], v[{PM+2}:{PM+3}], v[{ACC1}:{ACC1+3}]')
    a(LSR[11])
    a(f'v_permlane32_swap_b32 v{t0}, v{t0+1}')
    a(f'v_add_f32 v{t0+2}, v{t0}, v{t0+1}\nv_add_f32 v{t0+3}, v{t0}, v{t0+1}')
    a(LSR[12]); a(LSR[13])
    a(f'v_permlane16_swap_b32 v{t0+2}, v{t0+3}')
    a(f'v_add_f32 v{t0+3}, v{t0+2}, v{t0+3}\nv_rcp_f32 v{t0+3}, v{t0+3}')
    for i in range(4): a(f'v_mov_b32_dpp v{ACC0+i}, v{ACC1+i} {idn} {HI}')
    for i in range(4): a(f'v_mul_f32 v{ACC0+i}, v{ACC0+i}, v{t0+3}')
    OP = PF
    a(f'v_cvt_pk_bf16_f32 v{OP}, v{ACC0}, v{ACC0+1}\nv_cvt_pk_bf16_f32 v{OP+1}, v{ACC0+2}, v{ACC0+3}')
    ts()
    a(f'ds_write_b64 v{vOw}, v[{OP}:{OP+1}] offset:{L_O}')
    def om(b): return f'v_smfmac_f32_16x16x64_bf16 v[{OUT+4*b[1]}:{OUT+4*b[1]+3}], v[{OF+4*b[2]}:{OF+4*b[2]+3}], {B8(b)}, v{vIdx}'
    a(f'v_mov_b64 v[{OF}:{OF+1}], v[{OP}:{OP+1}]\nv_mov_b64 v[{OF+2}:{OF+3}], v[{OP}:{OP+1}]')
    a(f'v_xor_b32 v{OA+3}, 1536, v0')
    for i in range(2):
        a(f'v_mov_b32_dpp v{OF+i}, v{OP+i} row_ror:8 {HI}\nv_mov_b32_dpp v{OF+2+i}, v{OP+i} row_ror:8 {LO}')
    O = [om(b) for b in OORD]
    a(ZO[2]); a('s_nop 0')
    for i in range(cfg.own): a(O[i])
    a('s_waitcnt lgkmcnt(0)\ns_barrier')
    for sg in range(1, 4): a(f'ds_read_b128 v[{OF+4*sg}:{OF+4*sg+3}], v{OA+sg} offset:{L_O}')
    ts()
    def fin(x):
        A0 = OUT + 4*x
        return [f'v_cvt_pk_bf16_f32 v{A0}, v{A0}, v{A0+1}', f'v_cvt_pk_bf16_f32 v{A0+1}, v{A0+2}, v{A0+3}', f'v_bfi_b32 v{A0}, v{vTM}, s{sTAG}, v{A0}',
                f'buffer_store_dwordx2 v[{A0}:{A0+1}], v{vPst}, {S(sWS)}, s{(sPART, sP1, sPART2, sP3)[x]} offen{sc}']
    f = [fin(x) for x in range(4)]
    seq = []
    seq += O[cfg.own:4]
    seq += ['s_waitcnt lgkmcnt(2)', O[4], 's_waitcnt lgkmcnt(1)', O[5], 's_waitcnt lgkmcnt(0)', O[6]]
    if cfg.x4:
        def g(z):
            A0 = OUT + 8*z
            return [f'v_cvt_pk_bf16_f32 v{A0}, v{A0}, v{A0+1}', f'v_cvt_pk_bf16_f32 v{A0+1}, v{A0+2}, v{A0+3}', f'v_and_or_b32 v{A0}, v{A0}, -2, s{sTAG}',
                    f'v_cvt_pk_bf16_f32 v{A0+2}, v{A0+4}, v{A0+5}', f'v_cvt_pk_bf16_f32 v{A0+3}, v{A0+6}, v{A0+7}',
                    f'buffer_store_dwordx4 v[{A0}:{A0+3}], v{vPst}, {S(sWS)}, s{sPART2 if z else sPART} offen{sc}']
        g0, g1 = g(0), g(1)
        seq += [O[7], 's_nop 0', O[8], 's_nop 0', O[9], 's_nop 0', O[10], 's_nop 0', O[11], g0[0], O[12], g0[1], g0[2], O[13], g0[3], g0[4], O[14], g0[5], O[15], 's_nop 0'] + g1[:3]
        f[3] = g1[3:]
    elif cfg.osch == 0:
        seq += [O[7], 's_nop 1', O[8], 's_nop 1', O[9], 's_nop 0', f[0][0], O[10], f[0][1], f[0][2], f[0][3], O[11], 's_nop 0', O[12], f[1][0], 's_nop 0']
        seq += [O[13], f[1][1], f[1][2], f[1][3], O[14], 's_nop 0', O[15]] + f[2]
    else:
        seq += [O[7], 's_nop 0', O[8], 's_nop 0', O[9], 's_nop 0', O[10], 's_nop 0', O[11], f[0][0], O[12], f[0][1], O[13], f[0][2], O[14], f[0][3], O[15]] + f[1] + f[2]
    seq += [f'v_mov_b64 v[{RDA}:{RDA+1}], 0', f'v_mov_b64 v[{RDA+2}:{RDA+3}], 0', f'v_mov_b32 v{RDA+4}, -1', f's_cmp_lt_u32 s{sW}, {cfg.wsplit}' if cfg.wsplit else f's_mov_b32 s{sSPIN}, 0'] + f[3]
    for l in seq: a(l)
    ts()
    if cfg.wsplit: a(f's_mov_b32 s{sSPIN}, 0')
    for _ in range(cfg.pd0): a('s_nop 3')
    if cfg.wsplit: a(f's_cbranch_scc1 {pre}_e1')
    for l in ESR[:cfg.es1]: a(l)
    if cfg.lw & 16: a('s_waitcnt lgkmcnt(0)')
    for _ in range(cfg.pd1): a('s_nop 3')
    a.label(pre + '_e1')
    if cfg.x_ack: a('s_waitcnt vmcnt(0)')
    ts(True)
    a(ppA)
    if cfg.wsplit:
        a(f's_cbranch_scc0 {pre}_e2')
        for l in ESR[:cfg.es1]: a(l)
        a.label(pre + '_e2')
    a(f's_xor_b32 s{sT}, s{sMST}, 0x2000\ns_xor_b32 s{sMEM}, s{sMEM}, 0x2000\ns_add_u32 s{sS}, s{sS}, 1\ns_add_u32 s{sPUB}, s{sPUB}, s15\ns_mov_b32 s15, 0x8000')
    a(kxdma[3]); a(vxld[2]); a(f's_xor_b32 m0, m0, {L_KX ^ (2*L_KX)}\ns_xor_b32 s{sKXB}, s{sKXB}, {L_KX ^ (2*L_KX)}')
    for l in ESR[cfg.es1:cfg.es2]: a(l)
    if cfg.lw & 8: a('s_waitcnt lgkmcnt(0)')
    if cfg.dual1:
        for _ in range(cfg.sp1): a('s_nop 3')
        a(ppB)
    if cfg.zpos == 0:
        for l in ZA: a(l)
    warm(cfg.wm1)
    a.label(pre + '_pp')
    a(f's_waitcnt vmcnt({2 if cfg.dual1 else 0})')
    a(chk_part(RL)); a(f's_cbranch_vccnz {pre}_pp_retry')
    a.label(pre + '_pp_join')
    ts()
    a(f's_xor_b32 s{sTAG}, s{sTAG}, 1')
    for r in (4, 8):
        for i in range(2): a(f'v_add_f32_dpp v{RDA+i}, v{RDA+i}, v{RDA+i} row_ror:{r} {DPP}')
    if cfg.xm == 1: a(f's_mov_b32 exec_lo, 0x000f000f\ns_mov_b32 exec_hi, 0x000f000f')
    if cfg.xm == 2: a('s_mov_b64 exec, s[46:47]')
    a(f'v_cvt_pk_bf16_f32 v{RDA}, v{RDA}, v{RDA+1}\nv_min_u32 v{RDA}, -2, v{RDA}')
    a(f'buffer_store_dword v{RDA}, v{vMst}, {S(sWS)}, s{sT} offen{sc}')
    a(f'buffer_store_dword v{RDA+4}, v{vMst}, {S(sWS)}, s{sMST} offen{sc}')
    a(f's_mov_b64 exec, -1\ns_mov_b32 s{sMST}, s{sT}')
    ts(True)
    for l in ESR[cfg.es2:cfg.es3]: a(l)
    if cfg.prof or cfg.trace: a('s_waitcnt lgkmcnt(0)')
    if cfg.prof:
        for i in range(10):
            a(f's_sub_u32 s{sT}, s{20+2*i}, s{18+2*i}\ns_add_u32 s{68+i}, s{68+i}, s{sT}')
    if cfg.trace:
        a(f's_sub_u32 s{sT2}, s{sS}, {cfg.trace}\ns_cmp_gt_u32 s{sT2}, 1\ns_cbranch_scc1 {pre}_notr')
        a(f's_lshl_b32 s{sT}, s{sIDX}, 2\ns_add_u32 s{sT}, s{sT}, s{sW}\ns_lshl_b32 s{sT}, s{sT}, 1\ns_add_u32 s{sT}, s{sT}, s{sT2}\ns_lshl_b32 s{sT}, s{sT}, 6\ns_add_u32 s{sT}, s{sT}, {TS+0x8000:#x}')
        for i in range(cnt[0]): a(f'v_writelane_b32 v0, s{PAIRS[i]}, {i}')
        a('v_writelane_b32 v0, s96, 14\nv_writelane_b32 v0, s98, 15')
        a(f'v_lshrrev_b32 v{MA01}, 2, v{vL16}\ns_mov_b64 exec, 0xffff\nbuffer_store_dword v0, v{MA01}, {S(sWS)}, s{sT} offen\ns_mov_b64 exec, -1')
        a.label(pre + '_notr')
        a(f's_cmp_lg_u32 s{sS}, {cfg.trace-4}\ns_cbranch_scc1 {pre}_nocal')
        a('s_memrealtime s[100:101]\ns_waitcnt lgkmcnt(0)')
        a.label(pre + '_cal')
        a(f's_memrealtime s[96:97]\ns_memtime s[98:99]\ns_waitcnt lgkmcnt(0)\ns_cmp_eq_u32 s96, s100\ns_cbranch_scc1 {pre}_cal')
        a.label(pre + '_nocal')
    if cfg.steplog >= 0:
        a(f's_memrealtime s[100:101]\ns_sub_u32 s{sT2}, s{sS}, {cfg.steplog}\ns_cmp_ge_u32 s{sT2}, 26\ns_cbranch_scc1 {pre}_nsl')
        a(f's_mov_b32 s99, m0\ns_mov_b32 m0, s{sT2}\ns_waitcnt lgkmcnt(0)\ns_movreld_b32 s16, s100\ns_mov_b32 m0, s99')
        a.label(pre + '_nsl')
    if cfg.bar2: a('s_barrier')
    for _ in range(cfg.pd2): a('s_nop 3')
    a(f's_cmp_lg_u32 s{sS}, s{sLIM}')
    a.flush()
    a(f's_cbranch_scc1 {pre}_step\ns_branch {pre}_special')
```

```python
import sys, os
sys.path.insert(0, os.path.dirname(__file__))
from asmlib import Asm, vr

NAME = 'concat_heads__sliding_local_dilated__memory_aug_recurrent_mem_tr__prompt'
QX, KX, VX, KVM, FPR = 0, 0x2000, 0x4000, 0x6000, 0xf000
OX = 0x4000000
PART, MEMS, FLG = 0x5000000, 0x5080000, 0x5100000
WS_BYTES = 0x10000000
LDS_BYTES = 163840
sWS, sDBG = 4, 8
sR1, sR2, sR3 = 12, 44, 48
sXCD, sIDX, sW = 42, 43, 3
P = lambda i: 16 + 2 * i

class Cfg:
    roles = 'pcao'
    stamps = False
    qn = 12
    ne = 4
    nsw = 0
    perm = 45701362
    qdelay = 0
    hx = 1
    align = 0
    apass = 0
    efast = 1
    diag = 0
    spos = 0
    lw = 15
    es4 = 15
    es5 = 16
    zpos = 0
    lazy = 1
    xm = 2
    touch = 1
    need1 = 11
    phalf = 1
    cwarm = 0
    steplog = -1
    depth = 4
    osc = 0
    x4 = 0
    own = 3
    pubpos = 0
    pfd = 0
    x_ack = 0
    mask = 1
    wsplit = 0
    dbgts = 0
    dbgmap = {'c': [(0, 9), (2, 10), (3, 11)], 'w': [(0, 12), (3, 13), (5, 14)], 'o': [(3, 15)]}
    fsh = 7
    sl1 = 1
    sl2 = 0
    warm = 1
    cord = 1
    need0 = 192
    x_only = -1
    x_stop = 0
    dual1 = 1
    sp4 = 7
    swz = 0
    pd0 = 0
    sp3 = 0
    h1 = 3
    h2 = 8
    kdpos = 0
    hint = 0
    hpos = 8
    ppos = (16, 20, 30)
    bar2 = 1
    np1 = 1
    np2 = 1
    sp1 = 0
    sp2 = 0
    trace = 0
    clk = 0
    x_nokv = 0
    x_nopub = 0
    x_nopf = 1
    vpos = 2
    osch = 0
    vgap = 3
    x_pfplain = 0
    x_kvplain = 0
    wm1 = 0
    wm2 = 0
    es1 = 12
    es2 = 14
    es3 = 14
    pd1 = 0
    pd2 = 0
    prof = 0
    force_slow = 0
    x_nostore = 0
    x_nodma = 0
    x_plain = 0

def srd(a, d, base, size):
    a(f's_mov_b32 s{d}, s{base}\ns_and_b32 s{d+1}, s{base+1}, 0xffff\ns_mov_b32 s{d+2}, {size:#x}\ns_mov_b32 s{d+3}, 0x20000')

def S(d): return f's[{d}:{d+3}]'

TS = 0x5180000
def stamp(a, cfg, i):
    if cfg.stamps:
        a(f's_memrealtime s[{84+2*i}:{85+2*i}]')
def dump_stamps(a, cfg, n, role):
    if not cfg.stamps: return
    l = a.newlabel('L_ts')
    a(f's_waitcnt lgkmcnt(0)\ns_cmp_lg_u32 s{sW}, 0\ns_cbranch_scc1 {l}')
    a(f's_lshl_b32 s80, s{sIDX}, 3\ns_add_u32 s80, s80, s{sXCD}\ns_lshl_b32 s80, s80, 6\ns_add_u32 s80, s80, {TS:#x}\nv_mov_b32 v1, 0')
    for i in range(n):
        a(f'v_mov_b32 v2, s{84+2*i}\nbuffer_store_dword v2, v1, {S(sWS)}, s80 offen offset:{4*i}')
    if cfg.dbgts:
        a('s_mov_b64 exec, 1')
        a(f's_not_b32 s81, s84\nv_mov_b32 v2, s81\nbuffer_atomic_umax v2, v1, {S(sDBG)}, 0 offen offset:32')
        for slot, word in cfg.dbgmap[role]:
            a(f'v_mov_b32 v2, s{84+2*slot}\nbuffer_atomic_umax v2, v1, {S(sDBG)}, 0 offen offset:{4*word}')
    a.label(l)

def prologue(a, cfg):
    if cfg.diag == 5: a('s_memrealtime s[100:101]')
    a('s_cmp_ge_u32 s2, 256\ns_cbranch_scc1 L_end')
    a('s_load_dwordx16 s[16:31], s[0:1], 0\ns_load_dwordx8 s[32:39], s[0:1], 64\ns_load_dwordx2 s[40:41], s[0:1], 96')
    a(f's_and_b32 s{sXCD}, s2, 7\ns_lshr_b32 s{sIDX}, s2, 3')
    a(f'v_lshrrev_b32 v1, 6, v0\nv_and_b32 v0, 63, v0\nv_readfirstlane_b32 s{sW}, v1')
    if cfg.perm:
        tab = sum(int(c) << (4*i) for i, c in enumerate(str(cfg.perm).zfill(8)))
        a(f's_lshl_b32 s{sXCD}, s{sXCD}, 2\ns_lshr_b32 s{sXCD}, {tab:#x}, s{sXCD}\ns_and_b32 s{sXCD}, s{sXCD}, 7')
    a(f's_cmp_gt_u32 s{sXCD}, 1\ns_cbranch_scc1 L_work')
    a(f's_cmp_eq_u32 s{sXCD}, 1\ns_cbranch_scc1 L_apart')

def code_warm(a, cfg, end='L_work'):
    if not cfg.cwarm: return
    l = a.newlabel('L_pc')
    a('s_getpc_b64 s[50:51]')
    a.label(l)
    a(f's_lshl_b32 s49, s{sW}, 13\nv_lshlrev_b32 v250, 7, v0\nv_add_u32 v250, s49, v250')
    a.raw(f'  s_mov_b32 s49, {end} - {l} - 4')
    a('v_min_u32 v250, s49, v250\nv_mov_b32 v251, s51\nv_add_co_u32 v250, vcc, s50, v250\nv_addc_co_u32 v251, vcc, 0, v251, vcc')
    a('global_load_dword v252, v[250:251], off')

def args_ready(a):
    a('s_waitcnt lgkmcnt(0)')
    srd(a, sWS, P(12), WS_BYTES)
    srd(a, sDBG, P(11), 256)

def role_proj(a, cfg):
    vL16, vSRC, vTR, vX, vRD, vZ = 1, 2, 3, 4, 5, 6
    XB = 16
    ACC = 48
    PK = 64
    XV, RB, RD = 72, 80, 84
    sJ, sWH, sPAR, sT, sT2, sI, sXO, sSLOT, sRSLOT, sOUT, sG = 52, 53, 54, 55, 56, 57, 58, 59, 60, 61, 62
    stamp(a, cfg, 0)
    a(f's_sub_u32 s{sJ}, s{sXCD}, 2\ns_lshr_b32 s{sWH}, s{sJ}, 1\ns_and_b32 s{sPAR}, s{sJ}, 1')
    a(f'v_lshrrev_b32 v8, 4, v0\ns_and_b32 s{sT}, s{sW}, 2\ns_lshl_b32 s{sT}, s{sT}, 1\nv_or_b32 v9, s{sT}, v8\nv_lshlrev_b32 v9, 1, v9')
    a(f'v_and_b32 v10, 15, v0\nv_xor_b32 v9, v9, v10\nv_lshlrev_b32 v9, 4, v9\nv_lshl_add_u32 v{vSRC}, v8, 13, v9')
    args_ready(a)
    a(f's_cmp_eq_u32 s{sWH}, 0\ns_cselect_b32 s64, s{P(6)}, s{P(7)}\ns_cselect_b32 s65, s{P(6)+1}, s{P(7)+1}')
    a(f's_mov_b32 s{sOUT}, {VX:#x}\ns_cselect_b32 s{sOUT}, {KX:#x}, s{sOUT}')
    a(f's_cmp_eq_u32 s{sWH}, 2\ns_cselect_b32 s64, s{P(5)}, s64\ns_cselect_b32 s65, s{P(5)+1}, s65\ns_cselect_b32 s{sOUT}, {QX:#x}, s{sOUT}')
    srd(a, sR1, 64, 512 * 8192)
    srd(a, sR2, P(3), 2048 * 1024)
    a(f's_lshl_b32 s{sT}, s{sIDX}, 8\ns_lshl_b32 s{sT2}, s{sW}, 15\ns_add_u32 s{sT}, s{sT}, s{sT2}\ns_lshl_b32 m0, s{sW}, 10')
    for k in range(32):
        a(f'buffer_load_dwordx4 v{vSRC}, {S(sR1)}, s{sT} offen lds')
        a(f's_add_u32 s{sT}, s{sT}, {16*8192:#x}\ns_add_u32 m0, m0, 4096')
    a(f'v_lshlrev_b32 v{vL16}, 4, v0')
    a(f'v_mov_b32 v{vZ}, 0\ns_lshl_b32 s{sG}, s{sIDX}, 21\ns_lshl_b32 s63, s{sJ}, 7\ns_add_u32 s{sG}, s{sG}, s63\ns_add_u32 s{sG}, s{sG}, {FPR:#x}')
    a(f's_lshl_b32 s{sT2}, s{sJ}, 12\ns_add_u32 s{sT2}, s{sT2}, {FLG+4096:#x}\ns_lshl_b32 s63, s{sIDX}, {cfg.fsh}\ns_add_u32 s{sT2}, s{sT2}, s63')
    a(f's_cmp_lg_u32 s{sW}, 0\ns_cbranch_scc1 L_pz2')
    a(f's_getreg_b32 s63, hwreg(HW_REG_XCC_ID)\ns_and_b32 s63, s63, 15\nv_mov_b32 v7, s63')
    a(f'buffer_store_dwordx2 v[6:7], v{vZ}, {S(sWS)}, s{sT2} offen sc1\nbuffer_store_dword v{vZ}, v{vZ}, {S(sWS)}, s{sG} offen sc1')
    a('L_pz2:')
    code_warm(a, cfg, 'L_apart')
    WT = 12
    a(f'v_bfe_u32 v9, v0, 2, 2\nv_lshl_add_u32 v10, v8, 3, v9\nv_lshlrev_b32 v10, 8, v10')
    a(f'v_and_b32 v8, 1, v8\nv_lshl_or_b32 v9, v8, 2, v9\nv_lshlrev_b32 v9, 1, v9')
    a(f'v_bfe_u32 v8, v0, 1, 1\ns_lshl_b32 s{sT}, s{sW}, 2\nv_or_b32 v8, s{sT}, v8\nv_xor_b32 v9, v9, v8\nv_lshl_add_u32 v10, v9, 4, v10')
    a(f'v_and_b32 v8, 1, v0\nv_lshl_add_u32 v{WT}, v8, 3, v10\nv_xor_b32 v{WT+2}, 32, v{WT}\nv_add_u32 v{WT+1}, 0x10000, v{WT}\nv_add_u32 v{WT+3}, 0x10000, v{WT+2}')
    a(f's_lshl_b32 s{sT}, s{sW}, 3\ns_and_b32 s{sT2}, s{sT}, 15\ns_lshl_b32 s{sT}, s{sT}, 10')
    for i in range(8):
        a(f's_add_u32 s63, s{sT2}, {i}\nv_xor_b32 v8, s63, v0\nv_lshlrev_b32 v8, 4, v8')
        a(f's_add_u32 s63, s{sT}, {(i//4)*4096}\nv_add_u32 v{XV+i}, s63, v8')
    for uu in range(4):
        a(f'v_lshrrev_b32 v8, 4, v0\nv_or_b32 v8, {4*uu}, v8\nv_and_b32 v9, 15, v0\nv_xor_b32 v8, v8, v9\nv_lshlrev_b32 v8, 4, v8')
        a(f'v_lshlrev_b32 v9, 10, v9\nv_add_u32 v{RB+uu}, v8, v9')
    def xdma(only=None):
        for i in range(8):
            if only is not None and i != only: continue
            if i == 0: a(f's_lshl_b32 s{sT}, s{sW}, 13\ns_add_u32 m0, s{sSLOT}, s{sT}')
            a(f'buffer_load_dwordx4 v{XV+i}, {S(sR2)}, s{sXO} offen offset:{1024*(i%4)} lds')
            if i == 3: a('s_add_u32 m0, m0, 4096')
        if only is not None and only != 7: return
        a(f's_add_u32 s{sXO}, s{sXO}, s68\ns_min_u32 s{sXO}, s{sXO}, 0x1f8000\ns_add_u32 s{sSLOT}, s{sSLOT}, 0x8000')
        a(f's_cmp_eq_u32 s{sSLOT}, 0x28000\ns_cselect_b32 s{sSLOT}, 0, s{sSLOT}')
    sSTR, sCNT = 68, 69
    a(f's_mov_b32 s{sSTR}, 0x10000\ns_mov_b32 s{sCNT}, 32')
    if cfg.qn:
        a(f's_cmp_eq_u32 s{sWH}, 2\ns_cselect_b32 s{sSTR}, 0x8000, s{sSTR}')
        a(f's_cmp_eq_u32 s{sJ}, 4\ns_cselect_b32 s{sPAR}, {cfg.qn}, s{sPAR}\ns_cselect_b32 s{sCNT}, {64 - cfg.qn}, s{sCNT}')
        a(f's_cmp_eq_u32 s{sJ}, 5\ns_cselect_b32 s{sPAR}, 0, s{sPAR}\ns_cselect_b32 s{sCNT}, {cfg.qn}, s{sCNT}')
    a(f's_lshl_b32 s{sXO}, s{sPAR}, 15\ns_mov_b32 s{sSLOT}, 0x20000\ns_mov_b32 s{sRSLOT}, 0x20000')
    xdma()
    for st in range(4):
        a(f's_waitcnt vmcnt({8 + 8*(3-st)})\ns_barrier')
        for u in range(4*st, 4*st + 4):
            for c in range(2):
                for t in range(2):
                    r = (t * 16 + u) * 4 + 2 * c
                    a(f'ds_read_b64_tr_b16 a[{r}:{r+1}], v{WT + 2*t + u//8} offset:{(u%8)*8192 + c*1024}')
    a('s_waitcnt lgkmcnt(0)\ns_barrier')
    stamp(a, cfg, 1)
    xdma(); xdma()
    a(f's_lshl_b32 s{sT}, s{sPAR}, 15\ns_add_u32 s{sOUT}, s{sOUT}, s{sT}\ns_lshl_b32 s{sT}, s{sIDX}, 21\ns_add_u32 s{sOUT}, s{sOUT}, s{sT}')
    a(f's_cmp_eq_u32 s{sWH}, 1\ns_cselect_b32 s{sT2}, 11, 10\ns_lshl_b32 s{sT}, s{sW}, s{sT2}\ns_add_u32 s{sOUT}, s{sOUT}, s{sT}')
    sADV, sOUT2 = 63, 66
    ACCS = (ACC, 88)
    a(f's_mov_b32 s{sI}, 0\nv_mov_b32 v7, 1\nv_mov_b32 v9, 31\ns_mov_b32 s{sADV}, 0')
    a(f's_cmp_eq_u32 s{sWH}, 1\ns_cselect_b32 s{sT}, 1, 4\ns_lshl_b32 s{sT}, s{sT}, 10\ns_add_u32 s{sOUT2}, s{sOUT}, s{sT}')
    def rd(u):
        return [f'ds_read_b128 v[{XB + ((u % 4) * 2 + T) * 4}:{XB + ((u % 4) * 2 + T) * 4 + 3}], v{RD+u%4} offset:{T*16384+((u%16)//4)*256}' for T in range(2)]
    def nextslot():
        return [f'v_add_u32 v{RD+uu}, s{sRSLOT}, v{RB+uu}' for uu in range(4)] + \
               [f's_add_u32 s{sRSLOT}, s{sRSLOT}, 0x8000\ns_cmp_eq_u32 s{sRSLOT}, 0x28000\ns_cselect_b32 s{sRSLOT}, 0, s{sRSLOT}']
    def epilogue(isv, acc):
        E = []
        for f in range(2):
            for hlf in range(2):
                d = acc + ((f * 2 + (hlf ^ f)) if isv else (hlf * 2 + f)) * 4
                E += [f'v_cvt_pk_bf16_f32 v{PK+f*4+hlf*2}, v{d}, v{d+1}', f'v_cvt_pk_bf16_f32 v{PK+f*4+hlf*2+1}, v{d+2}, v{d+3}']
            E.append(f'buffer_store_dwordx4 v[{PK+f*4}:{PK+f*4+3}], v{vL16}, {S(sWS)}, s{sOUT2 if f else sOUT} offen sc1')
        if isv: E[-1] += f'\nbuffer_store_dwordx4 v[12:15], v11, {S(sWS)}, s{sOUT} offen sc1'
        E.append(f's_add_u32 s{sOUT}, s{sOUT}, s{sADV}\ns_add_u32 s{sOUT2}, s{sOUT2}, s{sADV}\ns_mov_b32 s{sADV}, s{sSTR}')
        return E
    for i in range(4): a(f'v_mov_b32 v{12+i}, -1')
    a(f's_lshl_b32 s{sT}, s{sW}, 10\nv_subrev_u32 v11, s{sT}, v{vL16}\nv_add_u32 v11, {KVM - VX:#x}, v11')
    a('s_waitcnt vmcnt(16)\ns_barrier')
    a(f's_cmp_lg_u32 s{sW}, 0\ns_cbranch_scc1 L_p_ni')
    a(f's_mov_b64 exec, 1\nbuffer_atomic_add v7, v{vZ}, {S(sDBG)}, 0 offen sc1\ns_mov_b64 exec, -1')
    a('L_p_ni:')
    stamp(a, cfg, 4)
    for l in nextslot(): a(l)
    for u in range(4):
        for l in rd(u): a(l)
    a(f's_cmp_eq_u32 s{sWH}, 1\ns_cbranch_scc1 L_pv_loop')
    for isv in (0, 1):
        lab = 'L_pv_loop' if isv else 'L_pk_loop'
        a.label(lab)
        for half in range(2):
            acc = ACCS[half]
            E = epilogue(isv, ACCS[1 - half])
            for u in range(16):
                a('s_waitcnt lgkmcnt(6)')
                fill = []
                if 2 <= u <= 7: fill = E[2*(u-2):2*(u-2)+2]
                k = 0
                for T in range(2):
                    for t in range(2):
                        d = acc + (t * 2 + T) * 4
                        x = XB + ((u % 4) * 2 + T) * 4
                        w = (t * 16 + u) * 4
                        c = '0' if u == 0 else f'v[{d}:{d+3}]'
                        if isv: a(f'v_mfma_f32_16x16x32_bf16 v[{d}:{d+3}], v[{x}:{x+3}], a[{w}:{w+3}], {c}')
                        else:   a(f'v_mfma_f32_16x16x32_bf16 v[{d}:{d+3}], a[{w}:{w+3}], v[{x}:{x+3}], {c}')
                        if k == 0 and u % 2 == 0: xdma(u // 2)
                        if k == 0 and u == 12:
                            a('s_waitcnt vmcnt(13)\ns_barrier')
                            for l in nextslot(): a(l)
                        if k == 1: a(rd(u + 4)[0])
                        if k == 3: a(rd(u + 4)[1])
                        if k in (0, 2) and fill: a(fill.pop(0))
                        if k == 2 and u == 13 and half == cfg.phalf:
                            a(f's_cmp_lg_u32 s{sW}, 0\ns_cbranch_scc1 {lab}_nf')
                            a(f'v_min_u32 v8, s{sI}, v9\ns_mov_b64 exec, 1\nbuffer_store_dword v8, v{vZ}, {S(sWS)}, s{sG} offen sc1')
                            a('s_mov_b64 exec, -1')
                            a.label(f'{lab}_nf')
                        k += 1
        a(f's_add_u32 s{sI}, s{sI}, 2\ns_cmp_lt_u32 s{sI}, s{sCNT}\ns_cbranch_scc1 {lab}')
        a.flush(); a('s_nop 7')
        for l in epilogue(isv, ACCS[1]): a(l)
        if not isv: a('s_branch L_p_done')
    a('L_p_done:')
    stamp(a, cfg, 2)
    a('s_waitcnt vmcnt(0) lgkmcnt(0)\ns_barrier')
    stamp(a, cfg, 3)
    a(f's_cmp_lg_u32 s{sW}, 0\ns_cbranch_scc1 L_p_fl')
    a(f'v_mov_b32 v8, 32\ns_mov_b64 exec, 1\nbuffer_store_dword v8, v{vZ}, {S(sWS)}, s{sG} offen sc1\ns_mov_b64 exec, -1')
    a('L_p_fl:')

def build(cfg):
    cfg.OS = ['', ' sc1', ' nt', ' sc0 sc1'][cfg.osc]
    a = Asm()
    hdr = open(os.path.join(os.path.dirname(__file__), '..', 'cdna_kernels', NAME + '.s.ref')).read().split('\n')
    for l in hdr:
        if l.startswith('; @launch'): break
        a.raw(l)
    a.raw(f'; @launch grid=(256,1,1) block=(256,1,1) lds={LDS_BYTES}')
    a.raw('.amdgcn_target "amdgcn-amd-amdhsa--gfx950"\n.text')
    a.raw(f'.globl {NAME}_kernel\n.p2align 8\n.type {NAME}_kernel,@function\n{NAME}_kernel:')
    prologue(a, cfg)
    if 'c' in cfg.roles:
        from role_chain import role_chain
        role_chain(a, cfg)
        dump_stamps(a, cfg, 8, 'c')
    a('s_endpgm')
    a.label('L_work')
    if cfg.x_only >= 0: a(f's_cmp_gt_u32 s{sXCD}, {cfg.x_only}\ns_cbranch_scc1 L_end')
    role_proj(a, cfg)
    if 'a' in cfg.roles:
        from role_att import role_att
        role_att(a, cfg)
    dump_stamps(a, cfg, 8, 'w')
    a('s_endpgm')
    a.label('L_apart')
    if 'o' in cfg.roles:
        from role_apart import role_apart
        role_apart(a, cfg)
        dump_stamps(a, cfg, 8, 'o')
    a.label('L_end')
    a('s_endpgm')
    a.label('L_code_end')
    a.raw(f'''.section .rodata,"a"
.p2align 6
.amdhsa_kernel {NAME}_kernel
  .amdhsa_next_free_vgpr 512
  .amdhsa_next_free_sgpr 102
  .amdhsa_accum_offset 256
  .amdhsa_group_segment_fixed_size 0
  .amdhsa_kernarg_size 104
  .amdhsa_user_sgpr_count 2
  .amdhsa_user_sgpr_kernarg_segment_ptr 1
  .amdhsa_system_sgpr_workgroup_id_x 1
.end_amdhsa_kernel''')
    t = a.text()
    if cfg.apass and 'c' in cfg.roles:
        from alignpass import align
        assert cfg.align >= 0 and cfg.align % 2 == 0
        t, c, k = align(t, 'L_cf_step', 'L_cs_pm0_loop')
        print('align pass: residual cost', round(c, 2), 'widened', k)
    return t

if __name__ == '__main__':
    sys.modules['gen'] = sys.modules['__main__']
    cfg = Cfg()
    out = None
    for arg in sys.argv[1:]:
        if arg.startswith('roles='): cfg.roles = arg[6:]
        elif arg.startswith('out='): out = arg[4:]
        elif '=' in arg:
            k, v = arg.split('='); setattr(cfg, k, tuple(int(x) for x in v.split(',')) if k == 'ppos' else int(v))
    out = out or os.path.join(os.path.dirname(__file__), '..', 'cdna_kernels', NAME + '.s')
    open(out, 'w').write(build(cfg))
    print('wrote', out)
```

```python
from gen import *
import struct, math
def f2u(x): return struct.unpack('<I', struct.pack('<f', x))[0]

def spin(a, name, srd, soff, target, vtmp, vaddr, scnt, sleep=1):
    a(f's_cmp_lg_u32 s{sW}, 0\ns_cbranch_scc1 {name}_ok')
    a(f's_mov_b32 s{scnt}, 0')
    a.label(name)
    a(f'buffer_load_dword v{vtmp}, v{vaddr}, {S(srd)}, {soff} offen sc1\ns_waitcnt vmcnt(0)')
    a(f'v_cmp_gt_u32 vcc, {target}, v{vtmp}\ns_cbranch_vccz {name}_ok')
    a(f's_sleep {sleep}\ns_add_u32 s{scnt}, s{scnt}, 1\ns_cmp_lt_u32 s{scnt}, 0x200000\ns_cbranch_scc1 {name}')
    a.label(name + '_ok')
    a('s_barrier')

def role_att(a, cfg):
    a.comment('---- attention of the segment rows + output projection')
    vL16, vZ, vONE = 1, 6, 7
    vL8, vKa, vKb, vKr, vOut, vNEG, vRW, vRR, vT = 2, 3, 4, 5, 8, 9, 10, 11, 12
    QF, KF, VF, PB, KM = 16, 32, 64, 80, 96
    vVr = 88
    S0, S1, SMm = 112, 116, 120
    PP, PD, AC, OPK, TT = 124, 130, 136, 152, 160
    OB = 128
    OA = 112
    sJ = 52
    sT, sT2, sS, sB, sTq, sEH, sGD, sNEED, sCNT, sFC, sFA, sC, sNC, sO = range(53, 67)
    MK = 68
    DPP = 'row_mask:0xf bank_mask:0xf'
    if cfg.ne < 6 and not cfg.nsw: a(f's_cmp_ge_u32 s{sJ}, {cfg.ne}\ns_cbranch_scc1 L_a_out')
    srd(a, sR1, P(8), 4096*1024)
    srd(a, sR2, P(10), 2048*2048)
    vWS = 90
    a(f'v_lshrrev_b32 v{vWS}, 2, v0\nv_lshlrev_b32 v{vWS}, 10, v{vWS}\nv_and_b32 v{vT+1}, 3, v0\nv_lshl_add_u32 v{vWS}, v{vT+1}, 4, v{vWS}')
    sHX = 67
    a(f's_mul_i32 s{sHX}, s{sIDX}, {cfg.hx}\ns_and_b32 s{sHX}, s{sHX}, 31\ns_lshl_b32 s{sT}, s{sW}, 3\ns_xor_b32 s{sHX}, s{sHX}, s{sT}')
    a(f's_and_b32 s{sFC}, s{sIDX}, 15\ns_lshl_b32 s{sFC}, s{sFC}, 6')
    def wo_issue(ps):
        a(f's_lshl_b32 m0, s{sW}, 15')
        for i in range(32):
            if i % 8 == 0: a(f's_xor_b32 s{sO}, s{sHX}, {4*ps + i//8}\ns_lshl_b32 s{sO}, s{sO}, 17\ns_add_u32 s{sO}, s{sO}, s{sFC}')
            a(f'buffer_load_dwordx4 v{vWS}, {S(sR1)}, s{sO} offen lds')
            a(f's_add_u32 s{sO}, s{sO}, 0x4000\ns_add_u32 m0, m0, 1024')
    def wo_read(ps):
        for i in range(32):
            if i % 8 == 0: a(f's_waitcnt vmcnt({24 - i})')
            for ct in range(2):
                r = 128*ct + 64*ps + 2*i
                a(f'ds_read_b64_tr_b16 a[{r}:{r+1}], v{vL8} offset:{i*1024 + ct*32}')
        a('s_waitcnt lgkmcnt(0)')
    wo_issue(0)
    a(f's_lshl_b32 s{sT}, s{sW}, 15\nv_lshrrev_b32 v{vL8}, 2, v0\nv_lshlrev_b32 v{vL8}, 6, v{vL8}\nv_lshl_add_u32 v{vL8}, v{vT+1}, 3, v{vL8}\nv_add_u32 v{vL8}, s{sT}, v{vL8}')
    a(f's_and_b32 s{sTq}, s{sW}, 1\ns_lshr_b32 s{sEH}, s{sW}, 1')
    n, g, b4, b5 = vT+1, vT+2, vT+3, 112
    a(f'v_and_b32 v{n}, 15, v0\nv_lshrrev_b32 v{g}, 4, v0\nv_bfe_u32 v{b4}, v0, 4, 1\nv_bfe_u32 v{b5}, v0, 5, 1')
    PRIV = 131072
    a(f'v_lshlrev_b32 v{vKa}, 4, v{n}\nv_lshl_add_u32 v{vKa}, v{b5}, 8, v{vKa}\nv_lshl_add_u32 v{vKa}, v{b4}, 3, v{vKa}')
    a(f's_lshl_b32 s{sT}, s{sW}, 9\ns_add_u32 s{sT}, s{sT}, {PRIV}\nv_add_u32 v{vKa}, s{sT}, v{vKa}')
    a(f'v_lshlrev_b32 v113, 3, v0\ns_add_u32 s{sT}, s{sT}, 2048\nv_add_u32 v{vKb}, s{sT}, v113')
    a(f's_lshl_b32 s{sT}, s{sEH}, 10\ns_add_u32 s{sT}, s{sT}, {PRIV+2048}\nv_add_u32 v{vVr}, s{sT}, v113')
    a(f'v_lshrrev_b32 v113, 2, v0\nv_lshlrev_b32 v113, 4, v113\nv_and_b32 v114, 1, v0\nv_lshl_add_u32 v113, v114, 3, v113\nv_add_u32 v{vKr}, {PRIV}, v113')
    a(f'v_lshlrev_b32 v{vOut}, 11, v{n}\nv_lshl_add_u32 v{vOut}, v{g}, 3, v{vOut}')
    a(f's_lshl_b32 s{sT}, s{sW}, 10\ns_add_u32 s{sT}, s{sT}, {PRIV+8192}\nv_add_u32 v{vRW}, s{sT}, v{vL16}')
    a(f's_lshl_b32 s{sT}, s{sTq}, 12\ns_add_u32 s{sT}, s{sT}, {PRIV+8192}\nv_add_u32 v{vRR}, s{sT}, v{vL16}')
    sc = 128 ** -0.5
    a(f'v_mov_b32 v{vNEG}, {f2u(-1e9/sc):#x}')
    a(f's_lshl_b32 s{sT}, s{sTq}, 4\nv_lshlrev_b32 v113, 2, v{g}\nv_sub_u32 v113, v{n}, v113\nv_add_u32 v113, s{sT}, v113')
    for Tk in range(2):
        for i in range(4):
            m = MK + 2*(4*Tk+i)
            a(f'v_cmp_gt_i32 s[{m}:{m+1}], {16*Tk+i}, v113')
    c = sc * math.log2(math.e)
    a(f's_mov_b32 s{sC}, {f2u(c):#x}\ns_mov_b32 s{sNC}, {f2u(-c):#x}')
    a(f's_lshl_b32 s{sT}, s{sJ}, 12\ns_add_u32 s{sFA}, s{sT}, {FLG+4096:#x}')
    a(f's_mov_b32 s{sS}, s{sJ}\ns_mov_b32 s{sGD}, -1\ns_mov_b32 s{sNEED}, 1\nv_and_b32 v{vONE}, 31, v0\nv_lshlrev_b32 v{vONE}, {cfg.fsh}, v{vONE}')
    wo_read(0); wo_issue(1); wo_read(1)
    stamp(a, cfg, 4)
    spin(a, 'L_a_iw', sDBG, 0, 192, vT, vZ, sCNT, 8)
    a(f'buffer_load_dword v{vT}, v{vONE}, {S(sWS)}, s{sFA} offen offset:4 sc1\ns_waitcnt vmcnt(0)\nv_readfirstlane_b32 s{sT}, v{vT}')
    a(f'v_cmp_ne_u32 vcc, s{sT}, v{vT}\ns_mov_b32 s{sGD}, vcc_lo')
    if not cfg.efast: a(f's_mov_b32 s{sGD}, 1')
    a(f'v_min_u32 v113, 5, v0\nv_lshlrev_b32 v113, 7, v113\ns_lshl_b32 s{sB}, s{sIDX}, 21\ns_add_u32 s{sB}, s{sB}, {FPR:#x}')
    spin(a, 'L_a_gw', sWS, f's{sB}', 32, vT, 113, sCNT, 4)
    def fetch(seg):
        a(f's_lshl_b32 s{sB}, s{sIDX}, 6\ns_add_u32 s{sB}, s{sB}, s{seg}\ns_lshl_b32 s{sB}, s{sB}, 15')
        a(f's_lshl_b32 s{sT}, s{sTq}, 12\ns_add_u32 s{sT}, s{sT}, s{sB}')
        for u in range(4): a(f'buffer_load_dwordx4 v[{QF+4*u}:{QF+4*u+3}], v{vL16}, {S(sWS)}, s{sT} offen offset:{u*1024} sc1')
        for Tk in range(2):
            a(f's_add_u32 s{sT}, s{sB}, {KX + Tk*4096:#x}')
            for u in range(4): a(f'buffer_load_dwordx4 v[{KF+16*Tk+4*u}:{KF+16*Tk+4*u+3}], v{vL16}, {S(sWS)}, s{sT} offen offset:{u*1024} sc1')
        a(f's_lshl_b32 s{sT}, s{sEH}, 12\ns_add_u32 s{sT}, s{sT}, s{sB}\ns_add_u32 s{sT}, s{sT}, {VX:#x}')
        for u in range(4): a(f'buffer_load_dwordx4 v[{VF+4*u}:{VF+4*u+3}], v{vL16}, {S(sWS)}, s{sT} offen offset:{u*1024} sc1')
    assert not cfg.nsw
    if cfg.stamps: a('s_mov_b32 s101, 0')
    fetch(sS)
    a('L_a_loop:')
    a('s_waitcnt vmcnt(4)')
    for u in range(4):
        for Tk, d in ((0, S0), (1, S1)):
            cc = '0' if u == 0 else f'v[{d}:{d+3}]'
            a(f'v_mfma_f32_16x16x32_bf16 v[{d}:{d+3}], v[{KF+16*Tk+4*u}:{KF+16*Tk+4*u+3}], v[{QF+4*u}:{QF+4*u+3}], {cc}')
    for x in range(8):
        a(f'v_cndmask_b32 v{S0+x}, v{S0+x}, v{vNEG}, s[{MK+2*x}:{MK+2*x+1}]')
    MX = TT
    a(f'v_max3_f32 v{MX}, v{S0}, v{S0+1}, v{S0+2}\nv_max3_f32 v{MX}, v{MX}, v{S0+3}, v{S0+4}\nv_max3_f32 v{MX}, v{MX}, v{S0+5}, v{S0+6}\nv_max_f32 v{MX}, v{MX}, v{S0+7}')
    a(f'v_mov_b32 v{PD+1}, 0\nv_mov_b32 v{PD+2}, 0')
    a(f's_lshl_b32 s{sT}, s{sW}, 10\ns_add_u32 s{sO}, s{sB}, s{sT}\ns_add_u32 s{sO}, s{sO}, {KVM:#x}\ns_mov_b32 s{sCNT}, 0')
    a('L_a_cw:')
    a(f'buffer_load_dwordx4 v[{PB}:{PB+3}], v{vL16}, {S(sWS)}, s{sO} offen sc1\ns_waitcnt vmcnt(0)')
    a(f'v_cmp_eq_u32 vcc, -1, v{PB}\ns_cbranch_vccz L_a_cw_ok')
    a(f's_sleep {cfg.sl1}\ns_add_u32 s{sCNT}, s{sCNT}, 1\ns_cmp_lt_u32 s{sCNT}, 0x200000\ns_cbranch_scc1 L_a_cw')
    a('L_a_cw_ok:')
    if cfg.stamps:
        a(f's_cmp_eq_u32 s{sCNT}, 0\ns_cbranch_scc1 L_a_nw\ns_cmp_lg_u32 s101, 0\ns_cbranch_scc1 L_a_nw\ns_mov_b32 s101, 1\ns_memrealtime s[90:91]\nL_a_nw:')
    stamp(a, cfg, 1)
    a(f'ds_write_b64 v{vKa}, v[{PB}:{PB+1}]\nds_write_b64 v{vKb}, v[{PB+2}:{PB+3}]\ns_waitcnt lgkmcnt(0)\ns_barrier')
    for p in range(2): a(f'ds_read_b64 v[{PB+4*p+2}:{PB+4*p+3}], v{vVr} offset:{p*512}')
    for u in range(4):
        for t in range(2):
            a(f'ds_read_b64_tr_b16 v[{KM+4*u+2*t}:{KM+4*u+2*t+1}], v{vKr} offset:{u*512 + t*256}')
    for u in range(4):
        a(f's_waitcnt lgkmcnt({6-2*u})')
        cc = '0' if u == 0 else f'v[{SMm}:{SMm+3}]'
        a(f'v_mfma_f32_16x16x32_bf16 v[{SMm}:{SMm+3}], v[{KM+4*u}:{KM+4*u+3}], v[{QF+4*u}:{QF+4*u+3}], {cc}')
    for i in range(2): a(f'v_mov_b32_dpp v{SMm+i}, v{SMm+2+i} quad_perm:[0,1,2,3] row_mask:0xc bank_mask:0xf')
    t0 = TT + 2
    def allg(op, src):
        a(f'v_mov_b32 v{t0}, v{src}\nv_mov_b32 v{t0+1}, v{src}\nv_permlane32_swap_b32 v{t0}, v{t0+1}')
        a(f'{op} v{t0+2}, v{t0}, v{t0+1}\n{op} v{t0+3}, v{t0}, v{t0+1}\nv_permlane16_swap_b32 v{t0+2}, v{t0+3}\n{op} v{t0}, v{t0+2}, v{t0+3}')
    a(f'v_max3_f32 v{MX}, v{MX}, v{SMm}, v{SMm+1}')
    allg('v_max_f32', MX)
    a(f'v_mul_f32 v{MX}, s{sNC}, v{t0}')
    for x in range(10): a(f'v_fma_f32 v{S0+x}, v{S0+x}, s{sC}, v{MX}')
    for x in range(10): a(f'v_exp_f32 v{S0+x}, v{S0+x}')
    for i, x in enumerate((0, 2, 4, 6, 0, 2)): a(f'v_cvt_pk_bf16_f32 v{PP+i}, v{S0+x}, v{S0+x+1}')
    a(f'v_cvt_pk_bf16_f32 v{PD}, v{SMm}, v{SMm+1}\nv_cvt_pk_bf16_f32 v{PD+3}, v{SMm+1}, v{SMm}')
    for tau in range(4):
        pb = PP + 2*(tau & 1)
        a(f'v_mfma_f32_16x16x32_bf16 v[{AC+4*tau}:{AC+4*tau+3}], v[{VF+4*tau}:{VF+4*tau+3}], v[{pb}:{pb+3}], 0')
    for tau in range(4):
        vb = PB + 4*(tau >> 1) + 2; pd = PD + 2*(tau & 1)
        a(f'v_mfma_f32_16x16x16_bf16 v[{AC+4*tau}:{AC+4*tau+3}], v[{vb}:{vb+1}], v[{pd}:{pd+1}], v[{AC+4*tau}:{AC+4*tau+3}]')
    a(f'v_add_f32 v{MX}, v{S0}, v{S0+1}')
    for x in range(2, 10): a(f'v_add_f32 v{MX}, v{MX}, v{S0+x}')
    allg('v_add_f32', MX)
    a(f'v_rcp_f32 v{t0}, v{t0}')
    for x in range(16): a(f'v_mul_f32 v{AC+x}, v{AC+x}, v{t0}')
    for x in range(8): a(f'v_cvt_pk_bf16_f32 v{OPK+x}, v{AC+2*x}, v{AC+2*x+1}')
    a(f's_lshl_b32 s{sT}, s{sTq}, 12\ns_lshl_b32 s{sT2}, s{sEH}, 11\ns_add_u32 s{sT}, s{sT}, s{sT2}\ns_add_u32 s{sT}, s{sT}, {OX:#x}')
    a(f's_lshl_b32 s{sT2}, s{sS}, 5\ns_add_u32 s{sT2}, s{sT2}, s{sIDX}\ns_lshl_b32 s{sT2}, s{sT2}, 13\ns_add_u32 s{sT}, s{sT}, s{sT2}')
    a(f's_cmp_lg_u32 s{sGD}, 0\ns_cbranch_scc1 L_a_s1')
    for uu in range(2): a(f'buffer_store_dwordx4 v[{OPK+4*uu}:{OPK+4*uu+3}], v{vL16}, {S(sWS)}, s{sT} offen offset:{uu*1024}')
    a('s_branch L_a_s2\nL_a_s1:')
    for uu in range(2): a(f'buffer_store_dwordx4 v[{OPK+4*uu}:{OPK+4*uu+3}], v{vL16}, {S(sWS)}, s{sT} offen offset:{uu*1024} sc1')
    a('L_a_s2:')
    stamp(a, cfg, 2)
    a('s_waitcnt vmcnt(0)\ns_barrier')
    stamp(a, cfg, 4)
    a(f's_cmp_lg_u32 s{sW}, 0\ns_cbranch_scc1 L_a_nf')
    a(f'v_mov_b32 v{vT}, s{sNEED}\ns_lshl_b32 s{sT}, s{sIDX}, {cfg.fsh}\ns_add_u32 s{sT}, s{sT}, s{sFA}')
    a(f's_mov_b64 exec, 1\ns_cmp_lg_u32 s{sGD}, 0\ns_cbranch_scc1 L_a_f1')
    a(f'buffer_store_dword v{vT}, v{vZ}, {S(sWS)}, s{sT} offen\ns_branch L_a_f2')
    a(f'L_a_f1:\nbuffer_store_dword v{vT}, v{vZ}, {S(sWS)}, s{sT} offen sc1')
    a('L_a_f2:\ns_mov_b64 exec, -1')
    a('L_a_nf:')
    spin(a, 'L_a_ow', sWS, f's{sFA}', f's{sNEED}', vT, vONE, sCNT, cfg.sl2)
    stamp(a, cfg, 6)
    a(f's_lshl_b32 s{sO}, s{sS}, 18\ns_add_u32 s{sO}, s{sO}, {OX:#x}')
    a(f's_lshr_b32 s{sT}, s{sIDX}, 4\ns_lshl_b32 s{sT}, s{sT}, 12\ns_add_u32 s{sO}, s{sO}, s{sT}')
    for f in range(32):
        r = OB + 4*f
        if f % 4 == 0: a(f's_xor_b32 s{sT}, s{sHX}, {f//4}\ns_lshl_b32 s{sT}, s{sT}, 13\ns_add_u32 s{sT}, s{sT}, s{sO}')
        a(f'buffer_load_dwordx4 v[{r}:{r+3}], v{vL16}, {S(sWS)}, s{sT} offen offset:{(f%4)*1024} sc1')
    for f in range(32):
        if f == cfg.pfat:
            a(f's_add_u32 s{sO}, s{sS}, {cfg.ne}\ns_cmp_lt_u32 s{sO}, 64\ns_cselect_b32 s{sO}, s{sO}, s{sS}')
            fetch(sO)
        if f % 2 == 0: a(f's_waitcnt vmcnt({30 - f + (16 if f >= cfg.pfat else 0)})')
        for ct in range(2):
            r = OB + 4*f; wv = 128*ct + 4*f; d = OA + 8*ct + 4*(f & 1)
            cc = '0' if f < 2 else f'v[{d}:{d+3}]'
            a(f'v_mfma_f32_16x16x32_bf16 v[{d}:{d+3}], a[{wv}:{wv+3}], v[{r}:{r+3}], {cc}')
    stamp(a, cfg, 7)
    if cfg.pfat >= 32:
        a(f's_add_u32 s{sO}, s{sS}, {cfg.ne}\ns_cmp_ge_u32 s{sO}, 64\ns_cbranch_scc1 L_a_npf')
        fetch(sO)
        a('L_a_npf:\ns_nop 4')
    for T in range(2):
        for i in range(4): a(f'v_add_f32 v{OA+8*T+i}, v{OA+8*T+i}, v{OA+8*T+4+i}')
        a(f'ds_write_b128 v{vRW}, v[{OA+8*T}:{OA+8*T+3}] offset:{T*4096}')
    a('s_waitcnt lgkmcnt(0)\ns_barrier')
    a(f's_cmp_ge_u32 s{sW}, 2\ns_cbranch_scc1 L_a_ns')
    for w in range(4): a(f'ds_read_b128 v[{OB+4*w}:{OB+4*w+3}], v{vRR} offset:{w*1024}')
    a(f's_lshl_b32 s{sT}, s{sS}, 16\ns_lshr_b32 s{sT2}, s{sIDX}, 4\ns_lshl_b32 s{sT2}, s{sT2}, 15\ns_add_u32 s{sT}, s{sT}, s{sT2}\ns_and_b32 s{sT2}, s{sIDX}, 15\ns_lshl_b32 s{sT2}, s{sT2}, 6\ns_add_u32 s{sT}, s{sT}, s{sT2}')
    a(f's_lshl_b32 s{sT2}, s{sTq}, 5\ns_add_u32 s{sT}, s{sT}, s{sT2}')
    a('s_waitcnt lgkmcnt(0)')
    for i in range(4): a(f'v_add_f32 v{OB+i}, v{OB+i}, v{OB+4+i}\nv_add_f32 v{OB+8+i}, v{OB+8+i}, v{OB+12+i}')
    for i in range(4): a(f'v_add_f32 v{OB+i}, v{OB+i}, v{OB+8+i}')
    a(f'v_cvt_pk_bf16_f32 v{OB}, v{OB}, v{OB+1}\nv_cvt_pk_bf16_f32 v{OB+1}, v{OB+2}, v{OB+3}')
    a(f'buffer_store_dwordx2 v[{OB}:{OB+1}], v{vOut}, {S(sR2)}, s{sT} offen offset:1024{cfg.OS}')
    a('L_a_ns:')
    a(f's_add_u32 s{sNEED}, s{sNEED}, 1\ns_nop 0')
    if cfg.nsw:
        a(f's_cmp_lt_u32 s{sS}, {cfg.nsw}\ns_cselect_b32 s{sT}, 6, {cfg.ne}\ns_add_u32 s{sS}, s{sS}, s{sT}')
        a(f's_cmp_ge_u32 s{sJ}, {cfg.ne}\ns_cselect_b32 s{sT}, {cfg.nsw}, 64\ns_cmp_lt_u32 s{sS}, s{sT}')
    else:
        a(f's_add_u32 s{sS}, s{sS}, {cfg.ne}\ns_cmp_lt_u32 s{sS}, 64')
    a.flush()
    a('s_cbranch_scc1 L_a_loop')
    a('L_a_out:')
    stamp(a, cfg, 5)
```

```python
import sys, os
sys.path.insert(0, os.path.dirname(__file__))
from asmlib import Asm, vr

NAME = 'concat_heads__sliding_local_dilated__memory_aug_recurrent_mem_tr__prompt'
QX, KX, VX, KVM, FPR = 0, 0x2000, 0x4000, 0x6000, 0xf000
OX = 0x4000000
PART, MEMS, FLG = 0x5000000, 0x5080000, 0x5100000
WS_BYTES = 0x10000000
LDS_BYTES = 163840
sWS, sDBG = 4, 8
sR1, sR2, sR3 = 12, 44, 48
sXCD, sIDX, sW = 42, 43, 3
P = lambda i: 16 + 2 * i

class Cfg:
    roles = 'pcao'
    stamps = False
    pfat = 32
    wall = 0
    qn = 12
    ne = 5
    nsw = 0
    perm = 45701362
    qdelay = 0
    hx = 1
    align = 0
    apass = 0
    efast = 1
    diag = 0
    spos = 0
    lw = 15
    es4 = 15
    es5 = 16
    zpos = 0
    lazy = 1
    xm = 2
    touch = 1
    need1 = 11
    phalf = 1
    cwarm = 0
    steplog = -1
    depth = 4
    osc = 0
    x4 = 0
    own = 3
    pubpos = 0
    pfd = 0
    x_ack = 0
    mask = 1
    wsplit = 0
    dbgts = 0
    dbgmap = {'c': [(0, 9), (2, 10), (3, 11)], 'w': [(0, 12), (3, 13), (5, 14)], 'o': [(3, 15)]}
    fsh = 7
    sl1 = 1
    sl2 = 0
    warm = 1
    cord = 1
    need0 = 192
    x_only = -1
    x_stop = 0
    dual1 = 1
    sp4 = 7
    swz = 0
    pd0 = 0
    sp3 = 0
    h1 = 3
    h2 = 8
    kdpos = 0
    hint = 0
    hpos = 8
    ppos = (16, 20, 30)
    bar2 = 1
    np1 = 1
    np2 = 1
    sp1 = 0
    sp2 = 0
    trace = 0
    clk = 0
    x_nokv = 0
    x_nopub = 0
    x_nopf = 1
    vpos = 2
    osch = 0
    vgap = 3
    x_pfplain = 0
    x_kvplain = 0
    wm1 = 0
    wm2 = 0
    es1 = 12
    es2 = 14
    es3 = 14
    pd1 = 0
    pd2 = 0
    prof = 0
    force_slow = 0
    x_nostore = 0
    x_nodma = 0
    x_plain = 0

def srd(a, d, base, size):
    a(f's_mov_b32 s{d}, s{base}\ns_and_b32 s{d+1}, s{base+1}, 0xffff\ns_mov_b32 s{d+2}, {size:#x}\ns_mov_b32 s{d+3}, 0x20000')

def S(d): return f's[{d}:{d+3}]'

TS = 0x5180000
def stamp(a, cfg, i):
    if cfg.stamps:
        a(f's_memrealtime s[{84+2*i}:{85+2*i}]')
def dump_stamps(a, cfg, n, role):
    if not cfg.stamps: return
    l = a.newlabel('L_ts')
    a(f's_waitcnt lgkmcnt(0)\ns_cmp_lg_u32 s{sW}, 0\ns_cbranch_scc1 {l}')
    a(f's_lshl_b32 s80, s{sIDX}, 3\ns_add_u32 s80, s80, s{sXCD}\ns_lshl_b32 s80, s80, 6\ns_add_u32 s80, s80, {TS:#x}\nv_mov_b32 v1, 0')
    for i in range(n):
        a(f'v_mov_b32 v2, s{84+2*i}\nbuffer_store_dword v2, v1, {S(sWS)}, s80 offen offset:{4*i}')
    if cfg.dbgts:
        a('s_mov_b64 exec, 1')
        a(f's_not_b32 s81, s84\nv_mov_b32 v2, s81\nbuffer_atomic_umax v2, v1, {S(sDBG)}, 0 offen offset:32')
        for slot, word in cfg.dbgmap[role]:
            a(f'v_mov_b32 v2, s{84+2*slot}\nbuffer_atomic_umax v2, v1, {S(sDBG)}, 0 offen offset:{4*word}')
    a.label(l)

def prologue(a, cfg):
    if cfg.diag == 5: a('s_memrealtime s[100:101]')
    a('s_cmp_ge_u32 s2, 256\ns_cbranch_scc1 L_end')
    a('s_load_dwordx16 s[16:31], s[0:1], 0\ns_load_dwordx8 s[32:39], s[0:1], 64\ns_load_dwordx2 s[40:41], s[0:1], 96')
    a(f's_and_b32 s{sXCD}, s2, 7\ns_lshr_b32 s{sIDX}, s2, 3')
    a(f'v_lshrrev_b32 v1, 6, v0\nv_and_b32 v0, 63, v0\nv_readfirstlane_b32 s{sW}, v1')
    if cfg.perm:
        tab = sum(int(c) << (4*i) for i, c in enumerate(str(cfg.perm).zfill(8)))
        a(f's_lshl_b32 s{sXCD}, s{sXCD}, 2\ns_lshr_b32 s{sXCD}, {tab:#x}, s{sXCD}\ns_and_b32 s{sXCD}, s{sXCD}, 7')
    a(f's_cmp_gt_u32 s{sXCD}, 1\ns_cbranch_scc1 L_work')
    a(f's_cmp_eq_u32 s{sXCD}, 1\ns_cbranch_scc1 L_apart')

def code_warm(a, cfg, end='L_work'):
    if not cfg.cwarm: return
    l = a.newlabel('L_pc')
    a('s_getpc_b64 s[50:51]')
    a.label(l)
    a(f's_lshl_b32 s49, s{sW}, 13\nv_lshlrev_b32 v250, 7, v0\nv_add_u32 v250, s49, v250')
    a.raw(f'  s_mov_b32 s49, {end} - {l} - 4')
    a('v_min_u32 v250, s49, v250\nv_mov_b32 v251, s51\nv_add_co_u32 v250, vcc, s50, v250\nv_addc_co_u32 v251, vcc, 0, v251, vcc')
    a('global_load_dword v252, v[250:251], off')

def touch(a, cfg):
    if not cfg.wall: return
    a(f's_sub_u32 s48, s{sXCD}, 1\ns_lshl_b32 s48, s48, 5\ns_add_u32 s48, s48, s{sIDX}\ns_mul_i32 s48, s48, {147*128}')
    a('v_lshlrev_b32 v250, 7, v0')
    for rnd in range(3):
        order = [(5, 6, 7, 8), (5, 8, 6, 7)][cfg.wall - 1]
        if rnd == 0:
            a(f's_cmp_lt_u32 s{sW}, 2\ns_cselect_b32 s44, s{P(order[0])}, s{P(order[2])}\ns_cselect_b32 s45, s{P(order[0])+1}, s{P(order[2])+1}')
            a(f's_cselect_b32 s46, s{P(order[1])}, s{P(order[3])}\ns_cselect_b32 s47, s{P(order[1])+1}, s{P(order[3])+1}')
            a(f's_bitcmp1_b32 s{sW}, 0\ns_cselect_b32 s44, s46, s44\ns_cselect_b32 s45, s47, s45')
            a('s_and_b32 s45, s45, 0xffff\ns_mov_b32 s46, 0x400000\ns_mov_b32 s47, 0x20000\nv_add_u32 v250, s48, v250')
        else: a('v_add_u32 v250, 0x2000, v250')
        a(f'buffer_load_dword v{251+rnd}, v250, s[44:47], 0 offen')

def args_ready(a):
    a('s_waitcnt lgkmcnt(0)')
    srd(a, sWS, P(12), WS_BYTES)
    srd(a, sDBG, P(11), 256)

def role_proj(a, cfg):
    vL16, vSRC, vTR, vX, vRD, vZ = 1, 2, 3, 4, 5, 6
    XB = 16
    ACC = 48
    PK = 64
    XV, RB, RD = 72, 80, 84
    sJ, sWH, sPAR, sT, sT2, sI, sXO, sSLOT, sRSLOT, sOUT, sG = 52, 53, 54, 55, 56, 57, 58, 59, 60, 61, 62
    stamp(a, cfg, 0)
    a(f's_sub_u32 s{sJ}, s{sXCD}, 2\ns_lshr_b32 s{sWH}, s{sJ}, 1\ns_and_b32 s{sPAR}, s{sJ}, 1')
    a(f'v_lshrrev_b32 v8, 4, v0\ns_and_b32 s{sT}, s{sW}, 2\ns_lshl_b32 s{sT}, s{sT}, 1\nv_or_b32 v9, s{sT}, v8\nv_lshlrev_b32 v9, 1, v9')
    a(f'v_and_b32 v10, 15, v0\nv_xor_b32 v9, v9, v10\nv_lshlrev_b32 v9, 4, v9\nv_lshl_add_u32 v{vSRC}, v8, 13, v9')
    args_ready(a)
    touch(a, cfg)
    a(f's_cmp_eq_u32 s{sWH}, 0\ns_cselect_b32 s64, s{P(6)}, s{P(7)}\ns_cselect_b32 s65, s{P(6)+1}, s{P(7)+1}')
    a(f's_mov_b32 s{sOUT}, {VX:#x}\ns_cselect_b32 s{sOUT}, {KX:#x}, s{sOUT}')
    a(f's_cmp_eq_u32 s{sWH}, 2\ns_cselect_b32 s64, s{P(5)}, s64\ns_cselect_b32 s65, s{P(5)+1}, s65\ns_cselect_b32 s{sOUT}, {QX:#x}, s{sOUT}')
    srd(a, sR1, 64, 512 * 8192)
    srd(a, sR2, P(3), 2048 * 1024)
    a(f's_lshl_b32 s{sT}, s{sIDX}, 8\ns_lshl_b32 s{sT2}, s{sW}, 15\ns_add_u32 s{sT}, s{sT}, s{sT2}\ns_lshl_b32 m0, s{sW}, 10')
    for k in range(32):
        a(f'buffer_load_dwordx4 v{vSRC}, {S(sR1)}, s{sT} offen lds')
        a(f's_add_u32 s{sT}, s{sT}, {16*8192:#x}\ns_add_u32 m0, m0, 4096')
    a(f'v_lshlrev_b32 v{vL16}, 4, v0')
    a(f'v_mov_b32 v{vZ}, 0\ns_lshl_b32 s{sG}, s{sIDX}, 21\ns_lshl_b32 s63, s{sJ}, 7\ns_add_u32 s{sG}, s{sG}, s63\ns_add_u32 s{sG}, s{sG}, {FPR:#x}')
    a(f's_lshl_b32 s{sT2}, s{sJ}, 12\ns_add_u32 s{sT2}, s{sT2}, {FLG+4096:#x}\ns_lshl_b32 s63, s{sIDX}, {cfg.fsh}\ns_add_u32 s{sT2}, s{sT2}, s63')
    a(f's_cmp_lg_u32 s{sW}, 0\ns_cbranch_scc1 L_pz2')
    a(f's_getreg_b32 s63, hwreg(HW_REG_XCC_ID)\ns_and_b32 s63, s63, 15\nv_mov_b32 v7, s63')
    a(f'buffer_store_dwordx2 v[6:7], v{vZ}, {S(sWS)}, s{sT2} offen sc1\nbuffer_store_dword v{vZ}, v{vZ}, {S(sWS)}, s{sG} offen sc1')
    a('L_pz2:')
    code_warm(a, cfg, 'L_apart')
    WT = 12
    a(f'v_bfe_u32 v9, v0, 2, 2\nv_lshl_add_u32 v10, v8, 3, v9\nv_lshlrev_b32 v10, 8, v10')
    a(f'v_and_b32 v8, 1, v8\nv_lshl_or_b32 v9, v8, 2, v9\nv_lshlrev_b32 v9, 1, v9')
    a(f'v_bfe_u32 v8, v0, 1, 1\ns_lshl_b32 s{sT}, s{sW}, 2\nv_or_b32 v8, s{sT}, v8\nv_xor_b32 v9, v9, v8\nv_lshl_add_u32 v10, v9, 4, v10')
    a(f'v_and_b32 v8, 1, v0\nv_lshl_add_u32 v{WT}, v8, 3, v10\nv_xor_b32 v{WT+2}, 32, v{WT}\nv_add_u32 v{WT+1}, 0x10000, v{WT}\nv_add_u32 v{WT+3}, 0x10000, v{WT+2}')
    a(f's_lshl_b32 s{sT}, s{sW}, 3\ns_and_b32 s{sT2}, s{sT}, 15\ns_lshl_b32 s{sT}, s{sT}, 10')
    for i in range(8):
        a(f's_add_u32 s63, s{sT2}, {i}\nv_xor_b32 v8, s63, v0\nv_lshlrev_b32 v8, 4, v8')
        a(f's_add_u32 s63, s{sT}, {(i//4)*4096}\nv_add_u32 v{XV+i}, s63, v8')
    for uu in range(4):
        a(f'v_lshrrev_b32 v8, 4, v0\nv_or_b32 v8, {4*uu}, v8\nv_and_b32 v9, 15, v0\nv_xor_b32 v8, v8, v9\nv_lshlrev_b32 v8, 4, v8')
        a(f'v_lshlrev_b32 v9, 10, v9\nv_add_u32 v{RB+uu}, v8, v9')
    def xdma(only=None):
        for i in range(8):
            if only is not None and i != only: continue
            if i == 0: a(f's_lshl_b32 s{sT}, s{sW}, 13\ns_add_u32 m0, s{sSLOT}, s{sT}')
            a(f'buffer_load_dwordx4 v{XV+i}, {S(sR2)}, s{sXO} offen offset:{1024*(i%4)} lds')
            if i == 3: a('s_add_u32 m0, m0, 4096')
        if only is not None and only != 7: return
        a(f's_add_u32 s{sXO}, s{sXO}, s68\ns_min_u32 s{sXO}, s{sXO}, 0x1f8000\ns_add_u32 s{sSLOT}, s{sSLOT}, 0x8000')
        a(f's_cmp_eq_u32 s{sSLOT}, 0x28000\ns_cselect_b32 s{sSLOT}, 0, s{sSLOT}')
    sSTR, sCNT = 68, 69
    a(f's_mov_b32 s{sSTR}, 0x10000\ns_mov_b32 s{sCNT}, 32')
    if cfg.qn:
        a(f's_cmp_eq_u32 s{sWH}, 2\ns_cselect_b32 s{sSTR}, 0x8000, s{sSTR}')
        a(f's_cmp_eq_u32 s{sJ}, 4\ns_cselect_b32 s{sPAR}, {cfg.qn}, s{sPAR}\ns_cselect_b32 s{sCNT}, {64 - cfg.qn}, s{sCNT}')
        a(f's_cmp_eq_u32 s{sJ}, 5\ns_cselect_b32 s{sPAR}, 0, s{sPAR}\ns_cselect_b32 s{sCNT}, {cfg.qn}, s{sCNT}')
    a(f's_lshl_b32 s{sXO}, s{sPAR}, 15\ns_mov_b32 s{sSLOT}, 0x20000\ns_mov_b32 s{sRSLOT}, 0x20000')
    xdma()
    for st in range(4):
        a(f's_waitcnt vmcnt({8 + 8*(3-st)})\ns_barrier')
        for u in range(4*st, 4*st + 4):
            for c in range(2):
                for t in range(2):
                    r = (t * 16 + u) * 4 + 2 * c
                    a(f'ds_read_b64_tr_b16 a[{r}:{r+1}], v{WT + 2*t + u//8} offset:{(u%8)*8192 + c*1024}')
    a('s_waitcnt lgkmcnt(0)\ns_barrier')
    stamp(a, cfg, 1)
    xdma(); xdma()
    a(f's_lshl_b32 s{sT}, s{sPAR}, 15\ns_add_u32 s{sOUT}, s{sOUT}, s{sT}\ns_lshl_b32 s{sT}, s{sIDX}, 21\ns_add_u32 s{sOUT}, s{sOUT}, s{sT}')
    a(f's_cmp_eq_u32 s{sWH}, 1\ns_cselect_b32 s{sT2}, 11, 10\ns_lshl_b32 s{sT}, s{sW}, s{sT2}\ns_add_u32 s{sOUT}, s{sOUT}, s{sT}')
    sADV, sOUT2 = 63, 66
    ACCS = (ACC, 88)
    a(f's_mov_b32 s{sI}, 0\nv_mov_b32 v7, 1\nv_mov_b32 v9, 31\ns_mov_b32 s{sADV}, 0')
    a(f's_cmp_eq_u32 s{sWH}, 1\ns_cselect_b32 s{sT}, 1, 4\ns_lshl_b32 s{sT}, s{sT}, 10\ns_add_u32 s{sOUT2}, s{sOUT}, s{sT}')
    def rd(u):
        return [f'ds_read_b128 v[{XB + ((u % 4) * 2 + T) * 4}:{XB + ((u % 4) * 2 + T) * 4 + 3}], v{RD+u%4} offset:{T*16384+((u%16)//4)*256}' for T in range(2)]
    def nextslot():
        return [f'v_add_u32 v{RD+uu}, s{sRSLOT}, v{RB+uu}' for uu in range(4)] + \
               [f's_add_u32 s{sRSLOT}, s{sRSLOT}, 0x8000\ns_cmp_eq_u32 s{sRSLOT}, 0x28000\ns_cselect_b32 s{sRSLOT}, 0, s{sRSLOT}']
    def epilogue(isv, acc):
        E = []
        for f in range(2):
            for hlf in range(2):
                d = acc + ((f * 2 + (hlf ^ f)) if isv else (hlf * 2 + f)) * 4
                E += [f'v_cvt_pk_bf16_f32 v{PK+f*4+hlf*2}, v{d}, v{d+1}', f'v_cvt_pk_bf16_f32 v{PK+f*4+hlf*2+1}, v{d+2}, v{d+3}']
            E.append(f'buffer_store_dwordx4 v[{PK+f*4}:{PK+f*4+3}], v{vL16}, {S(sWS)}, s{sOUT2 if f else sOUT} offen sc1')
        if isv: E[-1] += f'\nbuffer_store_dwordx4 v[12:15], v11, {S(sWS)}, s{sOUT} offen sc1'
        E.append(f's_add_u32 s{sOUT}, s{sOUT}, s{sADV}\ns_add_u32 s{sOUT2}, s{sOUT2}, s{sADV}\ns_mov_b32 s{sADV}, s{sSTR}')
        return E
    for i in range(4): a(f'v_mov_b32 v{12+i}, -1')
    a(f's_lshl_b32 s{sT}, s{sW}, 10\nv_subrev_u32 v11, s{sT}, v{vL16}\nv_add_u32 v11, {KVM - VX:#x}, v11')
    a('s_waitcnt vmcnt(16)\ns_barrier')
    a(f's_cmp_lg_u32 s{sW}, 0\ns_cbranch_scc1 L_p_ni')
    a(f's_mov_b64 exec, 1\nbuffer_atomic_add v7, v{vZ}, {S(sDBG)}, 0 offen sc1\ns_mov_b64 exec, -1')
    a('L_p_ni:')
    stamp(a, cfg, 4)
    for l in nextslot(): a(l)
    for u in range(4):
        for l in rd(u): a(l)
    a(f's_cmp_eq_u32 s{sWH}, 1\ns_cbranch_scc1 L_pv_loop')
    for isv in (0, 1):
        lab = 'L_pv_loop' if isv else 'L_pk_loop'
        a.label(lab)
        for half in range(2):
            acc = ACCS[half]
            E = epilogue(isv, ACCS[1 - half])
            for u in range(16):
                a('s_waitcnt lgkmcnt(6)')
                fill = []
                if 2 <= u <= 7: fill = E[2*(u-2):2*(u-2)+2]
                k = 0
                for T in range(2):
                    for t in range(2):
                        d = acc + (t * 2 + T) * 4
                        x = XB + ((u % 4) * 2 + T) * 4
                        w = (t * 16 + u) * 4
                        c = '0' if u == 0 else f'v[{d}:{d+3}]'
                        if isv: a(f'v_mfma_f32_16x16x32_bf16 v[{d}:{d+3}], v[{x}:{x+3}], a[{w}:{w+3}], {c}')
                        else:   a(f'v_mfma_f32_16x16x32_bf16 v[{d}:{d+3}], a[{w}:{w+3}], v[{x}:{x+3}], {c}')
                        if k == 0 and u % 2 == 0: xdma(u // 2)
                        if k == 0 and u == 12:
                            a('s_waitcnt vmcnt(13)\ns_barrier')
                            for l in nextslot(): a(l)
                        if k == 1: a(rd(u + 4)[0])
                        if k == 3: a(rd(u + 4)[1])
                        if k in (0, 2) and fill: a(fill.pop(0))
                        if k == 2 and u == 13 and half == cfg.phalf:
                            a(f's_cmp_lg_u32 s{sW}, 0\ns_cbranch_scc1 {lab}_nf')
                            a(f'v_min_u32 v8, s{sI}, v9\ns_mov_b64 exec, 1\nbuffer_store_dword v8, v{vZ}, {S(sWS)}, s{sG} offen sc1')
                            a('s_mov_b64 exec, -1')
                            a.label(f'{lab}_nf')
                        k += 1
        a(f's_add_u32 s{sI}, s{sI}, 2\ns_cmp_lt_u32 s{sI}, s{sCNT}\ns_cbranch_scc1 {lab}')
        a.flush(); a('s_nop 7')
        for l in epilogue(isv, ACCS[1]): a(l)
        if not isv: a('s_branch L_p_done')
    a('L_p_done:')
    stamp(a, cfg, 2)
    a('s_waitcnt vmcnt(0) lgkmcnt(0)\ns_barrier')
    stamp(a, cfg, 3)
    a(f's_cmp_lg_u32 s{sW}, 0\ns_cbranch_scc1 L_p_fl')
    a(f'v_mov_b32 v8, 32\ns_mov_b64 exec, 1\nbuffer_store_dword v8, v{vZ}, {S(sWS)}, s{sG} offen sc1\ns_mov_b64 exec, -1')
    a('L_p_fl:')

def build(cfg):
    cfg.OS = ['', ' sc1', ' nt', ' sc0 sc1'][cfg.osc]
    a = Asm()
    hdr = open(os.path.join(os.path.dirname(__file__), '..', 'cdna_kernels', NAME + '.s.ref')).read().split('\n')
    for l in hdr:
        if l.startswith('; @launch'): break
        a.raw(l)
    a.raw(f'; @launch grid=(256,1,1) block=(256,1,1) lds={LDS_BYTES}')
    a.raw('.amdgcn_target "amdgcn-amd-amdhsa--gfx950"\n.text')
    a.raw(f'.globl {NAME}_kernel\n.p2align 8\n.type {NAME}_kernel,@function\n{NAME}_kernel:')
    prologue(a, cfg)
    if 'c' in cfg.roles:
        from role_chain import role_chain
        role_chain(a, cfg)
        dump_stamps(a, cfg, 8, 'c')
    a('s_endpgm')
    a.label('L_work')
    if cfg.x_only >= 0: a(f's_cmp_gt_u32 s{sXCD}, {cfg.x_only}\ns_cbranch_scc1 L_end')
    role_proj(a, cfg)
    if 'a' in cfg.roles:
        from role_att import role_att
        role_att(a, cfg)
    dump_stamps(a, cfg, 8, 'w')
    a('s_endpgm')
    a.label('L_apart')
    if 'o' in cfg.roles:
        from role_apart import role_apart
        role_apart(a, cfg)
        dump_stamps(a, cfg, 8, 'o')
    a.label('L_end')
    a('s_endpgm')
    a.label('L_code_end')
    a.raw(f'''.section .rodata,"a"
.p2align 6
.amdhsa_kernel {NAME}_kernel
  .amdhsa_next_free_vgpr 512
  .amdhsa_next_free_sgpr 102
  .amdhsa_accum_offset 256
  .amdhsa_group_segment_fixed_size 0
  .amdhsa_kernarg_size 104
  .amdhsa_user_sgpr_count 2
  .amdhsa_user_sgpr_kernarg_segment_ptr 1
  .amdhsa_system_sgpr_workgroup_id_x 1
.end_amdhsa_kernel''')
    t = a.text()
    if cfg.apass and 'c' in cfg.roles:
        from alignpass import align
        assert cfg.align >= 0 and cfg.align % 2 == 0
        t, c, k = align(t, 'L_cf_step', 'L_cs_pm0_loop')
        print('align pass: residual cost', round(c, 2), 'widened', k)
    return t

if __name__ == '__main__':
    sys.modules['gen'] = sys.modules['__main__']
    cfg = Cfg()
    out = None
    for arg in sys.argv[1:]:
        if arg.startswith('roles='): cfg.roles = arg[6:]
        elif arg.startswith('out='): out = arg[4:]
        elif '=' in arg:
            k, v = arg.split('='); setattr(cfg, k, tuple(int(x) for x in v.split(',')) if k == 'ppos' else int(v))
    out = out or os.path.join(os.path.dirname(__file__), '..', 'cdna_kernels', NAME + '.s')
    open(out, 'w').write(build(cfg))
    print('wrote', out)
```
